```python
import torch

def _softmax(x, axis=-1):
    return torch.softmax(x, dim=axis)
def _gelu(x):
    return torch.nn.functional.gelu(x, approximate="tanh")
def _silu(x):
    return torch.nn.functional.silu(x)
def _sigmoid(x):
    return torch.sigmoid(x)
def _layernorm(x, axis=-1, eps=1e-5):
    m = x.mean(dim=axis, keepdim=True)
    v = x.var(dim=axis, keepdim=True, unbiased=False)
    return (x - m) / torch.sqrt(v + eps)
def _scatter_add(tgt, idx, src, axis=0):
    return tgt.clone().index_add_(axis, idx, src)
def _segment_sum(src, seg, n):
    out = torch.zeros((n,) + src.shape[1:], dtype=src.dtype)
    return out.index_add_(0, seg, src)
def _pad(x, pw):
    flat = tuple(v for pair in reversed(pw) for v in pair)
    return torch.nn.functional.pad(x, flat)

kernel_name = 'sequential_preLN__mha_block__moe_arch_mod__prompt'

def setup_inputs():

    _w = (lambda a: (lambda t: t.to(torch.bfloat16) if t.is_floating_point() else t)(torch.as_tensor(a)))
    def _A_setup():
        B, S, D, H = 1, 2048, 512, 32
        return {
            "x": _w((lambda *s: torch.randn(*s, dtype=torch.bfloat16) * 0.05)(B, S, D)),
            "wqkv": _w((lambda *s: torch.randn(*s, dtype=torch.bfloat16) * 0.05)(D, 3 * D)),
            "wo": _w((lambda *s: torch.randn(*s, dtype=torch.bfloat16) * 0.05)(D, D)),
        }
    _A_in = _A_setup()

    def _B_setup():
        B, S, D, F, C = 1, 2048, 512, 1792, 1
        return {
            "x": _w((lambda *s: torch.randn(*s, dtype=torch.bfloat16) * 0.05)(B, S, D)),
            "w_r": _w((lambda *s: torch.randn(*s, dtype=torch.bfloat16) * 0.05)(D)),
            "w_gate": _w((lambda *s: torch.randn(*s, dtype=torch.bfloat16) * 0.05)(D, F)),
            "w_up": _w((lambda *s: torch.randn(*s, dtype=torch.bfloat16) * 0.05)(D, F)),
            "w_down": _w((lambda *s: torch.randn(*s, dtype=torch.bfloat16) * 0.05)(F, D)),
        }
    _B_in = _B_setup()

    return {
        "A_x": _A_in["x"],
        "A_wqkv": _A_in["wqkv"],
        "A_wo": _A_in["wo"],
        "B_x": _B_in["x"],
        "B_w_r": _B_in["w_r"],
        "B_w_gate": _B_in["w_gate"],
        "B_w_up": _B_in["w_up"],
        "B_w_down": _B_in["w_down"],
    }

def reference(A_x, A_wqkv, A_wo, B_x, B_w_r, B_w_gate, B_w_up, B_w_down):
    def _A_ref(x, wqkv, wo):
        B, S, D = x.shape
        H = 32
        Dh = D // H
        qkv = (lambda x, *d: x.permute(*d))((x @ wqkv).reshape(B, S, 3, H, Dh), 2, 0, 3, 1, 4)
        q, k, v = qkv[0], qkv[1], qkv[2]
        scores = torch.einsum("bhqd,bhkd->bhqk", q, k) * (Dh ** -0.5)
        p = _softmax(scores, axis=-1)
        o = torch.einsum("bhqk,bhkd->bhqd", p, v)
        return (lambda x, *d: x.permute(*d))(o, 0, 2, 1, 3).reshape(B, S, D) @ wo

    def _B_ref(x, w_r, w_gate, w_up, w_down):
        B, S, D = x.shape
        C = 1
        r = x @ w_r
        idx = torch.argsort(-r, axis=-1)[:, :C]
        idx_e = (lambda x, n, axis: torch.repeat_interleave(x, n, dim=axis))(idx.reshape(B, C, 1), D, axis=2)
        x_sel = (lambda x, i, axis: torch.take_along_dim(x, i, dim=axis))(x, idx_e, axis=1)
        g = _silu(x_sel @ w_gate)
        u = x_sel @ w_up
        y = (g * u) @ w_down
        r_sel = _sigmoid((lambda x, i, axis: torch.take_along_dim(x, i, dim=axis))(r, idx, axis=1))
        y = y * r_sel.reshape(B, C, 1)
        b_off = (torch.arange(B) * S).reshape(B, 1)
        flat_idx = (idx + b_off).reshape(B * C)
        zero = (x * 0.0).reshape(B * S, D)
        upd = _scatter_add(zero, flat_idx, y.reshape(B * C, D), axis=0)
        return x + upd.reshape(B, S, D)

    x = A_x
    h = x + _A_ref(_layernorm(x, axis=-1), A_wqkv, A_wo)
    h2 = h + _B_ref(_layernorm(h, axis=-1), B_w_r, B_w_gate, B_w_up, B_w_down)
    return h2
```

```python
class Asm:
    def __init__(self):
        self.lines = []
    def __call__(self, s):
        for l in s.strip("\n").split("\n"):
            l = l.strip()
            if not l:
                continue
            if l.endswith(":") or l.startswith("."):
                self.lines.append(l)
            else:
                self.lines.append("    " + l)
    def c(self, s):
        self.lines.append("    ; " + s)
    def label(self, s):
        self.lines.append(s + ":")
    def text(self):
        return "\n".join(self.lines) + "\n"

def vr(b, n=1):
    return f"v{b}" if n == 1 else f"v[{b}:{b+n-1}]"
def sr(b, n=1):
    return f"s{b}" if n == 1 else f"s[{b}:{b+n-1}]"

def srd(a, d, base, nbytes):
    a(f"s_mov_b32 s{d}, s{base}")
    a(f"s_and_b32 s{d+1}, s{base+1}, 0xffff")
    a(f"s_mov_b32 s{d+2}, {nbytes:#x}")
    a(f"s_mov_b32 s{d+3}, 0x00020000")

def kernel_head(a, name):
    a(f".globl {name}")
    a(".p2align 8")
    a(f".type {name},@function")
    a(f"{name}:")

def descriptor(name, vgpr, sgpr=96, accum=None):
    accum = accum if accum is not None else (vgpr + 3) // 4 * 4
    return f""".p2align 6
.amdhsa_kernel {name}
  .amdhsa_next_free_vgpr {vgpr}
  .amdhsa_next_free_sgpr {sgpr}
  .amdhsa_accum_offset {accum}
  .amdhsa_group_segment_fixed_size 0
  .amdhsa_kernarg_size 88
  .amdhsa_user_sgpr_count 2
  .amdhsa_user_sgpr_kernarg_segment_ptr 1
  .amdhsa_system_sgpr_workgroup_id_x 1
.end_amdhsa_kernel
"""
```

```python
from asmlib import *
from layout import *

K1_LDS = 98304 + 512 + 1024
LDS_CS = 98304
LDS_AB = 98304 + 512

def gen_k1(a, name):
    XF = 64; AQ = 192; AK = 208; AV = 224
    WF = [16, 28]
    SX = [40, 44]; SXX = [48, 52]; CS = [240, 244, 248]
    ONES = 56
    VX = [8, 9, 10, 11]
    VL = [12, 13, 14, 15]
    VW = 58; LANE = 2; WO = 60
    kernel_head(a, name)
    a(f"""
    s_cmp_ge_u32 s2, 256
    s_cbranch_scc1 {name}_end
    s_load_dwordx4 s[4:7], s[0:1], 0
    s_load_dwordx2 s[8:9], s[0:1], 16
    s_load_dwordx2 s[10:11], s[0:1], 80
    s_getpc_b64 s[36:37]
    {name}_pc:
    v_lshrrev_b32 v1, 6, v0
    v_and_b32 v{LANE}, 63, v0
    s_and_b32 s29, s2, 7
    v_readfirstlane_b32 s28, v1
    s_lshr_b32 s30, s2, 3
    s_lshr_b32 s31, s29, 1
    s_lshl_b32 s31, s31, 2
    s_and_b32 s33, s30, 3
    s_add_u32 s31, s31, s33
    s_and_b32 s32, s29, 1
    s_lshl_b32 s32, s32, 3
    s_lshr_b32 s33, s30, 2
    s_add_u32 s32, s32, s33
    """)
    a.c("s28=wave s31=mb s32=nb ; code prefetch (1 KB per wave) through an exact-size descriptor")
    a(f"""
    s_and_b32 s37, s37, 0xffff
    s_mov_b32 s38, code_end-{name}_pc
    s_mov_b32 s39, 0x00020000
    s_lshl_b32 s33, s30, 2
    s_add_u32 s33, s33, s28
    s_and_b32 s33, s33, 15
    s_lshl_b32 s33, s33, 10
    v_lshlrev_b32 v3, 4, v{LANE}
    buffer_load_dwordx4 v[4:7], v3, s[36:39], s33 offen
    """)
    a.c("per-lane offsets")
    a(f"""
    v_and_b32 v3, 31, v{LANE}
    v_lshlrev_b32 v3, 10, v3
    v_lshrrev_b32 v59, 5, v{LANE}
    v_lshl_add_u32 v3, v59, 4, v3
    v_lshlrev_b32 v62, 9, v59
    v_bfe_u32 v63, v{LANE}, 2, 2
    v_lshl_add_u32 v62, v63, 6, v62
    v_bfe_u32 v63, v{LANE}, 4, 1
    v_lshl_add_u32 v62, v63, 5, v62
    v_and_b32 v63, 3, v{LANE}
    v_lshl_add_u32 v62, v63, 3, v62
    v_lshrrev_b32 v{VW}, 2, v{LANE}
    v_mul_u32_u24 v{VW}, 3072, v{VW}
    v_lshl_add_u32 v{VW}, v63, 4, v{VW}
    """)
    for j in range(4):
        a(f"""
        s_add_u32 s33, s28, {j}
        s_and_b32 s33, s33, 3
        s_lshl_b32 s34, s33, 5
        s_mul_i32 s35, s33, 3072
        v_add_u32 v{VX[j]}, s34, v3
        v_add_u32 v{VL[j]}, s35, v62
        """)
    a(f"""
    v_mov_b32 v{ONES}, 0x3f803f80
    v_mov_b32 v{ONES+1}, 0x3f803f80
    s_lshl_b32 s40, s31, 17
    s_lshl_b32 s33, s28, 15
    s_add_u32 s40, s40, s33
    s_mul_i32 s41, s28, 49152
    s_lshl_b32 s33, s32, 6
    s_add_u32 s41, s41, s33
    s_mul_i32 s42, s28, 3072
    s_waitcnt lgkmcnt(0)
    """)
    srd(a, 12, 4, 2048 * 512 * 2)
    srd(a, 16, 6, 512 * 1536 * 2)
    a.c("issue all loads: per phase 3 LDS-DMA (W, k-step 4p+w) + 4 x fragments")
    for p in range(8):
        a(f"s_mov_b32 m0, s42")
        if p < 7:
            a(f"s_add_u32 s42, s42, 12288")
        else:
            a("s_nop 0")
        for u in range(3):
            a(f"buffer_load_dwordx4 v{VW}, s[16:19], s41 offen offset:{u*1024} lds")
        if p < 7:
            a(f"s_add_u32 s41, s41, {4*49152}")
        for j in range(4):
            t = 4 * p + j
            a(f"buffer_load_dwordx4 {vr(XF+4*t,4)}, v{VX[j]}, s[12:15], s40 offen offset:{p*128}")
    srd(a, 20, 8, 512 * 512 * 2)
    srd(a, 24, 10, WS_BYTES)
    a.c("Wo transpose job: frag f=2b+(w>>1): ks=f>>4, ct=f&15; rows 16ks+8h+4(w&1)+jj, col=32ct+16*((m>>2)&1)+4*(m>>3)+(m&3)")
    a(f"""
    s_lshr_b32 s33, s28, 1
    s_lshl_b32 s43, s2, 1
    s_add_u32 s43, s43, s33
    s_lshr_b32 s34, s43, 4
    s_lshl_b32 s34, s34, 14
    s_and_b32 s35, s43, 15
    s_lshl_b32 s35, s35, 6
    s_add_u32 s34, s34, s35
    s_and_b32 s44, s28, 1
    s_lshl_b32 s35, s44, 12
    s_add_u32 s34, s34, s35
    v_lshlrev_b32 v3, 13, v59
    v_bfe_u32 v63, v{LANE}, 2, 1
    v_lshl_add_u32 v3, v63, 5, v3
    v_bfe_u32 v63, v{LANE}, 3, 2
    v_lshl_add_u32 v3, v63, 3, v3
    v_and_b32 v63, 3, v{LANE}
    v_lshl_add_u32 v3, v63, 1, v3
    buffer_load_ushort v{WO}, v3, s[20:23], s34 offen
    buffer_load_ushort v252, v3, s[20:23], s34 offen offset:1024
    buffer_load_ushort v{WO+1}, v3, s[20:23], s34 offen offset:2048
    buffer_load_ushort v253, v3, s[20:23], s34 offen offset:3072
    """)
    a.c("zero colsum cells in LDS (threads < 128 write one dword each)")
    a(f"""
    v_lshlrev_b32 v3, 2, v0
    v_mov_b32 v63, 0
    v_cmp_gt_u32 vcc, 128, v0
    s_and_saveexec_b64 s[34:35], vcc
    ds_write_b32 v3, v63 offset:{LDS_CS - 65536 if LDS_CS >= 65536 else LDS_CS}
    s_mov_b64 exec, s[34:35]
    """.replace(f"v_lshlrev_b32 v3, 2, v0", f"v_lshlrev_b32 v3, 2, v0\n    v_add_u32 v3, 0x10000, v3"))

    def reads(t):
        p, j = t >> 2, t & 3
        wf = WF[t & 1]
        off = (p & 3) * 12288
        for u in range(3):
            a(f"ds_read_b64_tr_b16 {vr(wf+4*u,2)}, v{VL[j]} offset:{off+u*1024}")
            a(f"ds_read_b64_tr_b16 {vr(wf+4*u+2,2)}, v{VL[j]} offset:{off+u*1024+256}")
    first = {"q": True}
    def mfma(t):
        p, j = t >> 2, t & 3
        wf = WF[t & 1]; xf = XF + 4 * t
        c = (lambda r: "0") if t == 0 else (lambda r: vr(r, 16))
        a(f"v_mfma_f32_32x32x16_bf16 {vr(AQ,16)}, {vr(wf,4)}, {vr(xf,4)}, {c(AQ)}")
        a(f"v_mfma_f32_32x32x16_bf16 {vr(AK,16)}, {vr(wf+4,4)}, {vr(xf,4)}, {c(AK)}")
        a(f"v_mfma_f32_32x32x16_bf16 {vr(AV,16)}, {vr(xf,4)}, {vr(wf+8,4)}, {c(AV)}")
        if j == 0:
            seq = []
            for q in range(8):
                x2 = XF + 16 * p + 2 * q
                z = (p == 0 and q < 2)
                seq.append(f"v_mfma_f32_4x4x4_16b_bf16 {vr(SX[q&1],4)}, {vr(ONES,2)}, {vr(x2,2)}, {'0' if z else vr(SX[q&1],4)}")
                seq.append(f"v_mfma_f32_4x4x4_16b_bf16 {vr(SXX[q&1],4)}, {vr(x2,2)}, {vr(x2,2)}, {'0' if z else vr(SXX[q&1],4)}")
                if q < 6:
                    u, hh = q % 3, q // 3
                    z2 = (p == 0 and hh == 0)
                    seq.append(f"v_mfma_f32_4x4x4_16b_bf16 {vr(CS[u],4)}, {vr(ONES,2)}, {vr(wf+4*u+2*hh,2)}, {'0' if z2 else vr(CS[u],4)}")
            for s in seq: a(s)
    for t in range(32):
        p, j = t >> 2, t & 3
        if j == 0:
            if p == 4:
                for jj in range(4):
                    a(f"v_add_u32 v{VL[jj]}, 0xc000, v{VL[jj]}")
            a(f"s_waitcnt vmcnt({7*(7-p)+4})" + (" lgkmcnt(0)" if p == 0 else ""))
            a("s_barrier")
        reads(t)
        if t > 0:
            a("s_waitcnt lgkmcnt(6)")
            mfma(t - 1)
    a("s_waitcnt lgkmcnt(0)")
    mfma(31)
    a.c("---- epilogue: row statistics")
    a(f"""
    v_and_b32 v63, 3, v{LANE}
    v_cmp_eq_u32 s[46:47], 1, v63
    v_cmp_eq_u32 s[48:49], 2, v63
    v_cmp_eq_u32 s[50:51], 3, v63
    v_add_f32 v{SX[0]}, v{SX[0]}, v{SX[1]}
    v_add_f32 v{SXX[0]}, v{SXX[0]}, v{SXX[1]}
    v_add_f32 v{SXX[0]+1}, v{SXX[0]+1}, v{SXX[1]+1}
    v_add_f32 v{SXX[0]+2}, v{SXX[0]+2}, v{SXX[1]+2}
    v_add_f32 v{SXX[0]+3}, v{SXX[0]+3}, v{SXX[1]+3}
    v_cndmask_b32 v{SXX[0]}, v{SXX[0]}, v{SXX[0]+1}, s[46:47]
    v_cndmask_b32 v{SXX[0]}, v{SXX[0]}, v{SXX[0]+2}, s[48:49]
    v_cndmask_b32 v{SXX[0]}, v{SXX[0]}, v{SXX[0]+3}, s[50:51]
    v_and_b32 v3, 31, v{LANE}
    v_lshlrev_b32 v3, 2, v3
    v_permlane32_swap_b32 v{SX[0]}, v{SXX[0]}
    v_add_u32 v4, 0x10000, v3
    s_nop 0
    v_add_f32 v{SX[0]}, v{SX[0]}, v{SXX[0]}
    ds_add_f32 v4, v{CS[0]} offset:{LDS_CS-65536}
    v_mov_b32 v{SXX[0]}, v{SX[0]}
    ds_add_f32 v4, v{CS[1]} offset:{LDS_CS-65536+128}
    ds_add_f32 v4, v{CS[2]} offset:{LDS_CS-65536+256}
    v_permlane32_swap_b32 v{SX[0]}, v{SXX[0]}
    s_lshl_b32 s33, s28, 8
    v_add_u32 v5, s33, v4
    v_mul_f32 v{SX[0]}, {f32hex(1/512)}, v{SX[0]}
    v_mul_f32 v{SXX[0]}, {f32hex(1/512)}, v{SXX[0]}
    v_fma_f32 v{SXX[0]}, -v{SX[0]}, v{SX[0]}, v{SXX[0]}
    v_max_f32 v{SXX[0]}, 0, v{SXX[0]}
    v_add_f32 v{SXX[0]}, {f32hex(1e-5)}, v{SXX[0]}
    v_rsq_f32 v6, v{SXX[0]}
    v_lshlrev_b32 v62, 4, v59
    v_add_u32 v62, 0x10000, v62
    v_mul_f32 v7, v{SX[0]}, v6
    v_sub_f32 v7, 0, v7
    """)
    a.c("v6 = a = rstd, v7 = b = -mean*rstd ; publish per-token (a,b) for the V tile (wave private)")
    a(f"""
    ds_write_b32 v5, v6 offset:{LDS_AB-65536}
    ds_write_b32 v5, v7 offset:{LDS_AB-65536+128}
    v_add_u32 v63, s33, v62
    s_waitcnt lgkmcnt(0)
    s_barrier
    """)
    for g in range(4):
        a(f"ds_read_b128 {vr(64+4*g,4)}, v62 offset:{LDS_CS-65536+32*g}")
    for g in range(4):
        a(f"ds_read_b128 {vr(80+4*g,4)}, v62 offset:{LDS_CS-65536+128+32*g}")
    for g in range(4):
        a(f"ds_read_b128 {vr(96+4*g,4)}, v63 offset:{LDS_AB-65536+32*g}")
    for g in range(4):
        a(f"ds_read_b128 {vr(112+4*g,4)}, v63 offset:{LDS_AB-65536+128+32*g}")
    a(f"ds_read_b32 v128, v4 offset:{LDS_CS-65536+256}")
    a(f"""
    v_mul_f32 v8, {f32hex(QSCALE)}, v6
    v_mul_f32 v9, {f32hex(QSCALE)}, v7
    v_mov_b32 v10, 0
    v_mov_b32 v11, 0
    v_mov_b32 v12, 0
    v_mov_b32 v13, 0
    v_mov_b32 v14, 0
    """)
    a.c("store offsets: Q: tok*32+h*16 ; K: swap23(tok)*32+h*16 ; V: headsel*65536 + h*256 + swap23(d)*16")
    a(f"""
    v_and_b32 v3, 31, v{LANE}
    v_lshlrev_b32 v15, 5, v3
    v_lshl_add_u32 v15, v59, 4, v15
    v_and_b32 v16, 0x13, v3
    v_bfe_u32 v17, v3, 2, 1
    v_lshl_add_u32 v16, v17, 3, v16
    v_bfe_u32 v17, v3, 3, 1
    v_lshl_add_u32 v16, v17, 2, v16
    v_lshlrev_b32 v18, 5, v16
    v_lshl_add_u32 v18, v59, 4, v18
    v_and_b32 v19, 15, v16
    v_lshlrev_b32 v19, 4, v19
    v_lshl_add_u32 v19, v59, 8, v19
    v_lshrrev_b32 v17, 4, v16
    v_lshl_add_u32 v19, v17, 16, v19
    s_lshl_b32 s33, s32, 17
    s_lshl_b32 s34, s31, 12
    s_add_u32 s33, s33, s34
    s_lshl_b32 s34, s28, 10
    s_add_u32 s33, s33, s34
    s_add_u32 s34, s33, 0x10000
    s_add_u32 s52, s33, {WS_K:#x}
    s_add_u32 s53, s34, {WS_K:#x}
    s_add_u32 s54, s33, {WS_V:#x}
    """)
    def qk_epi(acc, cs, va, vb, n0, n1, pk, wait):
        a(f"s_waitcnt lgkmcnt({wait})")
        for i in range(16):
            a(f"v_mul_f32 v{cs+i}, v{cs+i}, v{vb}")
        for i in range(16):
            a(f"v_fmac_f32 v{cs+i}, v{acc+i}, v{va}")
        for i in range(8):
            a(f"v_cvt_pk_bf16_f32 v{pk+i}, v{cs+2*i}, v{cs+2*i+1}")
            a(f"v_fmac_f32 v{n0 if i < 4 else n1}, v{cs+2*i}, v{cs+2*i}")
            a(f"v_fmac_f32 v{n0 if i < 4 else n1}, v{cs+2*i+1}, v{cs+2*i+1}")
    qk_epi(AQ, 64, 8, 9, 10, 11, 132, 13)
    a(f"buffer_store_dwordx4 v[132:135], v15, s[24:27], s33 offen")
    a(f"buffer_store_dwordx4 v[136:139], v15, s[24:27], s34 offen")
    qk_epi(AK, 80, 6, 7, 12, 13, 140, 9)
    a(f"buffer_store_dwordx4 v[140:143], v18, s[24:27], s52 offen")
    a(f"buffer_store_dwordx4 v[144:147], v18, s[24:27], s53 offen")
    a("s_waitcnt lgkmcnt(0)")
    for i in range(16):
        a(f"v_mul_f32 v{112+i}, v{112+i}, v128")
    for i in range(16):
        a(f"v_fmac_f32 v{112+i}, v{AV+i}, v{96+i}")
    for i in range(8):
        a(f"v_cvt_pk_bf16_f32 v{148+i}, v{112+2*i}, v{112+2*i+1}")
        a(f"v_max3_f32 v14, |v{112+2*i}|, |v{112+2*i+1}|, v14")
    a(f"buffer_store_dwordx4 v[148:151], v19, s[24:27], s54 offen")
    a(f"buffer_store_dwordx4 v[152:155], v19, s[24:27], s54 offen offset:512")
    a.c("norm maxima: v10/v11 (q halves of heads A,B), v12/v13 (k), v14 (|v|)")
    a(f"""
    v_permlane32_swap_b32 v10, v11
    v_permlane32_swap_b32 v12, v13
    s_lshl_b32 s35, s43, 10
    v_add_f32 v20, v10, v11
    v_add_f32 v21, v12, v13
    v_mov_b32 v22, v14
    s_add_u32 s35, s35, {WS_WOT:#x}
    v_lshlrev_b32 v3, 4, v{LANE}
    """)
    for dpp in ("row_shr:1 row_mask:0xf bank_mask:0xf", "row_shr:2 row_mask:0xf bank_mask:0xf", "row_shr:4 row_mask:0xf bank_mask:0xf",
                "row_shr:8 row_mask:0xf bank_mask:0xf", "row_bcast:15 row_mask:0xa bank_mask:0xf", "row_bcast:31 row_mask:0xc bank_mask:0xf"):
        for r in (20, 21, 22):
            a(f"v_max_u32_dpp v{r}, v{r}, v{r} {dpp}")
    a.c("WoT piece store, norm store (lane 63), rowsum zeroing (threads < 24)")
    a(f"""
    s_lshl_b32 s44, s44, 3
    s_add_u32 s35, s35, s44
    s_waitcnt vmcnt(6)
    v_lshl_or_b32 v{WO}, v252, 16, v{WO}
    v_lshl_or_b32 v{WO+1}, v253, 16, v{WO+1}
    buffer_store_dwordx2 {vr(WO,2)}, v3, s[24:27], s35 offen
    s_lshl_b32 s33, s32, 10
    s_lshl_b32 s34, s31, 6
    s_add_u32 s33, s33, s34
    s_lshl_b32 s34, s28, 4
    s_add_u32 s33, s33, s34
    s_add_u32 s33, s33, {WS_NRM:#x}
    v_mov_b32 v23, 0
    v_mov_b32 v3, 0
    s_mov_b32 s34, 0
    s_mov_b32 s35, 0x80000000
    s_mov_b64 exec, s[34:35]
    buffer_store_dwordx4 v[20:23], v3, s[24:27], s33 offen
    s_mov_b64 exec, -1
    s_mul_i32 s33, s2, 96
    s_add_u32 s33, s33, {WS_RS:#x}
    v_lshlrev_b32 v4, 2, v0
    v_mov_b32 v5, 0
    v_cmp_gt_u32 vcc, 24, v0
    s_and_saveexec_b64 s[34:35], vcc
    s_cbranch_execz {name}_end
    buffer_store_dword v5, v4, s[24:27], s33 offen
    {name}_end:
    s_endpgm
    """)
    return descriptor(name, 256)
```

```python
from asmlib import *
from layout import *

K2_LDS = 24 * 2304 + 1024

def gen_k2(a, name):
    S = [16, 32, 48, 64]
    O = [80, 96, 112, 128]
    Q = [144, 148, 152, 156]
    KB = [160, 164, 168, 172]
    VB = [176, 184, 192, 200]
    IDX = 208
    VKQ = 4; VV = 5; LANE = 2
    MX = [209, 210, 211, 212]
    kernel_head(a, name)
    a(f"""
    s_cmp_ge_u32 s2, 256
    s_cbranch_scc1 {name}_end
    s_load_dwordx2 s[10:11], s[0:1], 80
    v_lshrrev_b32 v1, 6, v0
    v_and_b32 v{LANE}, 63, v0
    s_and_b32 s29, s2, 7
    v_readfirstlane_b32 s28, v1
    s_lshr_b32 s30, s2, 3
    s_lshl_b32 s31, s29, 2
    s_lshr_b32 s33, s30, 3
    s_add_u32 s31, s31, s33
    s_and_b32 s32, s30, 7
    v_and_b32 v3, 31, v{LANE}
    v_lshrrev_b32 v6, 5, v{LANE}
    v_lshlrev_b32 v{VKQ}, 5, v3
    v_lshl_add_u32 v{VKQ}, v6, 4, v{VKQ}
    v_and_b32 v{VV}, 15, v{LANE}
    v_lshlrev_b32 v{VV}, 4, v{VV}
    v_lshl_add_u32 v{VV}, v6, 8, v{VV}
    v_lshlrev_b32 v7, 4, v{LANE}
    s_and_b32 s34, s28, 1
    s_lshr_b32 s35, s28, 1
    """)
    a.c("s28=wave s31=head s32=qblock s34=qg s35=kq")
    a(f"""
    s_lshl_b32 s40, s31, 16
    s_lshl_b32 s33, s32, 13
    s_add_u32 s41, s40, s33
    s_lshl_b32 s33, s34, 12
    s_add_u32 s41, s41, s33
    s_lshl_b32 s33, s35, 14
    s_add_u32 s42, s40, s33
    s_add_u32 s43, s42, {WS_V:#x}
    s_add_u32 s42, s42, {WS_K:#x}
    s_lshr_b32 s44, s31, 1
    s_lshl_b32 s44, s44, 10
    s_add_u32 s44, s44, {WS_NRM:#x}
    s_mov_b32 s46, 0x0000ffff
    s_mov_b32 s47, 0x0000ffff
    v_mov_b32 v{IDX}, 0xdddddddd
    """)
    for b in range(4):
        for r in range(0, 8, 2):
            a(f"v_mov_b64 {vr(VB[b]+r,2)}, s[48:49]" if False else f"v_mov_b32 v{VB[b]+r}, 0x3f803f80\nv_mov_b32 v{VB[b]+r+1}, 0x3f803f80")
    a("s_waitcnt lgkmcnt(0)")
    srd(a, 24, 10, WS_BYTES)
    def kv_load(b):
        a(f"buffer_load_dwordx4 {vr(KB[b],4)}, v{VKQ}, s[24:27], s42 offen")
        a("s_mov_b64 exec, s[46:47]")
        a(f"buffer_load_dwordx4 {vr(VB[b],4)}, v{VV}, s[24:27], s43 offen")
        a(f"buffer_load_dwordx4 {vr(VB[b]+4,4)}, v{VV}, s[24:27], s43 offen offset:512")
        a("s_mov_b64 exec, -1")
        a("s_add_u32 s42, s42, 1024")
        a("s_add_u32 s43, s43, 1024")
    a(f"buffer_load_dwordx4 v[8:11], v7, s[24:27], s44 offen")
    for qt in range(4):
        a(f"buffer_load_dwordx4 {vr(Q[qt],4)}, v{VKQ}, s[24:27], s41 offen offset:{qt*1024}")
    for b in range(3):
        kv_load(b)
    for qt in range(4):
        for r in range(0, 16, 2):
            a(f"v_mov_b64 {vr(O[qt]+r,2)}, 0")
    a.c("safety check of the zero stand-in: max|q|^2 * max|k|^2 <= 50^2 and max|v| <= 2^60, else true-max path")
    a("s_waitcnt vmcnt(13)")
    for dpp in ("row_shr:1 row_mask:0xf bank_mask:0xf", "row_shr:2 row_mask:0xf bank_mask:0xf", "row_shr:4 row_mask:0xf bank_mask:0xf",
                "row_shr:8 row_mask:0xf bank_mask:0xf", "row_bcast:15 row_mask:0xa bank_mask:0xf", "row_bcast:31 row_mask:0xc bank_mask:0xf"):
        for r in (8, 9, 10):
            a(f"v_max_u32_dpp v{r}, v{r}, v{r} {dpp}")
    a(f"""
    v_mul_f32 v8, v8, v9
    s_nop 0
    v_readlane_b32 s50, v8, 63
    v_readlane_b32 s51, v10, 63
    s_mov_b32 s52, 4
    s_cmp_gt_u32 s50, {f32hex(2500.0)}
    s_cbranch_scc1 {name}_slow
    s_cmp_gt_u32 s51, {f32hex(2.0**60)}
    s_cbranch_scc1 {name}_slow
    s_waitcnt vmcnt(6)
    v_mfma_f32_32x32x16_bf16 {vr(S[0],16)}, {vr(KB[0],4)}, {vr(Q[0],4)}, 0
    """)
    for r in range(0, 16, 2):
        a(f"v_mov_b64 {vr(S[3]+r,2)}, 0")
    a("s_nop 4")
    a(".p2align 6")
    a.label(f"{name}_loop")
    for kb in range(4):
        for qt in range(4):
            nq = (qt + 1) & 3; nkb = kb if qt < 3 else (kb + 1) & 3
            pq = (qt - 1) & 3; pkb = kb if qt > 0 else (kb - 1) & 3
            if qt == 3:
                a("s_waitcnt vmcnt(6)")
            a(f"v_mfma_f32_32x32x16_bf16 {vr(S[nq],16)}, {vr(KB[nkb],4)}, {vr(Q[nq],4)}, 0")
            for i in range(16):
                if i == 5:
                    a(f"v_smfmac_f32_32x32x32_bf16 {vr(O[pq],16)}, {vr(VB[pkb],4)}, {vr(S[pq],8)}, v{IDX}")
                if i == 10:
                    a(f"v_smfmac_f32_32x32x32_bf16 {vr(O[pq],16)}, {vr(VB[pkb]+4,4)}, {vr(S[pq]+8,8)}, v{IDX}")
                a(f"v_exp_f32 v{S[qt]+i}, v{S[qt]+i}")
            if qt == 0:
                kv_load((kb + 3) & 3)
    a(f"""
    s_sub_u32 s52, s52, 1
    s_cmp_lg_u32 s52, 0
    s_cbranch_scc1 {name}_loop
    s_nop 1
    v_smfmac_f32_32x32x32_bf16 {vr(O[3],16)}, {vr(VB[3],4)}, {vr(S[3],8)}, v{IDX}
    v_smfmac_f32_32x32x32_bf16 {vr(O[3],16)}, {vr(VB[3]+4,4)}, {vr(S[3]+8,8)}, v{IDX}
    """)
    a.label(f"{name}_combine")
    a.c("combine the 4 key-quarter partials through LDS; wave (qg,kq) finalises q-tile kq")
    a(f"""
    s_mul_i32 s53, s34, {4*3*2304}
    v_lshlrev_b32 v8, 2, v{LANE}
    s_nop 7
    """)
    for d in range(4):
        a(f"""
        s_cmp_eq_u32 s35, {d}
        s_cbranch_scc1 {name}_w{d}
        s_cmp_gt_u32 s35, {d}
        s_cselect_b32 s54, 1, 0
        s_sub_u32 s54, s35, s54
        s_mul_i32 s54, s54, 2304
        s_add_u32 s54, s54, s53
        v_add_u32 v9, s54, v7
        v_add_u32 v10, s54, v8
        ds_write_b128 v9, {vr(O[d],4)} offset:{d*3*2304}
        ds_write_b128 v9, {vr(O[d]+4,4)} offset:{d*3*2304+1024}
        ds_write_b32 v10, v{O[d]+8} offset:{d*3*2304+2048}
        s_branch {name}_x{d}
        {name}_w{d}:
        """)
        for r in range(0, 8, 2):
            a(f"v_mov_b64 {vr(S[0]+r,2)}, {vr(O[d]+r,2)}")
        a(f"v_mov_b32 v{S[0]+8}, v{O[d]+8}")
        a.label(f"{name}_x{d}")
    a(f"""
    s_mul_i32 s54, s35, {3*2304}
    s_add_u32 s54, s54, s53
    v_add_u32 v9, s54, v7
    v_add_u32 v10, s54, v8
    s_waitcnt lgkmcnt(0)
    s_barrier
    """)
    for si in range(3):
        b = 32 + 12 * si
        a(f"ds_read_b128 {vr(b,4)}, v9 offset:{si*2304}")
        a(f"ds_read_b128 {vr(b+4,4)}, v9 offset:{si*2304+1024}")
        a(f"ds_read_b32 v{b+8}, v10 offset:{si*2304+2048}")
    a(f"""
    s_lshl_b32 s33, s35, 10
    s_add_u32 s41, s41, s33
    s_add_u32 s41, s41, {WS_O:#x}
    """)
    for si in range(3):
        b = 32 + 12 * si
        a(f"s_waitcnt lgkmcnt({6-3*si})")
        for r in range(9):
            a(f"v_add_f32 v{S[0]+r}, v{S[0]+r}, v{b+r}")
    a(f"v_rcp_f32 v{S[0]+8}, v{S[0]+8}")
    a("s_nop 0")
    for r in range(8):
        a(f"v_mul_f32 v{S[0]+r}, v{S[0]+r}, v{S[0]+8}")
    for r in range(4):
        a(f"v_cvt_pk_bf16_f32 v{12+r}, v{S[0]+2*r}, v{S[0]+2*r+1}")
    a(f"""
    buffer_store_dwordx4 v[12:15], v{VKQ}, s[24:27], s41 offen
    {name}_end:
    s_endpgm
    """)
    a.label(f"{name}_slow")
    a.c("pass 1: true row maxima over this wave's keys")
    a(f"""
    s_waitcnt vmcnt(0)
    s_sub_u32 s42, s42, 3072
    s_sub_u32 s43, s43, 3072
    s_mov_b32 s55, s42
    s_mov_b32 s52, 16
    """)
    for qt in range(4):
        a(f"v_mov_b32 v{MX[qt]}, 0xff800000")
    a.label(f"{name}_s1")
    a(f"buffer_load_dwordx4 {vr(KB[0],4)}, v{VKQ}, s[24:27], s55 offen")
    a("s_add_u32 s55, s55, 1024")
    a("s_waitcnt vmcnt(0)")
    for qt in range(4):
        a(f"v_mfma_f32_32x32x16_bf16 {vr(S[qt],16)}, {vr(KB[0],4)}, {vr(Q[qt],4)}, 0")
    a("s_nop 15")
    for qt in range(4):
        for i in range(0, 16, 2):
            a(f"v_max3_f32 v{MX[qt]}, v{S[qt]+i}, v{S[qt]+i+1}, v{MX[qt]}")
    a(f"""
    s_sub_u32 s52, s52, 1
    s_cmp_lg_u32 s52, 0
    s_cbranch_scc1 {name}_s1
    """)
    a.c("exchange maxima across halves and the 4 key-quarter waves: LDS [wave][qt][64 lanes]")
    a(f"""
    s_lshl_b32 s53, s28, 10
    v_lshlrev_b32 v8, 2, v{LANE}
    v_add_u32 v9, s53, v8
    """)
    for qt in range(4):
        a(f"ds_write_b32 v9, v{MX[qt]} offset:{qt*256}")
    a(f"""
    s_lshl_b32 s53, s34, 10
    v_lshlrev_b32 v8, 2, v3
    v_add_u32 v9, s53, v8
    s_waitcnt lgkmcnt(0)
    s_barrier
    """)
    for qt in range(4):
        for kq in range(4):
            a(f"ds_read2_b32 {vr(S[0]+2*kq,2)}, v9 offset0:{(kq*2048+qt*256)//4 if (kq*2048+qt*256)//4 < 224 else 0} offset1:{((kq*2048+qt*256)//4+32) if (kq*2048+qt*256)//4 < 224 else 0}"
              if False else f"ds_read_b32 v{S[0]+2*kq}, v9 offset:{kq*2048+qt*256}\nds_read_b32 v{S[0]+2*kq+1}, v9 offset:{kq*2048+qt*256+128}")
        a("s_waitcnt lgkmcnt(0)")
        a(f"v_max3_f32 v{MX[qt]}, v{S[0]}, v{S[0]+1}, v{S[0]+2}")
        a(f"v_max3_f32 v{MX[qt]}, v{S[0]+3}, v{S[0]+4}, v{MX[qt]}")
        a(f"v_max3_f32 v{MX[qt]}, v{S[0]+5}, v{S[0]+6}, v{MX[qt]}")
        a(f"v_max_f32 v{MX[qt]}, v{S[0]+7}, v{MX[qt]}")
    a(f"""
    s_barrier
    s_mov_b32 s52, 16
    """)
    a.label(f"{name}_s2")
    kv_load(0)
    a("s_waitcnt vmcnt(0)")
    for qt in range(4):
        a(f"v_mfma_f32_32x32x16_bf16 {vr(S[qt],16)}, {vr(KB[0],4)}, {vr(Q[qt],4)}, 0")
    a("s_nop 15")
    for qt in range(4):
        for i in range(16):
            a(f"v_sub_f32 v{S[qt]+i}, v{S[qt]+i}, v{MX[qt]}")
        for i in range(16):
            a(f"v_exp_f32 v{S[qt]+i}, v{S[qt]+i}")
        a("s_nop 1")
        a(f"v_smfmac_f32_32x32x32_bf16 {vr(O[qt],16)}, {vr(VB[0],4)}, {vr(S[qt],8)}, v{IDX}")
        a(f"v_smfmac_f32_32x32x32_bf16 {vr(O[qt],16)}, {vr(VB[0]+4,4)}, {vr(S[qt]+8,8)}, v{IDX}")
    a(f"""
    s_nop 7
    s_sub_u32 s52, s52, 1
    s_cmp_lg_u32 s52, 0
    s_cbranch_scc1 {name}_s2
    s_branch {name}_combine
    """)
    return descriptor(name, 216)
```

```python
from asmlib import *
from layout import *

K3_LDS = 12 * 4096

def gen_k3(a, name):
    A = 64
    B = 128
    ACC = [192, 208, 224, 240]
    LANE = 2
    kernel_head(a, name)
    a(f"""
    s_cmp_ge_u32 s2, 256
    s_cbranch_scc1 {name}_end
    s_load_dwordx2 s[4:5], s[0:1], 0
    s_load_dwordx2 s[6:7], s[0:1], 32
    s_load_dwordx2 s[10:11], s[0:1], 80
    v_lshrrev_b32 v1, 6, v0
    v_and_b32 v{LANE}, 63, v0
    s_and_b32 s29, s2, 7
    v_readfirstlane_b32 s28, v1
    s_lshr_b32 s30, s2, 3
    s_lshl_b32 s31, s29, 2
    s_lshr_b32 s33, s30, 3
    s_add_u32 s31, s31, s33
    s_and_b32 s32, s30, 7
    v_and_b32 v3, 31, v{LANE}
    v_lshrrev_b32 v6, 5, v{LANE}
    v_lshlrev_b32 v4, 5, v3
    v_lshl_add_u32 v4, v6, 4, v4
    v_lshlrev_b32 v7, 4, v{LANE}
    """)
    a.c("s28=wave s31=rowblock(64 tok) s32=colblock(64 cols); wave handles k-steps 8w..8w+7")
    a(f"""
    s_lshl_b32 s40, s28, 17
    s_lshl_b32 s33, s32, 11
    s_add_u32 s40, s40, s33
    s_add_u32 s40, s40, {WS_WOT:#x}
    s_lshl_b32 s41, s28, 19
    s_lshl_b32 s33, s31, 11
    s_add_u32 s41, s41, s33
    s_add_u32 s41, s41, {WS_O:#x}
    s_and_b32 s34, s28, 1
    s_lshr_b32 s35, s28, 1
    v_lshlrev_b32 v5, 10, v3
    v_lshl_add_u32 v5, v6, 5, v5
    s_lshl_b32 s42, s31, 16
    s_lshl_b32 s33, s35, 15
    s_add_u32 s42, s42, s33
    s_lshl_b32 s43, s32, 7
    s_lshl_b32 s33, s34, 6
    s_add_u32 s43, s43, s33
    s_add_u32 s42, s42, s43
    v_lshlrev_b32 v8, 5, v6
    s_waitcnt lgkmcnt(0)
    """)
    srd(a, 24, 10, WS_BYTES)
    for ks in range(8):
        a(f"buffer_load_dwordx4 {vr(A+8*ks,4)}, v7, s[24:27], s40 offen")
        a(f"buffer_load_dwordx4 {vr(B+8*ks,4)}, v4, s[24:27], s41 offen")
        a(f"buffer_load_dwordx4 {vr(A+8*ks+4,4)}, v7, s[24:27], s40 offen offset:1024")
        a(f"buffer_load_dwordx4 {vr(B+8*ks+4,4)}, v4, s[24:27], s41 offen offset:1024")
        if ks < 7:
            a("s_add_u32 s40, s40, 0x4000")
            a("s_add_u32 s41, s41, 0x10000")
    srd(a, 12, 4, 2048 * 512 * 2)
    srd(a, 16, 6, 1024)
    a(f"""
    buffer_load_dwordx4 v[16:19], v5, s[12:15], s42 offen
    buffer_load_dwordx4 v[20:23], v5, s[12:15], s42 offen offset:16
    buffer_load_dwordx4 v[24:27], v8, s[16:19], s43 offen
    buffer_load_dwordx4 v[28:31], v8, s[16:19], s43 offen offset:16
    """)
    for ks in range(8):
        a(f"s_waitcnt vmcnt({4*(7-ks)+4+2})")
        c = (lambda r: "0") if ks == 0 else (lambda r: vr(r, 16))
        a(f"v_mfma_f32_32x32x16_bf16 {vr(ACC[0],16)}, {vr(A+8*ks,4)}, {vr(B+8*ks,4)}, {c(ACC[0])}")
        a(f"s_waitcnt vmcnt({4*(7-ks)+4})")
        a(f"v_mfma_f32_32x32x16_bf16 {vr(ACC[1],16)}, {vr(A+8*ks+4,4)}, {vr(B+8*ks,4)}, {c(ACC[1])}")
        a(f"v_mfma_f32_32x32x16_bf16 {vr(ACC[2],16)}, {vr(A+8*ks,4)}, {vr(B+8*ks+4,4)}, {c(ACC[2])}")
        a(f"v_mfma_f32_32x32x16_bf16 {vr(ACC[3],16)}, {vr(A+8*ks+4,4)}, {vr(B+8*ks+4,4)}, {c(ACC[3])}")
    a.c("split-K reduction: wave w finalises tile w (= tt*2+ct)")
    a("s_nop 7")
    R = 32
    for d in range(4):
        a(f"""
        s_cmp_eq_u32 s28, {d}
        s_cbranch_scc1 {name}_w{d}
        s_cmp_gt_u32 s28, {d}
        s_cselect_b32 s54, 1, 0
        s_sub_u32 s54, s28, s54
        s_lshl_b32 s54, s54, 12
        v_add_u32 v9, s54, v7
        """)
        for g in range(4):
            a(f"ds_write_b128 v9, {vr(ACC[d]+4*g,4)} offset:{d*3*4096+g*1024}")
        a(f"s_branch {name}_x{d}")
        a.label(f"{name}_w{d}")
        if d == 3:
            a("s_nop 3")
        for r in range(0, 16, 2):
            a(f"v_mov_b64 {vr(R+r,2)}, {vr(ACC[d]+r,2)}")
        a.label(f"{name}_x{d}")
    a(f"""
    s_mul_i32 s54, s28, {3*4096}
    v_add_u32 v9, s54, v7
    s_waitcnt lgkmcnt(0)
    s_barrier
    """)
    for si in range(3):
        for g in range(4):
            a(f"ds_read_b128 {vr(64+16*si+4*g,4)}, v9 offset:{si*4096+g*1024}")
    a.c("unpack x while the partials arrive")
    a("s_waitcnt vmcnt(0)")
    a(f"s_mov_b32 s55, 0xffff0000")
    for i in range(8):
        a(f"v_lshlrev_b32 v{112+2*i}, 16, v{16+i}")
        a(f"v_and_b32 v{112+2*i+1}, s55, v{16+i}")
    for i in range(16):
        a(f"v_add_f32 v{R+i}, v{R+i}, v{112+i}")
    for si in range(3):
        a(f"s_waitcnt lgkmcnt({8-4*si})")
        for i in range(16):
            a(f"v_add_f32 v{R+i}, v{R+i}, v{64+16*si+i}")
    H = 48
    for i in range(8):
        a(f"v_cvt_pk_bf16_f32 v{H+i}, v{R+2*i}, v{R+2*i+1}")
    a(f"""
    s_add_u32 s42, s42, {WS_H:#x}
    v_mov_b32 v56, 0x3f803f80
    buffer_store_dwordx4 {vr(H,4)}, v5, s[24:27], s42 offen
    buffer_store_dwordx4 {vr(H+4,4)}, v5, s[24:27], s42 offen offset:16
    v_dot2_f32_bf16 v10, v{H}, v56, 0
    v_dot2_f32_bf16 v11, v{H}, v{H}, 0
    v_dot2_f32_bf16 v12, v{H}, v24, 0
    """)
    for i in range(1, 8):
        a(f"v_dot2_f32_bf16 v10, v{H+i}, v56, v10")
        a(f"v_dot2_f32_bf16 v11, v{H+i}, v{H+i}, v11")
        a(f"v_dot2_f32_bf16 v12, v{H+i}, v{24+i}, v12")
    a.c("rowsum atomics: lanes 0-31 -> S1, lanes 32-63 -> S2 ; S3 from both halves")
    a(f"""
    s_lshl_b32 s44, s31, 8
    s_lshl_b32 s33, s35, 7
    s_add_u32 s44, s44, s33
    s_add_u32 s44, s44, {WS_RS:#x}
    v_lshlrev_b32 v13, 2, v3
    v_lshl_add_u32 v14, v6, 13, v13
    s_add_u32 s45, s44, 0x4000
    v_permlane32_swap_b32 v10, v11
    s_nop 1
    v_add_f32 v10, v10, v11
    buffer_atomic_add_f32 v12, v13, s[24:27], s45 offen
    buffer_atomic_add_f32 v10, v14, s[24:27], s44 offen
    {name}_end:
    s_endpgm
    """)
    return descriptor(name, 256)
```

```python
from asmlib import *
from layout import *

K4_LDS = 1024
K5_LDS = 1024
LOG2E = 1.4426950408889634
DPP_MAX = ("row_shr:1 row_mask:0xf bank_mask:0xf", "row_shr:2 row_mask:0xf bank_mask:0xf", "row_shr:4 row_mask:0xf bank_mask:0xf",
           "row_shr:8 row_mask:0xf bank_mask:0xf", "row_bcast:15 row_mask:0xa bank_mask:0xf", "row_bcast:31 row_mask:0xc bank_mask:0xf")

def rnd_bf16(a, d, s):
    a(f"v_cvt_pk_bf16_f32 v{d}, v{s}, v{s}")
    a(f"v_and_b32 v{d}, 0xffff0000, v{d}")

def gen_k4(a, name):
    LANE = 2
    S1 = 16; S2 = 24; S3 = 32
    HR = 40
    WG = 48; WU = 56
    WD = 64
    ACC = 88
    kernel_head(a, name)
    a(f"""
    s_cmp_ge_u32 s2, 256
    s_cbranch_scc1 {name}_end
    s_load_dwordx4 s[4:7], s[0:1], 32
    s_load_dwordx4 s[8:11], s[0:1], 48
    s_load_dwordx2 s[12:13], s[0:1], 64
    s_load_dwordx2 s[14:15], s[0:1], 80
    v_lshrrev_b32 v1, 6, v0
    v_and_b32 v{LANE}, 63, v0
    s_and_b32 s29, s2, 7
    v_readfirstlane_b32 s28, v1
    s_lshr_b32 s30, s2, 3
    s_mul_i32 s31, s29, 28
    s_add_u32 s31, s31, s30
    v_lshlrev_b32 v3, 5, v0
    v_lshlrev_b32 v4, 4, v{LANE}
    v_lshrrev_b32 v5, 5, v0
    v_lshlrev_b32 v5, 2, v5
    v_mul_u32_u24 v6, 7168, v0
    v_lshlrev_b32 v7, 2, v0
    s_lshl_b32 s40, s2, 13
    s_lshl_b32 s41, s2, 5
    s_add_u32 s41, s41, {WS_RS:#x}
    s_add_u32 s42, s40, {WS_H:#x}
    s_lshl_b32 s43, s31, 4
    s_lshl_b32 s44, s31, 13
    s_mov_b32 s45, {WS_RS:#x}
    s_mov_b32 s46, {WS_RS+8192:#x}
    s_mov_b32 s47, {WS_RS+16384:#x}
    s_waitcnt lgkmcnt(0)
    """)
    srd(a, 24, 14, WS_BYTES)
    srd(a, 16, 4, 1024)
    a(f"""
    buffer_load_dwordx4 {vr(S1,4)}, v3, s[24:27], s45 offen
    buffer_load_dwordx4 {vr(S1+4,4)}, v3, s[24:27], s45 offen offset:16
    buffer_load_dwordx4 {vr(S2,4)}, v3, s[24:27], s46 offen
    buffer_load_dwordx4 {vr(S2+4,4)}, v3, s[24:27], s46 offen offset:16
    buffer_load_dwordx4 {vr(S3,4)}, v3, s[24:27], s47 offen
    buffer_load_dwordx4 {vr(S3+4,4)}, v3, s[24:27], s47 offen offset:16
    buffer_load_dwordx4 v[8:11], v4, s[16:19], 0 offen
    """)
    srd(a, 20, 6, 512 * 1792 * 2)
    srd(a, 32, 8, 512 * 1792 * 2)
    srd(a, 36, 10, 512 * 1792 * 2)
    a.c("workgroups past the 224 FFN slices get a zero-size weight descriptor (loads return 0)")
    a(f"""
    s_cmp_lt_u32 s30, 28
    s_cselect_b32 s22, s22, 0
    s_cselect_b32 s34, s34, 0
    s_cselect_b32 s38, s38, 0
    buffer_load_dwordx4 {vr(WG,4)}, v6, s[20:23], s43 offen
    buffer_load_dwordx4 {vr(WG+4,4)}, v6, s[20:23], s43 offen offset:3584
    buffer_load_dwordx4 {vr(WU,4)}, v6, s[32:35], s43 offen
    buffer_load_dwordx4 {vr(WU+4,4)}, v6, s[32:35], s43 offen offset:3584
    """)
    for f in range(4):
        a(f"buffer_load_dword v{WD+f}, v7, s[36:39], s44 offen offset:{f*1024}")
    a("s_add_u32 s44, s44, 4096")
    for f in range(4):
        a(f"buffer_load_dword v{WD+4+f}, v7, s[36:39], s44 offen offset:{f*1024}")
    a(f"""
    buffer_load_dwordx4 {vr(HR,4)}, v3, s[24:27], s42 offen
    buffer_load_dwordx4 {vr(HR+4,4)}, v3, s[24:27], s42 offen offset:16
    buffer_load_dword v12, v5, s[24:27], s41 offen
    s_add_u32 s41, s41, 8192
    buffer_load_dword v13, v5, s[24:27], s41 offen
    v_mov_b32 v14, 0x3f803f80
    s_waitcnt vmcnt(16)
    v_dot2_f32_bf16 v15, v8, v14, 0
    v_dot2_f32_bf16 v15, v9, v14, v15
    v_dot2_f32_bf16 v15, v10, v14, v15
    v_dot2_f32_bf16 v15, v11, v14, v15
    s_mov_b32 s48, {f32hex(1/512)}
    s_mov_b32 s49, {f32hex(1e-5)}
    """)
    a.c("per-row mean / variance while the w_r sum reduces")
    dpp_adds = [f"v_add_f32_dpp v15, v15, v15 row_ror:8 row_mask:0xf bank_mask:0xf", f"v_add_f32_dpp v15, v15, v15 row_ror:4 row_mask:0xf bank_mask:0xf",
                f"v_add_f32_dpp v15, v15, v15 row_ror:2 row_mask:0xf bank_mask:0xf", f"v_add_f32_dpp v15, v15, v15 row_ror:1 row_mask:0xf bank_mask:0xf"]
    for i in range(8):
        a(f"v_mul_f32 v{S1+i}, s48, v{S1+i}")
        a(f"v_mul_f32 v{S2+i}, s48, v{S2+i}")
        a(f"v_fma_f32 v{S2+i}, -v{S1+i}, v{S1+i}, v{S2+i}")
        if i < 4:
            a(dpp_adds[i])
        a(f"v_max_f32 v{S2+i}, 0, v{S2+i}")
        a(f"v_add_f32 v{S2+i}, s49, v{S2+i}")
        a(f"v_rsq_f32 v{S2+i}, v{S2+i}")
    a(f"""
    v_readlane_b32 s50, v15, 0
    v_readlane_b32 s51, v15, 16
    v_readlane_b32 s52, v15, 32
    v_readlane_b32 s53, v15, 48
    v_mov_b32 v15, s50
    v_add_f32 v15, s51, v15
    v_add_f32 v15, s52, v15
    v_add_f32 v15, s53, v15
    v_lshlrev_b32 v8, 3, v0
    v_sub_u32 v8, 2047, v8
    v_mov_b32 v9, 0
    """)
    a.c("r = (S3 - mean*Wsum)*rstd -> ordered key (top 21 bits) | (2047-row)")
    for i in range(8):
        a(f"v_fma_f32 v{S3+i}, -v{S1+i}, v15, v{S3+i}")
        a(f"v_mul_f32 v{S3+i}, v{S3+i}, v{S2+i}")
        a(f"v_ashrrev_i32 v10, 31, v{S3+i}")
        a(f"v_cmp_o_f32 vcc, v{S3+i}, v{S3+i}")
        a(f"v_or_b32 v10, 0x80000000, v10")
        a(f"v_xor_b32 v10, v10, v{S3+i}")
        a(f"v_and_b32 v10, 0xfffff800, v10")
        a(f"v_cndmask_b32 v10, 0, v10, vcc")
        a(f"v_subrev_u32 v11, {i}, v8")
        a(f"v_or_b32 v10, v10, v11")
        a(f"v_max_u32 v9, v9, v10")
    a("s_nop 1")
    for dpp in DPP_MAX:
        a(f"v_max_u32_dpp v9, v9, v9 {dpp}")
        a("s_nop 1")
    a(f"""
    v_readlane_b32 s54, v9, 63
    s_lshl_b32 s55, s28, 2
    v_mov_b32 v10, s55
    v_mov_b32 v9, s54
    ds_write_b32 v10, v9
    v_mov_b32 v10, 0
    s_waitcnt lgkmcnt(0)
    s_barrier
    ds_read_b128 v[8:11], v10
    s_waitcnt lgkmcnt(0)
    v_max_u32 v8, v8, v9
    v_max3_u32 v8, v8, v10, v11
    v_and_b32 v8, 0x7ff, v8
    v_sub_u32 v8, 2047, v8
    s_nop 0
    v_readfirstlane_b32 s56, v8
    s_nop 3
    s_lshl_b32 s57, s56, 10
    s_add_u32 s57, s57, {WS_H:#x}
    s_lshl_b32 s58, s56, 2
    s_add_u32 s58, s58, {WS_RS:#x}
    s_add_u32 s59, s58, 8192
    s_add_u32 s60, s58, 16384
    v_mov_b32 v11, 0
    buffer_load_dword v8, v7, s[24:27], s57 offen
    buffer_load_dword v9, v11, s[24:27], s58 offen
    buffer_load_dword v10, v11, s[24:27], s59 offen
    buffer_load_dword v11, v11, s[24:27], s60 offen
    """)
    a.c("meanwhile: own output rows  out = h*(1+rstd) - mean*rstd")
    srd(a, 16, 12, 2048 * 512 * 2)
    a(f"""
    s_waitcnt vmcnt(4)
    v_mul_f32 v12, s48, v12
    v_mul_f32 v13, s48, v13
    v_fma_f32 v13, -v12, v12, v13
    v_max_f32 v13, 0, v13
    v_add_f32 v13, s49, v13
    v_rsq_f32 v13, v13
    s_mov_b32 s61, 0xffff0000
    v_mul_f32 v12, v12, v13
    v_add_f32 v13, 1.0, v13
    """)
    for i in range(8):
        a(f"v_lshlrev_b32 v{S1+2*i}, 16, v{HR+i}")
        a(f"v_and_b32 v{S1+2*i+1}, s61, v{HR+i}")
    for i in range(16):
        a(f"v_fma_f32 v{S1+i}, v{S1+i}, v13, -v12")
    for i in range(8):
        a(f"v_cvt_pk_bf16_f32 v{HR+i}, v{S1+2*i}, v{S1+2*i+1}")
    a(f"""
    buffer_store_dwordx4 {vr(HR,4)}, v3, s[16:19], s40 offen
    buffer_store_dwordx4 {vr(HR+4,4)}, v3, s[16:19], s40 offen offset:16
    s_cmp_ge_u32 s30, 28
    s_cbranch_scc1 {name}_end
    """)
    for f in range(8):
        a(f"v_lshlrev_b32 v{72+2*f}, 16, v{WD+f}")
        a(f"v_and_b32 v{72+2*f+1}, s61, v{WD+f}")
    a.c("selected row: x_sel = bf16((h-mean)*rstd)")
    a(f"""
    s_waitcnt vmcnt(2)
    v_mul_f32 v9, s48, v9
    v_mul_f32 v10, s48, v10
    v_fma_f32 v10, -v9, v9, v10
    v_max_f32 v10, 0, v10
    v_add_f32 v10, s49, v10
    v_rsq_f32 v10, v10
    v_lshlrev_b32 v12, 16, v8
    v_and_b32 v13, s61, v8
    v_sub_f32 v12, v12, v9
    v_sub_f32 v13, v13, v9
    v_mul_f32 v12, v12, v10
    v_mul_f32 v13, v13, v10
    v_cvt_pk_bf16_f32 v14, v12, v13
    v_fma_f32 v11, -v9, v15, v11
    v_and_b32 v16, 0xffff, v14
    v_lshlrev_b32 v17, 16, v14
    v_lshrrev_b32 v18, 16, v14
    v_and_b32 v19, s61, v14
    v_mul_f32 v11, v11, v10
    """)
    for m, W in enumerate((WG, WU)):
        for p in range(4):
            a(f"v_dot2_f32_bf16 v{ACC+8*m+2*p}, v{W+p}, v16, 0")
            a(f"v_dot2_f32_bf16 v{ACC+8*m+2*p+1}, v{W+p}, v17, 0")
    for m, W in enumerate((WG, WU)):
        for p in range(4):
            a(f"v_dot2_f32_bf16 v{ACC+8*m+2*p}, v{W+4+p}, v18, v{ACC+8*m+2*p}")
            a(f"v_dot2_f32_bf16 v{ACC+8*m+2*p+1}, v{W+4+p}, v19, v{ACC+8*m+2*p+1}")
    a.c("workgroup 0 publishes the selection for the last kernel: [t] = (h pair, xn pair); idx and r")
    a(f"""
    s_cmp_lg_u32 s2, 0
    s_cbranch_scc1 {name}_nosel
    v_mov_b32 v20, v8
    v_mov_b32 v21, v14
    v_lshlrev_b32 v22, 3, v0
    s_mov_b32 s62, {WS_SEL:#x}
    buffer_store_dwordx2 v[20:21], v22, s[24:27], s62 offen
    v_mov_b32 v24, s56
    v_mov_b32 v25, v11
    v_mov_b32 v22, 0
    buffer_store_dwordx2 v[24:25], v22, s[24:27], s62 offen offset:2048
    {name}_nosel:
    s_nop 2
    """)
    for i in range(8):
        a(f"v_permlane32_swap_b32 v{ACC+i}, v{ACC+8+i}")
    for i in range(8):
        a(f"v_add_f32 v{ACC+i}, v{ACC+i}, v{ACC+8+i}")
    for i in range(4):
        a(f"v_permlane16_swap_b32 v{ACC+i}, v{ACC+4+i}")
    for i in range(4):
        a(f"v_add_f32 v{ACC+i}, v{ACC+i}, v{ACC+4+i}")
    for ror in (8, 4, 2, 1):
        for i in range(4):
            a(f"v_add_f32_dpp v{ACC+i}, v{ACC+i}, v{ACC+i} row_ror:{ror} row_mask:0xf bank_mask:0xf")
    a.c("row g (= lane>>4) now holds value 8*(g>>1)+4*(g&1)+i in reg i ; LDS [value][wave]")
    a(f"""
    v_lshrrev_b32 v20, 4, v{LANE}
    v_lshlrev_b32 v20, 6, v20
    v_add_u32 v20, s55, v20
    v_and_b32 v21, 7, v{LANE}
    v_lshlrev_b32 v21, 4, v21
    ds_write_b32 v20, v{ACC} offset:256
    ds_write_b32 v20, v{ACC+1} offset:272
    ds_write_b32 v20, v{ACC+2} offset:288
    ds_write_b32 v20, v{ACC+3} offset:304
    s_waitcnt lgkmcnt(0)
    s_barrier
    ds_read_b128 v[24:27], v21 offset:256
    ds_read_b128 v[28:31], v21 offset:384
    s_waitcnt lgkmcnt(0)
    v_add_f32 v24, v24, v25
    v_add_f32 v28, v28, v29
    v_add_f32 v26, v26, v27
    v_add_f32 v30, v30, v31
    v_add_f32 v24, v24, v26
    v_add_f32 v28, v28, v30
    """)
    rnd_bf16(a, 24, 24)
    rnd_bf16(a, 28, 28)
    a(f"""
    v_mul_f32 v25, {f32hex(-LOG2E)}, v24
    v_exp_f32 v25, v25
    s_nop 0
    v_add_f32 v25, 1.0, v25
    v_rcp_f32 v25, v25
    s_nop 0
    v_mul_f32 v24, v24, v25
    """)
    rnd_bf16(a, 24, 24)
    a("v_mul_f32 v24, v24, v28")
    rnd_bf16(a, 24, 24)
    a("s_nop 0")
    for f in range(8):
        a(f"v_readlane_b32 s{64+f}, v24, {f}")
    a(f"""
    v_lshrrev_b32 v20, 2, v0
    v_mul_u32_u24 v20, {224*32}, v20
    v_and_b32 v21, 3, v0
    v_lshl_add_u32 v20, v21, 3, v20
    v_mul_f32 v26, s64, v72
    v_mul_f32 v27, s64, v73
    """)
    for f in range(1, 8):
        a(f"v_fmac_f32 v26, s{64+f}, v{72+2*f}")
        a(f"v_fmac_f32 v27, s{64+f}, v{72+2*f+1}")
    a(f"""
    s_lshl_b32 s62, s31, 5
    s_add_u32 s62, s62, {WS_YP:#x}
    buffer_store_dwordx2 v[26:27], v20, s[24:27], s62 offen
    {name}_end:
    s_endpgm
    """)
    return descriptor(name, 104)

def gen_k5(a, name):
    LANE = 2
    kernel_head(a, name)
    a(f"""
    s_cmp_ge_u32 s2, 64
    s_cbranch_scc1 {name}_end
    s_load_dwordx2 s[12:13], s[0:1], 64
    s_load_dwordx2 s[14:15], s[0:1], 80
    v_lshrrev_b32 v1, 6, v0
    v_and_b32 v{LANE}, 63, v0
    v_lshlrev_b32 v3, 5, v0
    v_readfirstlane_b32 s28, v1
    s_mul_i32 s40, s2, {224*32}
    s_add_u32 s40, s40, {WS_YP:#x}
    v_mov_b32 v4, 0x7fffffff
    v_cmp_gt_u32 vcc, 224, v0
    v_and_b32 v5, 7, v{LANE}
    v_cndmask_b32 v3, v4, v3, vcc
    v_lshrrev_b32 v6, 1, v5
    v_lshlrev_b32 v6, 3, v6
    s_lshl_b32 s41, s2, 5
    s_add_u32 s41, s41, {WS_SEL:#x}
    s_mov_b32 s42, {WS_SEL+2048:#x}
    v_mov_b32 v7, 0
    s_waitcnt lgkmcnt(0)
    """)
    srd(a, 24, 14, WS_BYTES)
    a(f"""
    buffer_load_dwordx4 v[8:11], v3, s[24:27], s40 offen
    buffer_load_dwordx4 v[12:15], v3, s[24:27], s40 offen offset:16
    buffer_load_dwordx2 v[16:17], v6, s[24:27], s41 offen
    buffer_load_dwordx2 v[18:19], v7, s[24:27], s42 offen
    """)
    srd(a, 16, 12, 2048 * 512 * 2)
    a("s_lshl_b32 s55, s28, 2")
    a("s_waitcnt vmcnt(2)")
    for i in range(4):
        a(f"v_permlane32_swap_b32 v{8+i}, v{12+i}")
    for i in range(4):
        a(f"v_add_f32 v{8+i}, v{8+i}, v{12+i}")
    a("s_nop 0")
    for i in range(2):
        a(f"v_permlane16_swap_b32 v{8+i}, v{10+i}")
    a("s_nop 0")
    for i in range(2):
        a(f"v_add_f32 v{8+i}, v{8+i}, v{10+i}")
    for ror in (8, 4, 2, 1):
        a("s_nop 0")
        for i in range(2):
            a(f"v_add_f32_dpp v{8+i}, v{8+i}, v{8+i} row_ror:{ror} row_mask:0xf bank_mask:0xf")
    a.c("row g holds value 4*(g>>1)+2*(g&1)+i in reg i ; LDS [value][wave]")
    a(f"""
    v_lshrrev_b32 v20, 4, v{LANE}
    v_lshlrev_b32 v20, 5, v20
    v_add_u32 v20, s55, v20
    v_lshlrev_b32 v21, 4, v5
    ds_write_b32 v20, v8
    ds_write_b32 v20, v9 offset:16
    s_waitcnt lgkmcnt(0)
    s_barrier
    s_cmp_lg_u32 s28, 0
    s_cbranch_scc1 {name}_end
    ds_read_b128 v[24:27], v21
    s_waitcnt vmcnt(0)
    """)
    a.c("gate = bf16(sigmoid(bf16(r)))")
    rnd_bf16(a, 19, 19)
    a(f"""
    v_mul_f32 v19, {f32hex(-LOG2E)}, v19
    v_exp_f32 v19, v19
    v_and_b32 v22, 1, v{LANE}
    v_add_f32 v19, 1.0, v19
    v_rcp_f32 v19, v19
    v_cmp_eq_u32 vcc, 1, v22
    v_lshlrev_b32 v28, 16, v16
    v_and_b32 v29, 0xffff0000, v16
    v_lshlrev_b32 v30, 16, v17
    v_and_b32 v31, 0xffff0000, v17
    v_cndmask_b32 v28, v28, v29, vcc
    v_cndmask_b32 v30, v30, v31, vcc
    """)
    rnd_bf16(a, 19, 19)
    a(f"""
    s_waitcnt lgkmcnt(0)
    v_add_f32 v24, v24, v25
    v_add_f32 v26, v26, v27
    v_add_f32 v24, v24, v26
    """)
    rnd_bf16(a, 24, 24)
    a("v_mul_f32 v24, v24, v19")
    rnd_bf16(a, 24, 24)
    a("v_add_f32 v24, v24, v30")
    rnd_bf16(a, 24, 24)
    a(f"""
    v_add_f32 v24, v24, v28
    v_cvt_pk_bf16_f32 v24, v24, v24
    v_and_b32 v18, 0x7ff, v18
    v_lshlrev_b32 v18, 10, v18
    v_lshl_add_u32 v18, v5, 1, v18
    s_lshl_b32 s43, s2, 4
    s_mov_b64 exec, 0xff
    buffer_store_short v24, v18, s[16:19], s43 offen
    {name}_end:
    s_endpgm
    """)
    return descriptor(name, 32)
```

```python
WS_Q   = 0x000000
WS_K   = 0x200000
WS_V   = 0x400000
WS_O   = 0x600000
WS_H   = 0x800000
WS_WOT = 0xA00000
WS_NRM = 0xA80000
WS_RS  = 0xA90000
WS_YP  = 0xAA0000
WS_SEL = 0xB20000
WS_FW  = 0xD00000
WS_BYTES = 0x1100000
QSCALE = 0.25 * 1.4426950408889634
import struct
def f32hex(x):
    return "0x%08x" % struct.unpack("<I", struct.pack("<f", x))[0]
```

```python
import sys
sys.path.insert(0, "gen")
from asmlib import *
from layout import *
from k1 import *
from k2 import *
from k3 import *
from k45 import *
ref = open("sequential_preLN__mha_block__moe_arch_mod__prompt.s.ref").read()
hdr = "".join(l + "\n" for l in ref.split("\n") if l.startswith(";") and "@launch" not in l and "Override" not in l and "grid=ceil" not in l)
a = Asm()
descs = []
kers = [("k1_qkv_kernel", gen_k1, 256, 512, K1_LDS), ("k2_attn_kernel", gen_k2, 256, 512, K2_LDS), ("k3_proj_kernel", gen_k3, 256, 256, K3_LDS),
        ("k4_route_kernel", gen_k4, 256, 256, K4_LDS), ("k5_final_kernel", gen_k5, 64, 256, K5_LDS)]
for (n, g, grid, blk, lds) in kers:
    hdr += f"; @launch kernel={n} grid=({grid},1,1) block=({blk},1,1) lds={lds}\n"
    descs.append(g(a, n))
txt = hdr + '.amdgcn_target "amdgcn-amd-amdhsa--gfx950"\n.text\n' + a.text() + "code_end:\n    s_endpgm\n" + '.section .rodata,"a"\n' + "".join(descs)
out = sys.argv[1] if len(sys.argv) > 1 else "sequential_preLN__mha_block__moe_arch_mod__prompt.s"
open(out, "w").write(txt)
print("wrote", out, len(txt))
```

```python
class Asm:
    def __init__(self):
        self.lines = []
    def __call__(self, s):
        for l in s.strip("\n").split("\n"):
            l = l.strip()
            if not l:
                continue
            if l.endswith(":") or l.startswith("."):
                self.lines.append(l)
            else:
                self.lines.append("    " + l)
    def c(self, s):
        self.lines.append("    ; " + s)
    def label(self, s):
        self.lines.append(s + ":")
    def text(self):
        return "\n".join(self.lines) + "\n"

def vr(b, n=1):
    return f"v{b}" if n == 1 else f"v[{b}:{b+n-1}]"
def sr(b, n=1):
    return f"s{b}" if n == 1 else f"s[{b}:{b+n-1}]"

def srd(a, d, base, nbytes):
    a(f"s_mov_b32 s{d}, s{base}")
    a(f"s_and_b32 s{d+1}, s{base+1}, 0xffff")
    a(f"s_mov_b32 s{d+2}, {nbytes:#x}")
    a(f"s_mov_b32 s{d+3}, 0x00020000")

def kernel_head(a, name):
    a(f".globl {name}")
    a(".p2align 8")
    a(f".type {name},@function")
    a(f"{name}:")

def descriptor(name, vgpr, sgpr=100, accum=None):
    accum = accum if accum is not None else (vgpr + 3) // 4 * 4
    return f""".p2align 6
.amdhsa_kernel {name}
  .amdhsa_next_free_vgpr {vgpr}
  .amdhsa_next_free_sgpr {sgpr}
  .amdhsa_accum_offset {accum}
  .amdhsa_group_segment_fixed_size 0
  .amdhsa_kernarg_size 88
  .amdhsa_user_sgpr_count 2
  .amdhsa_user_sgpr_kernarg_segment_ptr 1
  .amdhsa_system_sgpr_workgroup_id_x 1
.end_amdhsa_kernel
"""

import os
STAMPS = bool(int(os.environ.get("STAMPS", "0")))
WS_STAMP = 0xC00000
def stamp(a, i):
    if STAMPS:
        a(f"{'s_memtime' if os.environ.get('STAMPCYC') else 's_memrealtime'} s[{72+2*i}:{73+2*i}]")
        a("s_waitcnt lgkmcnt(0)")
def stamp_flush(a, kidx, n, wave_sgpr=28, srd_base=24, vt=1):
    if not STAMPS:
        return
    a("s_mov_b64 exec, -1")
    stamp(a, n)
    a(f"s_lshl_b32 s70, s2, 9")
    a(f"s_lshl_b32 s71, s{wave_sgpr}, 6")
    a(f"s_add_u32 s70, s70, s71")
    a(f"s_add_u32 s70, s70, {WS_STAMP + kidx * 256 * 512:#x}")
    a(f"v_mov_b32 v{vt}, 0")
    for i in range(n + 1):
        a(f"v_mov_b32 v0, s{72+2*i}")
        a(f"buffer_store_dword v0, v{vt}, s[{srd_base}:{srd_base+3}], s70 offen offset:{4*i}")
        a("s_nop 1")

DPP_MAX = ("row_shr:1 row_mask:0xf bank_mask:0xf", "row_shr:2 row_mask:0xf bank_mask:0xf", "row_shr:4 row_mask:0xf bank_mask:0xf",
           "row_shr:8 row_mask:0xf bank_mask:0xf", "row_bcast:15 row_mask:0xa bank_mask:0xf", "row_bcast:31 row_mask:0xc bank_mask:0xf")
```

```python
from asmlib import *
from layout import *

SLOT = 28672
NSLOT = 5
LDS_P = SLOT * NSLOT
LDS_AB = LDS_P + 1536
LDS_CS = LDS_AB + 1024
K1_LDS = LDS_CS + 1024
HI = 0x20000

def gen_k1(a, name):
    LANE = 2; HALF = 3
    VL = [8, 9, 10, 11]
    VXR = [12, 13, 14, 15]
    VD = 16
    ONES = 18
    kernel_head(a, name)
    a(f"""
    s_cmp_ge_u32 s2, 256
    s_cbranch_scc1 {name}_end
    s_load_dwordx4 s[4:7], s[0:1], 0
    s_load_dwordx2 s[10:11], s[0:1], 80
    s_getpc_b64 s[36:37]
    {name}_pc:
    """)
    stamp(a, 0)
    a(f"""
    v_lshrrev_b32 v1, 6, v0
    v_and_b32 v{LANE}, 63, v0
    s_and_b32 s29, s2, 7
    v_readfirstlane_b32 s28, v1
    s_lshr_b32 s30, s2, 3
    s_lshr_b32 s31, s29, 1
    s_lshl_b32 s31, s31, 2
    s_and_b32 s33, s30, 3
    s_add_u32 s31, s31, s33
    s_lshl_b32 s49, s33, 1
    s_and_b32 s32, s29, 1
    s_lshl_b32 s32, s32, 3
    s_lshr_b32 s33, s30, 2
    s_add_u32 s32, s32, s33
    s_add_u32 s49, s49, s33
    s_and_b32 s45, s28, 3
    s_mov_b32 s14, {2048*512*2:#x}
    s_mov_b32 s15, 0x00020000
    """)
    a.c("s28=wave s45=token tile s31=mb s32=nb s49=phase rotation (first phase is unique inside the XCD group)")
    a(f"""
    s_cmp_ge_u32 s28, 4
    s_cbranch_scc1 {name}_B
    """)

    def dma(role, p):
        so = (p % NSLOT) * SLOT
        a(f"s_add_u32 s43, s49, {p}")
        a(f"s_and_b32 s43, s43, 7")
        if role == "A":
            a(f"s_lshl_b32 s43, s43, 7")
            a(f"s_add_u32 s43, s43, s40")
            for g in range(4):
                a(f"s_add_u32 m0, s42, {so + g * 1024}")
                a(f"s_add_u32 s41, s43, {g * 8192}")
                a(f"buffer_load_dwordx4 v{VD + (g & 1)}, s[12:15], s41 offen lds")
        else:
            a(f"s_mul_i32 s43, s43, {4*49152}")
            a(f"s_add_u32 m0, s42, {so}")
            a(f"s_add_u32 s41, s43, s40")
            for u in range(3):
                a(f"buffer_load_dwordx4 v{VD}, s[12:15], s41 offen offset:{u*1024} lds")

    def common_setup():
        a.c("code prefetch, read addresses (rotated k-step order)")
        a(f"""
        s_and_b32 s37, s37, 0xffff
        s_mov_b32 s38, code_end-{name}_pc
        s_mov_b32 s39, 0x00020000
        s_lshl_b32 s33, s30, 3
        s_add_u32 s33, s33, s28
        s_and_b32 s33, s33, 31
        s_lshl_b32 s33, s33, 10
        v_lshlrev_b32 v4, 4, v{LANE}
        buffer_load_dwordx4 v[20:23], v4, s[36:39], s33 offen
        v_lshrrev_b32 v{HALF}, 5, v{LANE}
        v_lshlrev_b32 v4, 9, v{HALF}
        v_bfe_u32 v5, v{LANE}, 2, 2
        v_lshl_add_u32 v4, v5, 6, v4
        v_bfe_u32 v5, v{LANE}, 4, 1
        v_lshl_add_u32 v4, v5, 5, v4
        v_and_b32 v5, 3, v{LANE}
        v_lshl_add_u32 v4, v5, 3, v4
        v_and_b32 v5, 31, v{LANE}
        v_bfe_u32 v6, v{LANE}, 1, 3
        v_xor_b32 v6, v6, v{HALF}
        v_lshlrev_b32 v5, 7, v5
        s_lshl_b32 s33, s45, 12
        s_add_u32 s33, s33, 12288
        v_add_u32 v5, s33, v5
        """)
        for j in range(4):
            a(f"""
            s_add_u32 s33, s45, {j}
            s_and_b32 s33, s33, 3
            s_mul_i32 s35, s33, 3072
            s_lshl_b32 s34, s33, 1
            v_add_u32 v{VL[j]}, s35, v4
            v_xor_b32 v7, s34, v6
            v_lshl_add_u32 v{VXR[j]}, v7, 4, v5
            """)
        a(f"""
        v_mov_b32 v{ONES}, 0x3f803f80
        v_mov_b32 v{ONES+1}, 0x3f803f80
        """)
        srd(a, 24, 10, WS_BYTES)
        a.c("epilogue addresses: v112=lane&31, v113=partial write addr, v114=ab own addr, v115=broadcast addr, v116=swap23(lane&31)")
        a(f"""
        v_and_b32 v112, 31, v{LANE}
        s_lshl_b32 s33, s45, 8
        v_lshlrev_b32 v114, 2, v112
        v_add_u32 v114, {HI:#x}, v114
        v_add_u32 v114, s33, v114
        v_lshlrev_b32 v115, 4, v{HALF}
        v_add_u32 v115, {HI:#x}, v115
        v_add_u32 v115, s33, v115
        v_and_b32 v116, 0x13, v112
        v_bfe_u32 v4, v112, 2, 1
        v_lshl_add_u32 v116, v4, 3, v116
        v_bfe_u32 v4, v112, 3, 1
        v_lshl_add_u32 v116, v4, 2, v116
        s_lshl_b32 s46, s32, 17
        s_lshl_b32 s34, s31, 12
        s_add_u32 s46, s46, s34
        s_lshl_b32 s34, s45, 10
        s_add_u32 s46, s46, s34
        s_lshl_b32 s48, s32, 10
        s_lshl_b32 s34, s31, 6
        s_add_u32 s48, s48, s34
        s_lshl_b32 s34, s45, 4
        s_add_u32 s48, s48, s34
        s_add_u32 s48, s48, {WS_NRM:#x}
        s_lshl_b32 s44, s45, 2
        s_add_u32 s44, s44, {HI:#x}
        """)

    def body(role):
        A_ = role == "A"
        nd = 4 if A_ else 3
        XFB = [24, 28]
        XF4 = [[24, 28, 32, 36], [40, 44, 48, 52]]
        WF = [56, 64] if A_ else [56, 60]
        ACC = [72, 88]
        CS = [104, 108]
        SX = [88, 92]; SXX = [96, 100]
        if A_:
            a.c("A waves stage x: lane -> row l>>3 of an 8-row group, LDS chunk q=l&7 holds global chunk q^((row>>1)&7)")
            a(f"""
            v_lshrrev_b32 v4, 3, v{LANE}
            v_lshrrev_b32 v5, 4, v{LANE}
            v_and_b32 v6, 7, v{LANE}
            v_xor_b32 v5, v5, v6
            v_lshlrev_b32 v{VD}, 10, v4
            v_lshl_add_u32 v{VD}, v5, 4, v{VD}
            v_xor_b32 v{VD+1}, 64, v{VD}
            s_lshl_b32 s40, s31, 17
            s_lshl_b32 s33, s45, 15
            s_add_u32 s40, s40, s33
            s_lshl_b32 s42, s45, 12
            s_add_u32 s42, s42, 12288
            s_waitcnt lgkmcnt(0)
            s_mov_b32 s12, s4
            s_and_b32 s13, s5, 0xffff
            """)
            first = 1
        else:
            a.c("B waves stage W k-step 4p+(w-4): lane -> k row l>>2, 16-byte piece l&3")
            a(f"""
            v_lshrrev_b32 v{VD}, 2, v{LANE}
            v_mul_u32_u24 v{VD}, 3072, v{VD}
            v_and_b32 v6, 3, v{LANE}
            v_lshl_add_u32 v{VD}, v6, 4, v{VD}
            s_mul_i32 s40, s45, 49152
            s_lshl_b32 s33, s32, 6
            s_add_u32 s40, s40, s33
            s_mul_i32 s42, s45, 3072
            s_mov_b32 s14, {512*1536*2:#x}
            s_waitcnt lgkmcnt(0)
            s_mov_b32 s12, s6
            s_and_b32 s13, s7, 0xffff
            """)
            first = 2
        stamp(a, 1)
        for p in range(first):
            dma(role, p)
        common_setup()
        stamp(a, 2)
        a.c("wait for the XCD-unique first requests, then stream the rest (L2 hits)")
        a("s_waitcnt vmcnt(0)")
        for p in range(first, NSLOT):
            dma(role, p)
        cur_base = [0]
        def rebase(p):
            so = (p % NSLOT) * SLOT
            want = (so // (2 * SLOT)) * 2 * SLOT
            if want != cur_base[0]:
                d = want - cur_base[0]
                for r in VL + VXR:
                    a(f"v_add_u32 v{r}, {d & 0xffffffff:#x}, v{r}")
                cur_base[0] = want
            return so - want
        def reads(t):
            p, j = t >> 2, t & 3
            off = rebase(p)
            xf = XFB[t & 1] if A_ else XF4[p & 1][j]
            a(f"ds_read_b128 {vr(xf,4)}, v{VXR[j]} offset:{off}")
            wf = WF[t & 1]
            for n, u in enumerate((0, 1) if A_ else (2,)):
                a(f"ds_read_b64_tr_b16 {vr(wf+4*n,2)}, v{VL[j]} offset:{off+u*1024}")
                a(f"ds_read_b64_tr_b16 {vr(wf+4*n+2,2)}, v{VL[j]} offset:{off+u*1024+256}")
        nrd = 5 if A_ else 3
        def mfma(t):
            p, j = t >> 2, t & 3
            wf = WF[t & 1]
            c = (lambda r: "0") if t == 0 else (lambda r: vr(r, 16))
            z = lambda cond, r: "0" if cond else vr(r, 4)
            if A_:
                xf = XFB[t & 1]
                a(f"v_mfma_f32_32x32x16_bf16 {vr(ACC[0],16)}, {vr(wf,4)}, {vr(xf,4)}, {c(ACC[0])}")
                a(f"v_mfma_f32_32x32x16_bf16 {vr(ACC[1],16)}, {vr(wf+4,4)}, {vr(xf,4)}, {c(ACC[1])}")
                if j == 0:
                    a(f"v_mfma_f32_4x4x4_16b_bf16 {vr(CS[0],4)}, {vr(ONES,2)}, {vr(wf,2)}, {z(p==0, CS[0])}")
                    a(f"v_mfma_f32_4x4x4_16b_bf16 {vr(CS[1],4)}, {vr(ONES,2)}, {vr(wf+4,2)}, {z(p==0, CS[1])}")
                    a("s_nop 0")
                    a(f"v_mfma_f32_4x4x4_16b_bf16 {vr(CS[0],4)}, {vr(ONES,2)}, {vr(wf+2,2)}, {vr(CS[0],4)}")
                    a(f"v_mfma_f32_4x4x4_16b_bf16 {vr(CS[1],4)}, {vr(ONES,2)}, {vr(wf+6,2)}, {vr(CS[1],4)}")
            else:
                xf = XF4[p & 1][j]
                if j == 3:
                    for q in range(8):
                        x2 = XF4[p & 1][q >> 1] + 2 * (q & 1)
                        zz = (p == 0 and q < 2)
                        a(f"v_mfma_f32_4x4x4_16b_bf16 {vr(SX[q&1],4)}, {vr(ONES,2)}, {vr(x2,2)}, {z(zz, SX[q&1])}")
                        a(f"v_mfma_f32_4x4x4_16b_bf16 {vr(SXX[q&1],4)}, {vr(x2,2)}, {vr(x2,2)}, {z(zz, SXX[q&1])}")
                a(f"v_mfma_f32_32x32x16_bf16 {vr(ACC[0],16)}, {vr(xf,4)}, {vr(wf,4)}, {c(ACC[0])}")
                if j == 0:
                    a(f"v_mfma_f32_4x4x4_16b_bf16 {vr(CS[0],4)}, {vr(ONES,2)}, {vr(wf,2)}, {z(p==0, CS[0])}")
                    a(f"v_mfma_f32_4x4x4_16b_bf16 {vr(CS[1],4)}, {vr(ONES,2)}, {vr(wf+2,2)}, {z(p==0, CS[1])}")
        issued = NSLOT
        for t in range(32):
            p, j = t >> 2, t & 3
            extra = 0
            if j == 0:
                if p >= first:
                    a(f"s_waitcnt vmcnt({(issued - 1 - p) * nd})")
                a("s_barrier")
                if p in (0, 1, 4, 7): stamp(a, {0: 3, 1: 4, 4: 5, 7: 6}[p])
                if p >= 2 and issued < 8:
                    dma(role, issued); issued += 1
            if t == 31:
                a.c("publish this wave's colsum partial: P[col][tile]")
                if A_:
                    a(f"""
                    v_permlane32_swap_b32 v{CS[0]}, v{CS[1]}
                    v_lshlrev_b32 v113, 4, v{LANE}
                    v_add_u32 v113, s44, v113
                    v_add_f32 v{CS[0]}, v{CS[0]}, v{CS[1]}
                    ds_write_b32 v113, v{CS[0]} offset:{LDS_P-HI}
                    """)
                else:
                    a(f"""
                    v_add_f32 v{CS[0]}, v{CS[0]}, v{CS[1]}
                    v_lshlrev_b32 v113, 4, v112
                    v_mov_b32 v{CS[1]}, v{CS[0]}
                    v_add_u32 v113, s44, v113
                    s_nop 0
                    v_permlane32_swap_b32 v{CS[0]}, v{CS[1]}
                    s_nop 0
                    v_add_f32 v{CS[0]}, v{CS[0]}, v{CS[1]}
                    ds_write_b32 v113, v{CS[0]} offset:{LDS_P-HI+1024}
                    """)
            reads(t)
            if t > 0:
                a(f"s_waitcnt lgkmcnt({nrd})")
                mfma(t - 1)
        a("s_waitcnt lgkmcnt(0)")
        mfma(31)
        stamp(a, 7)
        if A_:
            a(f"""
            v_lshlrev_b32 v10, 5, v112
            v_lshl_add_u32 v10, v{HALF}, 4, v10
            v_lshlrev_b32 v11, 5, v116
            v_lshl_add_u32 v11, v{HALF}, 4, v11
            v_lshlrev_b32 v113, 4, v{LANE}
            v_add_u32 v113, {HI:#x}, v113
            v_lshlrev_b32 v9, 2, v{LANE}
            v_add_u32 v9, {HI:#x}, v9
            v_add_u32 v9, s33, v9
            s_add_u32 s47, s46, 0x10000
            s_add_u32 s52, s46, {WS_K:#x}
            s_add_u32 s53, s47, {WS_K:#x}
            s_barrier
            ds_read_b128 v[4:7], v113 offset:{LDS_P-HI}
            ds_read_b32 v16, v114 offset:{LDS_AB-HI}
            ds_read_b32 v17, v114 offset:{LDS_AB-HI+128}
            v_mov_b64 v[12:13], 0
            v_mov_b64 v[14:15], 0
            v_mov_b64 v[20:21], 0
            v_mov_b64 v[22:23], 0
            s_waitcnt lgkmcnt(2)
            v_add_f32 v4, v4, v5
            v_add_f32 v6, v6, v7
            v_add_f32 v4, v4, v6
            ds_write_b32 v9, v4 offset:{LDS_CS-HI}
            s_waitcnt lgkmcnt(0)
            """)
            for g in range(4):
                a(f"ds_read_b128 {vr(24+4*g,4)}, v115 offset:{LDS_CS-HI+32*g}")
            for g in range(4):
                a(f"ds_read_b128 {vr(40+4*g,4)}, v115 offset:{LDS_CS-HI+128+32*g}")
            a(f"""
            v_mul_f32 v18, {f32hex(QSCALE)}, v16
            v_mul_f32 v19, {f32hex(QSCALE)}, v17
            """)
            for acc, ab in ((ACC[0], 18), (ACC[1], 16)):
                for i in range(0, 16, 2):
                    a(f"v_pk_mul_f32 {vr(acc+i,2)}, {vr(acc+i,2)}, {vr(ab,2)} op_sel_hi:[1,0]")
            def epi(acc, cs, ab, pk, wait):
                a(f"s_waitcnt lgkmcnt({wait})")
                for i in range(0, 16, 2):
                    a(f"v_pk_fma_f32 {vr(acc+i,2)}, {vr(cs+i,2)}, {vr(ab,2)}, {vr(acc+i,2)} op_sel:[0,1,0] op_sel_hi:[1,1,1]")
                for i in range(8):
                    a(f"v_cvt_pk_bf16_f32 v{pk+i}, v{acc+2*i}, v{acc+2*i+1}")
            epi(ACC[0], 24, 18, 56, 4)
            a(f"buffer_store_dwordx4 v[56:59], v10, s[24:27], s46 offen")
            a(f"buffer_store_dwordx4 v[60:63], v10, s[24:27], s47 offen")
            epi(ACC[1], 40, 16, 64, 0)
            a(f"buffer_store_dwordx4 v[64:67], v11, s[24:27], s52 offen")
            a(f"buffer_store_dwordx4 v[68:71], v11, s[24:27], s53 offen")
            for i in range(0, 8, 2):
                for acc, n in ((ACC[0], 12), (ACC[0] + 8, 14), (ACC[1], 20), (ACC[1] + 8, 22)):
                    a(f"v_pk_fma_f32 {vr(n,2)}, {vr(acc+i,2)}, {vr(acc+i,2)}, {vr(n,2)}")
            a(f"""
            v_add_f32 v12, v12, v13
            v_add_f32 v14, v14, v15
            v_add_f32 v20, v20, v21
            v_add_f32 v22, v22, v23
            s_mov_b32 s34, 0
            v_permlane32_swap_b32 v12, v14
            v_permlane32_swap_b32 v20, v22
            s_mov_b32 s35, 0x80000000
            v_mov_b32 v4, 0
            v_add_f32 v21, v20, v22
            v_add_f32 v20, v12, v14
            s_nop 0
            """)
            for dpp in DPP_MAX:
                for r in (21, 20):
                    a(f"v_max_u32_dpp v{r}, v{r}, v{r} {dpp}")
                a("s_nop 0")
            a(f"""
            s_mov_b64 exec, s[34:35]
            buffer_store_dwordx2 v[20:21], v4, s[24:27], s48 offen
            """)
        else:
            a(f"""
            v_and_b32 v9, 3, v{LANE}
            v_cmp_eq_u32 s[50:51], 1, v9
            v_cmp_eq_u32 s[52:53], 2, v9
            v_cmp_eq_u32 s[54:55], 3, v9
            v_add_f32 v{SX[0]}, v{SX[0]}, v{SX[1]}
            v_add_f32 v{SXX[0]}, v{SXX[0]}, v{SXX[1]}
            v_add_f32 v{SXX[0]+1}, v{SXX[0]+1}, v{SXX[1]+1}
            v_add_f32 v{SXX[0]+2}, v{SXX[0]+2}, v{SXX[1]+2}
            v_add_f32 v{SXX[0]+3}, v{SXX[0]+3}, v{SXX[1]+3}
            v_cndmask_b32 v{SXX[0]}, v{SXX[0]}, v{SXX[0]+1}, s[50:51]
            v_cndmask_b32 v{SXX[0]}, v{SXX[0]}, v{SXX[0]+2}, s[52:53]
            v_cndmask_b32 v{SXX[0]}, v{SXX[0]}, v{SXX[0]+3}, s[54:55]
            v_and_b32 v11, 15, v116
            v_lshlrev_b32 v11, 4, v11
            v_permlane32_swap_b32 v{SX[0]}, v{SXX[0]}
            v_lshl_add_u32 v11, v{HALF}, 8, v11
            v_lshrrev_b32 v9, 4, v116
            v_add_f32 v{SX[0]}, v{SX[0]}, v{SXX[0]}
            v_lshl_add_u32 v11, v9, 16, v11
            v_mov_b32 v{SXX[0]}, v{SX[0]}
            v_lshlrev_b32 v113, 4, v112
            v_add_u32 v113, {HI:#x}, v113
            v_permlane32_swap_b32 v{SX[0]}, v{SXX[0]}
            v_mov_b32 v14, 0
            s_add_u32 s46, s46, {WS_V:#x}
            v_mul_f32 v{SX[0]}, {f32hex(1/512)}, v{SX[0]}
            v_mul_f32 v{SXX[0]}, {f32hex(1/512)}, v{SXX[0]}
            v_fma_f32 v{SXX[0]}, -v{SX[0]}, v{SX[0]}, v{SXX[0]}
            v_max_f32 v{SXX[0]}, 0, v{SXX[0]}
            v_add_f32 v{SXX[0]}, {f32hex(1e-5)}, v{SXX[0]}
            v_rsq_f32 v12, v{SXX[0]}
            s_nop 0
            v_mul_f32 v13, v{SX[0]}, v12
            ds_write_b32 v114, v12 offset:{LDS_AB-HI}
            v_sub_f32 v13, 0, v13
            ds_write_b32 v114, v13 offset:{LDS_AB-HI+128}
            s_waitcnt lgkmcnt(0)
            s_barrier
            ds_read_b128 v[4:7], v113 offset:{LDS_P-HI+1024}
            """)
            for g in range(4):
                a(f"ds_read_b128 {vr(24+4*g,4)}, v115 offset:{LDS_AB-HI+32*g}")
            for g in range(4):
                a(f"ds_read_b128 {vr(40+4*g,4)}, v115 offset:{LDS_AB-HI+128+32*g}")
            a(f"""
            s_waitcnt lgkmcnt(4)
            v_add_f32 v4, v4, v5
            v_add_f32 v6, v6, v7
            v_add_f32 v4, v4, v6
            """)
            for i in range(0, 16, 2):
                a(f"v_pk_mul_f32 {vr(ACC[0]+i,2)}, {vr(ACC[0]+i,2)}, {vr(24+i,2)}")
            a("s_waitcnt lgkmcnt(0)")
            for i in range(0, 16, 2):
                a(f"v_pk_fma_f32 {vr(ACC[0]+i,2)}, {vr(40+i,2)}, v[4:5], {vr(ACC[0]+i,2)} op_sel_hi:[1,0,1]")
            for i in range(8):
                a(f"v_cvt_pk_bf16_f32 v{56+i}, v{ACC[0]+2*i}, v{ACC[0]+2*i+1}")
            a(f"buffer_store_dwordx4 v[56:59], v11, s[24:27], s46 offen")
            a(f"buffer_store_dwordx4 v[60:63], v11, s[24:27], s46 offen offset:512")
            for i in range(8):
                a(f"v_max3_f32 v14, |v{ACC[0]+2*i}|, |v{ACC[0]+2*i+1}|, v14")
            a(f"""
            s_mov_b32 s34, 0
            s_mov_b32 s35, 0x80000000
            v_mov_b32 v4, 0
            """)
            for dpp in DPP_MAX:
                a(f"v_max_u32_dpp v14, v14, v14 {dpp}")
                a("s_nop 1")
            a(f"""
            s_mov_b64 exec, s[34:35]
            buffer_store_dword v14, v4, s[24:27], s48 offen offset:8
            """)
        stamp_flush(a, 0, 8)
        a("s_endpgm")
    body("A")
    a.label(f"{name}_B")
    body("B")
    a(f"""
    {name}_end:
    s_endpgm
    """)
    return descriptor(name, 120)
```

```python
from asmlib import *
from layout import *

K2_LDS = 24 * 2304 + 1024

def gen_k2(a, name):
    S = [16, 32, 48, 64]
    O = [80, 96, 112, 128]
    Q = [144, 148, 152, 156]
    KB = [160, 164, 168, 172]
    VB = [176, 184, 192, 200]
    IDX = 208
    VKQ = 4; VV = 5; LANE = 2
    MX = [209, 210, 211, 212]
    kernel_head(a, name)
    a(f"""
    s_cmp_ge_u32 s2, 256
    s_cbranch_scc1 {name}_end
    s_load_dwordx2 s[10:11], s[0:1], 80
    s_load_dwordx2 s[8:9], s[0:1], 16
    s_load_dwordx4 s[4:7], s[0:1], 40
    s_load_dwordx2 s[12:13], s[0:1], 56
    """)
    stamp(a, 0)
    a(f"""
    v_lshrrev_b32 v1, 6, v0
    v_and_b32 v{LANE}, 63, v0
    s_and_b32 s29, s2, 7
    v_readfirstlane_b32 s28, v1
    s_lshr_b32 s30, s2, 3
    s_lshl_b32 s31, s29, 2
    s_lshr_b32 s33, s30, 3
    s_add_u32 s31, s31, s33
    s_and_b32 s32, s30, 7
    v_and_b32 v3, 31, v{LANE}
    v_lshrrev_b32 v6, 5, v{LANE}
    v_lshlrev_b32 v{VKQ}, 5, v3
    v_lshl_add_u32 v{VKQ}, v6, 4, v{VKQ}
    v_and_b32 v{VV}, 15, v{LANE}
    v_lshlrev_b32 v{VV}, 4, v{VV}
    v_lshl_add_u32 v{VV}, v6, 8, v{VV}
    v_lshlrev_b32 v7, 4, v{LANE}
    s_and_b32 s34, s28, 1
    s_lshr_b32 s35, s28, 1
    """)
    a.c("s28=wave s31=head s32=qblock s34=qg s35=kq")
    a(f"""
    s_lshl_b32 s40, s31, 16
    s_lshl_b32 s33, s32, 13
    s_add_u32 s41, s40, s33
    s_lshl_b32 s33, s34, 12
    s_add_u32 s41, s41, s33
    s_lshl_b32 s33, s35, 14
    s_add_u32 s42, s40, s33
    s_add_u32 s43, s42, {WS_V:#x}
    s_add_u32 s42, s42, {WS_K:#x}
    s_lshr_b32 s44, s31, 1
    s_lshl_b32 s44, s44, 10
    s_add_u32 s44, s44, {WS_NRM:#x}
    s_lshl_b32 s45, s32, 1
    s_add_u32 s45, s45, s34
    s_lshl_b32 s45, s45, 10
    s_setprio 3
    s_mov_b32 s46, 0x0000ffff
    s_mov_b32 s47, 0x0000ffff
    v_mov_b32 v{IDX}, 0xdddddddd
    """)
    a(f"""
    v_and_b32 v8, 27, v{LANE}
    v_mov_b32 v9, 0x3f803f80
    v_cmp_eq_u32 vcc, 16, v8
    s_nop 1
    v_cndmask_b32 v8, 0, v9, vcc
    v_cndmask_b32 v9, 0, v9, vcc
    """)
    for b in range(4):
        for r in range(0, 8, 2):
            a(f"v_mov_b64 {vr(VB[b]+r,2)}, v[8:9]")
    a("s_waitcnt lgkmcnt(0)")
    srd(a, 24, 10, WS_BYTES)
    def kv_load(b):
        a("s_add_u32 s48, s42, s45")
        a("s_add_u32 s49, s43, s45")
        a(f"buffer_load_dwordx4 {vr(KB[b],4)}, v{VKQ}, s[24:27], s48 offen")
        a("s_mov_b64 exec, s[46:47]")
        a(f"buffer_load_dwordx4 {vr(VB[b],4)}, v{VV}, s[24:27], s49 offen")
        a(f"buffer_load_dwordx4 {vr(VB[b]+4,4)}, v{VV}, s[24:27], s49 offen offset:512")
        a("s_mov_b64 exec, -1")
        a("s_add_u32 s45, s45, 1024")
        a("s_and_b32 s45, s45, 0x3fff")
    a(f"buffer_load_dwordx4 v[8:11], v7, s[24:27], s44 offen")
    for qt in range(4):
        a(f"buffer_load_dwordx4 {vr(Q[qt],4)}, v{VKQ}, s[24:27], s41 offen offset:{qt*1024}")
    for b in range(3):
        kv_load(b)
    for qt in range(4):
        for r in range(0, 16, 2):
            a(f"v_mov_b64 {vr(O[qt]+r,2)}, 0")
    a(f"""
    s_cmp_lt_u32 s28, 4
    s_cbranch_scc1 {name}_noside
    """)
    a.c("side jobs (waves 4-7): Wo^T fragments, gate/up slice re-layout, w_down touch, rowsum zeroing")
    srd(a, 16, 8, 512 * 512 * 2)
    srd(a, 56, 12, 512 * 1792 * 2)
    a(f"""
    s_and_b32 s61, s28, 3
    s_lshr_b32 s60, s61, 1
    s_cmp_eq_u32 s60, 0
    s_cselect_b32 s20, s4, s6
    s_cselect_b32 s21, s5, s7
    s_and_b32 s21, s21, 0xffff
    s_mov_b32 s22, {512*1792*2:#x}
    s_mov_b32 s23, 0x00020000
    s_lshl_b32 s62, s2, 1
    s_add_u32 s62, s62, s60
    s_lshr_b32 s63, s62, 4
    s_lshl_b32 s63, s63, 14
    s_and_b32 s33, s62, 15
    s_lshl_b32 s33, s33, 6
    s_add_u32 s63, s63, s33
    s_and_b32 s64, s28, 1
    s_lshl_b32 s33, s64, 12
    s_add_u32 s63, s63, s33
    v_lshlrev_b32 v12, 13, v6
    v_bfe_u32 v13, v{LANE}, 2, 1
    v_lshl_add_u32 v12, v13, 5, v12
    v_bfe_u32 v13, v{LANE}, 3, 2
    v_lshl_add_u32 v12, v13, 3, v12
    v_and_b32 v13, 3, v{LANE}
    v_lshl_add_u32 v12, v13, 1, v12
    buffer_load_ushort v16, v12, s[16:19], s63 offen
    buffer_load_ushort v18, v12, s[16:19], s63 offen offset:1024
    buffer_load_ushort v17, v12, s[16:19], s63 offen offset:2048
    buffer_load_ushort v19, v12, s[16:19], s63 offen offset:3072
    v_lshrrev_b32 v13, 3, v{LANE}
    v_and_b32 v15, 7, v{LANE}
    v_mul_u32_u24 v12, 3584, v13
    v_lshl_add_u32 v12, v15, 4, v12
    v_lshlrev_b32 v14, 14, v15
    v_lshl_add_u32 v14, v13, 4, v14
    s_lshr_b32 s65, s2, 2
    s_and_b32 s66, s2, 3
    s_mul_i32 s67, s65, {8*3584}
    s_mul_i32 s33, s66, 896
    s_add_u32 s67, s67, s33
    s_lshl_b32 s33, s64, 9
    s_add_u32 s67, s67, s33
    buffer_load_dwordx4 v[20:23], v12, s[20:23], s67 offen
    buffer_load_dwordx4 v[24:27], v12, s[20:23], s67 offen offset:128
    buffer_load_dwordx4 v[28:31], v12, s[20:23], s67 offen offset:256
    buffer_load_dwordx4 v[32:35], v12, s[20:23], s67 offen offset:384
    s_mul_i32 s67, s2, 7168
    s_lshl_b32 s33, s61, 11
    s_add_u32 s67, s67, s33
    buffer_load_dwordx4 v[36:39], v7, s[56:59], s67 offen
    buffer_load_dwordx4 v[36:39], v7, s[56:59], s67 offen offset:1024
    s_lshl_b32 s62, s62, 10
    s_lshl_b32 s33, s64, 3
    s_add_u32 s62, s62, s33
    s_add_u32 s62, s62, {WS_WOT:#x}
    s_mul_i32 s66, s66, {56*16384}
    s_lshl_b32 s33, s64, 19
    s_add_u32 s66, s66, s33
    s_lshl_b32 s33, s60, 13
    s_add_u32 s66, s66, s33
    s_lshl_b32 s33, s65, 7
    s_add_u32 s66, s66, s33
    s_add_u32 s66, s66, {WS_FW:#x}
    s_mul_i32 s67, s2, 96
    s_add_u32 s67, s67, {WS_RS:#x}
    v_and_b32 v13, 255, v0
    v_lshlrev_b32 v15, 2, v13
    v_mov_b32 v40, 0
    v_cmp_gt_u32 vcc, 24, v13
    s_and_saveexec_b64 s[68:69], vcc
    s_cbranch_execz {name}_nozero
    buffer_store_dword v40, v15, s[24:27], s67 offen
    {name}_nozero:
    s_mov_b64 exec, -1
    s_waitcnt vmcnt(0)
    v_lshl_or_b32 v16, v18, 16, v16
    v_lshl_or_b32 v17, v19, 16, v17
    buffer_store_dwordx2 v[16:17], v7, s[24:27], s62 offen
    buffer_store_dwordx4 v[20:23], v14, s[24:27], s66 offen
    s_add_u32 s66, s66, 0x20000
    buffer_store_dwordx4 v[24:27], v14, s[24:27], s66 offen
    s_add_u32 s66, s66, 0x20000
    buffer_store_dwordx4 v[28:31], v14, s[24:27], s66 offen
    s_add_u32 s66, s66, 0x20000
    s_cmp_eq_u32 s64, 1
    s_cbranch_scc1 {name}_noside
    buffer_store_dwordx4 v[32:35], v14, s[24:27], s66 offen
    {name}_noside:
    """)
    a.c("safety check of the zero stand-in: max|q|^2 * max|k|^2 <= 50^2 and max|v| <= 2^60, else true-max path")
    stamp(a, 1)
    a("s_waitcnt vmcnt(13)")
    stamp(a, 2)
    for dpp in ("row_shr:1 row_mask:0xf bank_mask:0xf", "row_shr:2 row_mask:0xf bank_mask:0xf", "row_shr:4 row_mask:0xf bank_mask:0xf",
                "row_shr:8 row_mask:0xf bank_mask:0xf", "row_bcast:15 row_mask:0xa bank_mask:0xf", "row_bcast:31 row_mask:0xc bank_mask:0xf"):
        for r in (8, 9, 10):
            a(f"v_max_u32_dpp v{r}, v{r}, v{r} {dpp}")
    a(f"""
    v_mul_f32 v8, v8, v9
    s_nop 0
    v_readlane_b32 s50, v8, 63
    v_readlane_b32 s51, v10, 63
    s_mov_b32 s52, 4
    s_cmp_gt_u32 s50, {f32hex(2500.0)}
    s_cbranch_scc1 {name}_slow
    s_cmp_gt_u32 s51, {f32hex(2.0**60)}
    s_cbranch_scc1 {name}_slow
    s_waitcnt vmcnt(6)
    v_mfma_f32_32x32x16_bf16 {vr(S[0],16)}, {vr(KB[0],4)}, {vr(Q[0],4)}, 0
    """)
    for r in range(0, 16, 2):
        a(f"v_mov_b64 {vr(S[3]+r,2)}, 0")
    stamp(a, 3)
    a("s_nop 4")
    a(".p2align 6")
    a.label(f"{name}_loop")
    for kb in range(4):
        for qt in range(4):
            nq = (qt + 1) & 3; nkb = kb if qt < 3 else (kb + 1) & 3
            pq = (qt - 1) & 3; pkb = kb if qt > 0 else (kb - 1) & 3
            if qt == 3:
                a("s_waitcnt vmcnt(6)")
            a(f"v_mfma_f32_32x32x16_bf16 {vr(S[nq],16)}, {vr(KB[nkb],4)}, {vr(Q[nq],4)}, 0")
            for i in range(16):
                if i == 5:
                    a(f"v_smfmac_f32_32x32x32_bf16 {vr(O[pq],16)}, {vr(VB[pkb],4)}, {vr(S[pq],8)}, v{IDX}")
                if i == 10:
                    a(f"v_smfmac_f32_32x32x32_bf16 {vr(O[pq],16)}, {vr(VB[pkb]+4,4)}, {vr(S[pq]+8,8)}, v{IDX}")
                a(f"v_exp_f32 v{S[qt]+i}, v{S[qt]+i}")
            if qt == 0:
                kv_load((kb + 3) & 3)
    a(f"""
    s_sub_u32 s52, s52, 1
    s_cmp_lg_u32 s52, 3
    s_cbranch_scc1 {name}_p1
    s_setprio 2
    {name}_p1:
    s_cmp_lg_u32 s52, 2
    s_cbranch_scc1 {name}_p2
    s_setprio 1
    {name}_p2:
    s_cmp_lg_u32 s52, 1
    s_cbranch_scc1 {name}_p3
    s_setprio 0
    {name}_p3:
    s_cmp_lg_u32 s52, 0
    s_cbranch_scc1 {name}_loop
    s_nop 1
    v_smfmac_f32_32x32x32_bf16 {vr(O[3],16)}, {vr(VB[3],4)}, {vr(S[3],8)}, v{IDX}
    v_smfmac_f32_32x32x32_bf16 {vr(O[3],16)}, {vr(VB[3]+4,4)}, {vr(S[3]+8,8)}, v{IDX}
    """)
    a.label(f"{name}_combine")
    stamp(a, 4)
    a.c("combine the 4 key-quarter partials through LDS; wave (qg,kq) finalises q-tile kq")
    a(f"""
    s_mul_i32 s53, s34, {4*3*2304}
    v_lshlrev_b32 v8, 2, v{LANE}
    s_nop 7
    """)
    for d in range(4):
        a(f"""
        s_cmp_eq_u32 s35, {d}
        s_cbranch_scc1 {name}_w{d}
        s_cmp_gt_u32 s35, {d}
        s_cselect_b32 s54, 1, 0
        s_sub_u32 s54, s35, s54
        s_mul_i32 s54, s54, 2304
        s_add_u32 s54, s54, s53
        v_add_u32 v9, s54, v7
        v_add_u32 v10, s54, v8
        ds_write_b128 v9, {vr(O[d],4)} offset:{d*3*2304}
        ds_write_b128 v9, {vr(O[d]+4,4)} offset:{d*3*2304+1024}
        ds_write_b32 v10, v{O[d]+8} offset:{d*3*2304+2048}
        s_branch {name}_x{d}
        {name}_w{d}:
        """)
        for r in range(0, 8, 2):
            a(f"v_mov_b64 {vr(S[0]+r,2)}, {vr(O[d]+r,2)}")
        a(f"v_mov_b32 v{S[0]+8}, v{O[d]+8}")
        a.label(f"{name}_x{d}")
    a(f"""
    s_mul_i32 s54, s35, {3*2304}
    s_add_u32 s54, s54, s53
    v_add_u32 v9, s54, v7
    v_add_u32 v10, s54, v8
    s_waitcnt lgkmcnt(0)
    s_barrier
    """)
    for si in range(3):
        b = 32 + 12 * si
        a(f"ds_read_b128 {vr(b,4)}, v9 offset:{si*2304}")
        a(f"ds_read_b128 {vr(b+4,4)}, v9 offset:{si*2304+1024}")
        a(f"ds_read_b32 v{b+8}, v10 offset:{si*2304+2048}")
    a(f"""
    s_lshl_b32 s33, s35, 10
    s_add_u32 s41, s41, s33
    s_add_u32 s41, s41, {WS_O:#x}
    """)
    for si in range(3):
        b = 32 + 12 * si
        a(f"s_waitcnt lgkmcnt({6-3*si})")
        for r in range(9):
            a(f"v_add_f32 v{S[0]+r}, v{S[0]+r}, v{b+r}")
    a(f"v_rcp_f32 v{S[0]+8}, v{S[0]+8}")
    a("s_nop 0")
    for r in range(8):
        a(f"v_mul_f32 v{S[0]+r}, v{S[0]+r}, v{S[0]+8}")
    for r in range(4):
        a(f"v_cvt_pk_bf16_f32 v{12+r}, v{S[0]+2*r}, v{S[0]+2*r+1}")
    a(f"""
    buffer_store_dwordx4 v[12:15], v{VKQ}, s[24:27], s41 offen
    """)
    stamp_flush(a, 1, 5)
    a(f"""
    {name}_end:
    s_endpgm
    """)
    a.label(f"{name}_slow")
    a.c("pass 1: true row maxima over this wave's keys")
    a(f"""
    s_waitcnt vmcnt(0)
    s_mov_b32 s55, s42
    s_mov_b32 s52, 16
    """)
    for qt in range(4):
        a(f"v_mov_b32 v{MX[qt]}, 0xff800000")
    a.label(f"{name}_s1")
    a(f"buffer_load_dwordx4 {vr(KB[0],4)}, v{VKQ}, s[24:27], s55 offen")
    a("s_add_u32 s55, s55, 1024")
    a("s_waitcnt vmcnt(0)")
    for qt in range(4):
        a(f"v_mfma_f32_32x32x16_bf16 {vr(S[qt],16)}, {vr(KB[0],4)}, {vr(Q[qt],4)}, 0")
    a("s_nop 15")
    for qt in range(4):
        for i in range(0, 16, 2):
            a(f"v_max3_f32 v{MX[qt]}, v{S[qt]+i}, v{S[qt]+i+1}, v{MX[qt]}")
    a(f"""
    s_sub_u32 s52, s52, 1
    s_cmp_lg_u32 s52, 0
    s_cbranch_scc1 {name}_s1
    """)
    a.c("exchange maxima across halves and the 4 key-quarter waves: LDS [wave][qt][64 lanes]")
    a(f"""
    s_lshl_b32 s53, s28, 10
    v_lshlrev_b32 v8, 2, v{LANE}
    v_add_u32 v9, s53, v8
    """)
    for qt in range(4):
        a(f"ds_write_b32 v9, v{MX[qt]} offset:{qt*256}")
    a(f"""
    s_lshl_b32 s53, s34, 10
    v_lshlrev_b32 v8, 2, v3
    v_add_u32 v9, s53, v8
    s_waitcnt lgkmcnt(0)
    s_barrier
    """)
    for qt in range(4):
        for kq in range(4):
            a(f"ds_read2_b32 {vr(S[0]+2*kq,2)}, v9 offset0:{(kq*2048+qt*256)//4 if (kq*2048+qt*256)//4 < 224 else 0} offset1:{((kq*2048+qt*256)//4+32) if (kq*2048+qt*256)//4 < 224 else 0}"
              if False else f"ds_read_b32 v{S[0]+2*kq}, v9 offset:{kq*2048+qt*256}\nds_read_b32 v{S[0]+2*kq+1}, v9 offset:{kq*2048+qt*256+128}")
        a("s_waitcnt lgkmcnt(0)")
        a(f"v_max3_f32 v{MX[qt]}, v{S[0]}, v{S[0]+1}, v{S[0]+2}")
        a(f"v_max3_f32 v{MX[qt]}, v{S[0]+3}, v{S[0]+4}, v{MX[qt]}")
        a(f"v_max3_f32 v{MX[qt]}, v{S[0]+5}, v{S[0]+6}, v{MX[qt]}")
        a(f"v_max_f32 v{MX[qt]}, v{S[0]+7}, v{MX[qt]}")
    a(f"""
    s_barrier
    s_mov_b32 s52, 16
    """)
    a.label(f"{name}_s2")
    kv_load(0)
    a("s_waitcnt vmcnt(0)")
    for qt in range(4):
        a(f"v_mfma_f32_32x32x16_bf16 {vr(S[qt],16)}, {vr(KB[0],4)}, {vr(Q[qt],4)}, 0")
    a("s_nop 15")
    for qt in range(4):
        for i in range(16):
            a(f"v_sub_f32 v{S[qt]+i}, v{S[qt]+i}, v{MX[qt]}")
        for i in range(16):
            a(f"v_exp_f32 v{S[qt]+i}, v{S[qt]+i}")
        a("s_nop 1")
        a(f"v_smfmac_f32_32x32x32_bf16 {vr(O[qt],16)}, {vr(VB[0],4)}, {vr(S[qt],8)}, v{IDX}")
        a(f"v_smfmac_f32_32x32x32_bf16 {vr(O[qt],16)}, {vr(VB[0]+4,4)}, {vr(S[qt]+8,8)}, v{IDX}")
    a(f"""
    s_nop 7
    s_sub_u32 s52, s52, 1
    s_cmp_lg_u32 s52, 0
    s_cbranch_scc1 {name}_s2
    s_branch {name}_combine
    """)
    return descriptor(name, 216)
```

```python
from asmlib import *
from layout import *

K3_LDS = 12 * 4096

def gen_k3(a, name):
    A = 64
    B = 128
    ACC = [192, 208, 224, 240]
    LANE = 2
    kernel_head(a, name)
    a(f"""
    s_cmp_ge_u32 s2, 256
    s_cbranch_scc1 {name}_end
    s_load_dwordx2 s[4:5], s[0:1], 0
    s_load_dwordx2 s[6:7], s[0:1], 32
    s_load_dwordx2 s[10:11], s[0:1], 80
    """)
    stamp(a, 0)
    a(f"""
    v_lshrrev_b32 v1, 6, v0
    v_and_b32 v{LANE}, 63, v0
    s_and_b32 s29, s2, 7
    v_readfirstlane_b32 s28, v1
    s_lshr_b32 s30, s2, 3
    s_lshl_b32 s31, s29, 2
    s_lshr_b32 s33, s30, 3
    s_add_u32 s31, s31, s33
    s_and_b32 s32, s30, 7
    v_and_b32 v3, 31, v{LANE}
    v_lshrrev_b32 v6, 5, v{LANE}
    v_lshlrev_b32 v4, 5, v3
    v_lshl_add_u32 v4, v6, 4, v4
    v_lshlrev_b32 v7, 4, v{LANE}
    """)
    a.c("s28=wave s31=rowblock(64 tok) s32=colblock(64 cols); wave handles k-steps 8w..8w+7")
    a(f"""
    s_lshl_b32 s40, s28, 17
    s_lshl_b32 s33, s32, 11
    s_add_u32 s40, s40, s33
    s_add_u32 s40, s40, {WS_WOT:#x}
    s_lshl_b32 s41, s28, 19
    s_lshl_b32 s33, s31, 11
    s_add_u32 s41, s41, s33
    s_add_u32 s41, s41, {WS_O:#x}
    s_and_b32 s34, s28, 1
    s_lshr_b32 s35, s28, 1
    v_lshlrev_b32 v5, 10, v3
    v_lshl_add_u32 v5, v6, 5, v5
    s_lshl_b32 s42, s31, 16
    s_lshl_b32 s33, s35, 15
    s_add_u32 s42, s42, s33
    s_lshl_b32 s43, s32, 7
    s_lshl_b32 s33, s34, 6
    s_add_u32 s43, s43, s33
    s_add_u32 s42, s42, s43
    v_lshlrev_b32 v8, 5, v6
    s_waitcnt lgkmcnt(0)
    """)
    srd(a, 24, 10, WS_BYTES)
    a.c("k-step order rotated by (cb + 2*(rb&3)) so that the first requests are unique inside the XCD group")
    a(f"""
    s_and_b32 s49, s31, 3
    s_lshl_b32 s49, s49, 1
    s_add_u32 s49, s49, s32
    """)
    def ld(ks, parts):
        a(f"s_add_u32 s46, s49, {ks}")
        a(f"s_and_b32 s46, s46, 7")
        a(f"s_lshl_b32 s47, s46, 14")
        a(f"s_lshl_b32 s48, s46, 16")
        a(f"s_add_u32 s47, s47, s40")
        a(f"s_add_u32 s48, s48, s41")
        if "A" in parts: a(f"buffer_load_dwordx4 {vr(A+8*ks,4)}, v7, s[24:27], s47 offen")
        if "B" in parts: a(f"buffer_load_dwordx4 {vr(B+8*ks,4)}, v4, s[24:27], s48 offen")
        if "A" in parts: a(f"buffer_load_dwordx4 {vr(A+8*ks+4,4)}, v7, s[24:27], s47 offen offset:1024")
        if "B" in parts: a(f"buffer_load_dwordx4 {vr(B+8*ks+4,4)}, v4, s[24:27], s48 offen offset:1024")
    ld(0, "AB")
    ld(1, "A")
    srd(a, 12, 4, 2048 * 512 * 2)
    srd(a, 16, 6, 1024)
    a(f"""
    buffer_load_dwordx4 v[16:19], v5, s[12:15], s42 offen
    buffer_load_dwordx4 v[20:23], v5, s[12:15], s42 offen offset:16
    buffer_load_dwordx4 v[24:27], v8, s[16:19], s43 offen
    buffer_load_dwordx4 v[28:31], v8, s[16:19], s43 offen offset:16
    """)
    stamp(a, 1)
    a("s_waitcnt vmcnt(4)")
    stamp(a, 2)
    ld(1, "B")
    for ks in range(2, 8):
        ld(ks, "AB")
    for ks in range(8):
        c = (lambda r: "0") if ks == 0 else (lambda r: vr(r, 16))
        if ks >= 2: a(f"s_waitcnt vmcnt({4*(7-ks)+2})")
        if ks == 1: a(f"s_waitcnt vmcnt(25)")
        a(f"v_mfma_f32_32x32x16_bf16 {vr(ACC[0],16)}, {vr(A+8*ks,4)}, {vr(B+8*ks,4)}, {c(ACC[0])}")
        if ks >= 2: a(f"s_waitcnt vmcnt({4*(7-ks)+1})")
        a(f"v_mfma_f32_32x32x16_bf16 {vr(ACC[1],16)}, {vr(A+8*ks+4,4)}, {vr(B+8*ks,4)}, {c(ACC[1])}")
        if ks >= 1: a(f"s_waitcnt vmcnt({4*(7-ks)})")
        a(f"v_mfma_f32_32x32x16_bf16 {vr(ACC[2],16)}, {vr(A+8*ks,4)}, {vr(B+8*ks+4,4)}, {c(ACC[2])}")
        a(f"v_mfma_f32_32x32x16_bf16 {vr(ACC[3],16)}, {vr(A+8*ks+4,4)}, {vr(B+8*ks+4,4)}, {c(ACC[3])}")
    stamp(a, 3)
    a.c("split-K reduction: wave w finalises tile w (= tt*2+ct)")
    a("s_nop 7")
    R = 32
    for d in range(4):
        a(f"""
        s_cmp_eq_u32 s28, {d}
        s_cbranch_scc1 {name}_w{d}
        s_cmp_gt_u32 s28, {d}
        s_cselect_b32 s54, 1, 0
        s_sub_u32 s54, s28, s54
        s_lshl_b32 s54, s54, 12
        v_add_u32 v9, s54, v7
        """)
        for g in range(4):
            a(f"ds_write_b128 v9, {vr(ACC[d]+4*g,4)} offset:{d*3*4096+g*1024}")
        a(f"s_branch {name}_x{d}")
        a.label(f"{name}_w{d}")
        if d == 3:
            a("s_nop 3")
        for r in range(0, 16, 2):
            a(f"v_mov_b64 {vr(R+r,2)}, {vr(ACC[d]+r,2)}")
        a.label(f"{name}_x{d}")
    a(f"""
    s_mul_i32 s54, s28, {3*4096}
    v_add_u32 v9, s54, v7
    s_waitcnt lgkmcnt(0)
    s_barrier
    """)
    for si in range(3):
        for g in range(4):
            a(f"ds_read_b128 {vr(64+16*si+4*g,4)}, v9 offset:{si*4096+g*1024}")
    stamp(a, 4)
    a.c("unpack x while the partials arrive")
    a("s_waitcnt vmcnt(0)")
    a(f"s_mov_b32 s55, 0xffff0000")
    for i in range(8):
        a(f"v_lshlrev_b32 v{112+2*i}, 16, v{16+i}")
        a(f"v_and_b32 v{112+2*i+1}, s55, v{16+i}")
    for i in range(16):
        a(f"v_add_f32 v{R+i}, v{R+i}, v{112+i}")
    for si in range(3):
        a(f"s_waitcnt lgkmcnt({8-4*si})")
        for i in range(16):
            a(f"v_add_f32 v{R+i}, v{R+i}, v{64+16*si+i}")
    H = 48
    for i in range(8):
        a(f"v_cvt_pk_bf16_f32 v{H+i}, v{R+2*i}, v{R+2*i+1}")
    a(f"""
    s_add_u32 s42, s42, {WS_H:#x}
    v_mov_b32 v56, 0x3f803f80
    buffer_store_dwordx4 {vr(H,4)}, v5, s[24:27], s42 offen
    buffer_store_dwordx4 {vr(H+4,4)}, v5, s[24:27], s42 offen offset:16
    v_dot2_f32_bf16 v10, v{H}, v56, 0
    v_dot2_f32_bf16 v11, v{H}, v{H}, 0
    v_dot2_f32_bf16 v12, v{H}, v24, 0
    """)
    for i in range(1, 8):
        a(f"v_dot2_f32_bf16 v10, v{H+i}, v56, v10")
        a(f"v_dot2_f32_bf16 v11, v{H+i}, v{H+i}, v11")
        a(f"v_dot2_f32_bf16 v12, v{H+i}, v{24+i}, v12")
    a.c("rowsum atomics: lanes 0-31 -> S1, lanes 32-63 -> S2 ; S3 from both halves")
    a(f"""
    s_lshl_b32 s44, s31, 8
    s_lshl_b32 s33, s35, 7
    s_add_u32 s44, s44, s33
    s_add_u32 s44, s44, {WS_RS:#x}
    v_lshlrev_b32 v13, 2, v3
    v_lshl_add_u32 v14, v6, 13, v13
    s_add_u32 s45, s44, 0x4000
    v_permlane32_swap_b32 v10, v11
    s_nop 1
    v_add_f32 v10, v10, v11
    buffer_atomic_add_f32 v12, v13, s[24:27], s45 offen
    buffer_atomic_add_f32 v10, v14, s[24:27], s44 offen
    """)
    stamp_flush(a, 2, 5)
    a(f"""
    {name}_end:
    s_endpgm
    """)
    return descriptor(name, 256)
```

```python
from asmlib import *
from layout import *

K4_LDS = 1024
K5_LDS = 1024
LOG2E = 1.4426950408889634
DPP_MAX = ("row_shr:1 row_mask:0xf bank_mask:0xf", "row_shr:2 row_mask:0xf bank_mask:0xf", "row_shr:4 row_mask:0xf bank_mask:0xf",
           "row_shr:8 row_mask:0xf bank_mask:0xf", "row_bcast:15 row_mask:0xa bank_mask:0xf", "row_bcast:31 row_mask:0xc bank_mask:0xf")

def rnd_bf16(a, d, s):
    a(f"v_cvt_pk_bf16_f32 v{d}, v{s}, v{s}")
    a(f"v_and_b32 v{d}, 0xffff0000, v{d}")

def gen_k4(a, name):
    LANE = 2
    S1 = 16; S2 = 24; S3 = 32
    HR = 40
    WG = 48; WU = 56
    WD = 64
    ACC = 88
    kernel_head(a, name)
    a(f"""
    s_cmp_ge_u32 s2, 256
    s_cbranch_scc1 {name}_end
    s_load_dwordx4 s[4:7], s[0:1], 32
    s_load_dwordx4 s[8:11], s[0:1], 48
    s_load_dwordx2 s[12:13], s[0:1], 64
    s_load_dwordx2 s[14:15], s[0:1], 80
    """)
    stamp(a, 0)
    a(f"""
    v_lshrrev_b32 v1, 6, v0
    v_and_b32 v{LANE}, 63, v0
    s_and_b32 s29, s2, 7
    v_readfirstlane_b32 s28, v1
    s_lshr_b32 s30, s2, 3
    s_mul_i32 s31, s29, 28
    s_add_u32 s31, s31, s30
    v_lshlrev_b32 v3, 5, v0
    v_lshlrev_b32 v4, 4, v{LANE}
    v_lshrrev_b32 v5, 5, v0
    v_lshlrev_b32 v5, 2, v5
    v_lshlrev_b32 v6, 4, v0
    v_lshlrev_b32 v7, 2, v0
    s_lshl_b32 s40, s2, 13
    s_lshl_b32 s41, s2, 5
    s_add_u32 s41, s41, {WS_RS:#x}
    s_add_u32 s42, s40, {WS_H:#x}
    s_lshl_b32 s43, s31, 14
    s_add_u32 s43, s43, {WS_FW:#x}
    s_lshl_b32 s44, s31, 13
    s_mov_b32 s45, {WS_RS:#x}
    s_mov_b32 s46, {WS_RS+8192:#x}
    s_mov_b32 s47, {WS_RS+16384:#x}
    s_waitcnt lgkmcnt(0)
    """)
    srd(a, 24, 14, WS_BYTES)
    srd(a, 16, 4, 1024)
    a(f"""
    buffer_load_dwordx4 {vr(S1,4)}, v3, s[24:27], s45 offen
    buffer_load_dwordx4 {vr(S1+4,4)}, v3, s[24:27], s45 offen offset:16
    buffer_load_dwordx4 {vr(S2,4)}, v3, s[24:27], s46 offen
    buffer_load_dwordx4 {vr(S2+4,4)}, v3, s[24:27], s46 offen offset:16
    buffer_load_dwordx4 {vr(S3,4)}, v3, s[24:27], s47 offen
    buffer_load_dwordx4 {vr(S3+4,4)}, v3, s[24:27], s47 offen offset:16
    buffer_load_dwordx4 v[8:11], v4, s[16:19], 0 offen
    """)
    srd(a, 20, 14, WS_BYTES)
    srd(a, 36, 10, 512 * 1792 * 2)
    a.c("workgroups past the 224 FFN slices get a zero-size weight descriptor (loads return 0)")
    a(f"""
    s_cmp_lt_u32 s30, 28
    s_cselect_b32 s22, s22, 0
    s_cselect_b32 s38, s38, 0
    buffer_load_dwordx4 {vr(WG,4)}, v6, s[20:23], s43 offen
    s_add_u32 s43, s43, 4096
    buffer_load_dwordx4 {vr(WG+4,4)}, v6, s[20:23], s43 offen
    s_add_u32 s43, s43, 4096
    buffer_load_dwordx4 {vr(WU,4)}, v6, s[20:23], s43 offen
    s_add_u32 s43, s43, 4096
    buffer_load_dwordx4 {vr(WU+4,4)}, v6, s[20:23], s43 offen
    """)
    for f in range(4):
        a(f"buffer_load_dword v{WD+f}, v7, s[36:39], s44 offen offset:{f*1024}")
    a("s_add_u32 s44, s44, 4096")
    for f in range(4):
        a(f"buffer_load_dword v{WD+4+f}, v7, s[36:39], s44 offen offset:{f*1024}")
    a(f"""
    buffer_load_dwordx4 {vr(HR,4)}, v3, s[24:27], s42 offen
    buffer_load_dwordx4 {vr(HR+4,4)}, v3, s[24:27], s42 offen offset:16
    buffer_load_dword v12, v5, s[24:27], s41 offen
    s_add_u32 s41, s41, 8192
    buffer_load_dword v13, v5, s[24:27], s41 offen
    v_mov_b32 v14, 0x3f803f80
    """)
    stamp(a, 1)
    a(f"""
    s_waitcnt vmcnt(16)
    """)
    stamp(a, 2)
    a(f"""
    v_dot2_f32_bf16 v15, v8, v14, 0
    v_dot2_f32_bf16 v15, v9, v14, v15
    v_dot2_f32_bf16 v15, v10, v14, v15
    v_dot2_f32_bf16 v15, v11, v14, v15
    s_mov_b32 s48, {f32hex(1/512)}
    s_mov_b32 s49, {f32hex(1e-5)}
    """)
    a.c("per-row mean / variance while the w_r sum reduces")
    dpp_adds = [f"v_add_f32_dpp v15, v15, v15 row_ror:8 row_mask:0xf bank_mask:0xf", f"v_add_f32_dpp v15, v15, v15 row_ror:4 row_mask:0xf bank_mask:0xf",
                f"v_add_f32_dpp v15, v15, v15 row_ror:2 row_mask:0xf bank_mask:0xf", f"v_add_f32_dpp v15, v15, v15 row_ror:1 row_mask:0xf bank_mask:0xf"]
    for i in range(8):
        a(f"v_mul_f32 v{S1+i}, s48, v{S1+i}")
        a(f"v_mul_f32 v{S2+i}, s48, v{S2+i}")
        a(f"v_fma_f32 v{S2+i}, -v{S1+i}, v{S1+i}, v{S2+i}")
        if i < 4:
            a(dpp_adds[i])
        a(f"v_max_f32 v{S2+i}, 0, v{S2+i}")
        a(f"v_add_f32 v{S2+i}, s49, v{S2+i}")
        a(f"v_rsq_f32 v{S2+i}, v{S2+i}")
    a(f"""
    v_readlane_b32 s50, v15, 0
    v_readlane_b32 s51, v15, 16
    v_readlane_b32 s52, v15, 32
    v_readlane_b32 s53, v15, 48
    v_mov_b32 v15, s50
    v_add_f32 v15, s51, v15
    v_add_f32 v15, s52, v15
    v_add_f32 v15, s53, v15
    v_lshlrev_b32 v8, 3, v0
    v_sub_u32 v8, 2047, v8
    v_mov_b32 v9, 0
    """)
    a.c("r = (S3 - mean*Wsum)*rstd -> ordered key (top 21 bits) | (2047-row)")
    for i in range(8):
        a(f"v_fma_f32 v{S3+i}, -v{S1+i}, v15, v{S3+i}")
        a(f"v_mul_f32 v{S3+i}, v{S3+i}, v{S2+i}")
        a(f"v_ashrrev_i32 v10, 31, v{S3+i}")
        a(f"v_cmp_o_f32 vcc, v{S3+i}, v{S3+i}")
        a(f"v_or_b32 v10, 0x80000000, v10")
        a(f"v_xor_b32 v10, v10, v{S3+i}")
        a(f"v_and_b32 v10, 0xfffff800, v10")
        a(f"v_cndmask_b32 v10, 0, v10, vcc")
        a(f"v_subrev_u32 v11, {i}, v8")
        a(f"v_or_b32 v10, v10, v11")
        a(f"v_max_u32 v9, v9, v10")
    a("s_nop 1")
    for dpp in DPP_MAX:
        a(f"v_max_u32_dpp v9, v9, v9 {dpp}")
        a("s_nop 1")
    a(f"""
    v_readlane_b32 s54, v9, 63
    s_lshl_b32 s55, s28, 2
    v_mov_b32 v10, s55
    v_mov_b32 v9, s54
    ds_write_b32 v10, v9
    v_mov_b32 v10, 0
    s_waitcnt lgkmcnt(0)
    s_barrier
    ds_read_b128 v[8:11], v10
    s_waitcnt lgkmcnt(0)
    v_max_u32 v8, v8, v9
    v_max3_u32 v8, v8, v10, v11
    v_and_b32 v8, 0x7ff, v8
    v_sub_u32 v8, 2047, v8
    s_nop 0
    v_readfirstlane_b32 s56, v8
    s_nop 3
    s_lshl_b32 s57, s56, 10
    s_add_u32 s57, s57, {WS_H:#x}
    s_lshl_b32 s58, s56, 2
    s_add_u32 s58, s58, {WS_RS:#x}
    s_add_u32 s59, s58, 8192
    s_add_u32 s60, s58, 16384
    v_mov_b32 v11, 0
    v_lshlrev_b32 v104, 1, v0
    buffer_load_ushort v8, v104, s[24:27], s57 offen
    buffer_load_ushort v105, v104, s[24:27], s57 offen offset:512
    buffer_load_dword v9, v11, s[24:27], s58 offen
    buffer_load_dword v10, v11, s[24:27], s59 offen
    buffer_load_dword v11, v11, s[24:27], s60 offen
    """)
    stamp(a, 3)
    a.c("meanwhile: own output rows  out = h*(1+rstd) - mean*rstd")
    srd(a, 16, 12, 2048 * 512 * 2)
    a(f"""
    s_waitcnt vmcnt(5)
    v_mul_f32 v12, s48, v12
    v_mul_f32 v13, s48, v13
    v_fma_f32 v13, -v12, v12, v13
    v_max_f32 v13, 0, v13
    v_add_f32 v13, s49, v13
    v_rsq_f32 v13, v13
    s_mov_b32 s61, 0xffff0000
    v_mul_f32 v12, v12, v13
    v_add_f32 v13, 1.0, v13
    """)
    for i in range(8):
        a(f"v_lshlrev_b32 v{S1+2*i}, 16, v{HR+i}")
        a(f"v_and_b32 v{S1+2*i+1}, s61, v{HR+i}")
    for i in range(16):
        a(f"v_fma_f32 v{S1+i}, v{S1+i}, v13, -v12")
    for i in range(8):
        a(f"v_cvt_pk_bf16_f32 v{HR+i}, v{S1+2*i}, v{S1+2*i+1}")
    a(f"""
    buffer_store_dwordx4 {vr(HR,4)}, v3, s[16:19], s40 offen
    buffer_store_dwordx4 {vr(HR+4,4)}, v3, s[16:19], s40 offen offset:16
    """)
    stamp(a, 4)
    stamp(a, 5)
    stamp(a, 6)
    a(f"""
    s_cmp_ge_u32 s30, 28
    s_cbranch_scc1 {name}_fin
    """)
    for f in range(8):
        a(f"v_lshlrev_b32 v{72+2*f}, 16, v{WD+f}")
        a(f"v_and_b32 v{72+2*f+1}, s61, v{WD+f}")
    a.c("selected row: x_sel = bf16((h-mean)*rstd)")
    a("s_waitcnt vmcnt(2)")
    stamp(a, 5)
    a(f"""
    v_mul_f32 v9, s48, v9
    v_mul_f32 v10, s48, v10
    v_fma_f32 v10, -v9, v9, v10
    v_max_f32 v10, 0, v10
    v_add_f32 v10, s49, v10
    v_rsq_f32 v10, v10
    v_lshlrev_b32 v12, 16, v8
    v_lshlrev_b32 v13, 16, v105
    v_lshl_or_b32 v8, v105, 16, v8
    v_sub_f32 v12, v12, v9
    v_sub_f32 v13, v13, v9
    v_mul_f32 v12, v12, v10
    v_mul_f32 v13, v13, v10
    v_cvt_pk_bf16_f32 v14, v12, v13
    v_fma_f32 v11, -v9, v15, v11
    v_and_b32 v16, 0xffff, v14
    v_lshlrev_b32 v17, 16, v14
    v_lshrrev_b32 v18, 16, v14
    v_and_b32 v19, s61, v14
    v_mul_f32 v11, v11, v10
    """)
    for m, W in enumerate((WG, WU)):
        for p in range(4):
            a(f"v_dot2_f32_bf16 v{ACC+8*m+2*p}, v{W+p}, v16, 0")
            a(f"v_dot2_f32_bf16 v{ACC+8*m+2*p+1}, v{W+p}, v17, 0")
    for m, W in enumerate((WG, WU)):
        for p in range(4):
            a(f"v_dot2_f32_bf16 v{ACC+8*m+2*p}, v{W+4+p}, v18, v{ACC+8*m+2*p}")
            a(f"v_dot2_f32_bf16 v{ACC+8*m+2*p+1}, v{W+4+p}, v19, v{ACC+8*m+2*p+1}")
    a.c("workgroup 0 publishes the selection for the last kernel: [t] = (h pair, xn pair); idx and r")
    a(f"""
    s_cmp_lg_u32 s2, 0
    s_cbranch_scc1 {name}_nosel
    v_mov_b32 v20, v8
    v_mov_b32 v21, v14
    v_lshlrev_b32 v22, 3, v0
    s_mov_b32 s62, {WS_SEL:#x}
    buffer_store_dwordx2 v[20:21], v22, s[24:27], s62 offen
    v_mov_b32 v24, s56
    v_mov_b32 v25, v11
    v_mov_b32 v22, 0
    buffer_store_dwordx2 v[24:25], v22, s[24:27], s62 offen offset:2048
    {name}_nosel:
    s_nop 2
    """)
    for i in range(8):
        a(f"v_permlane32_swap_b32 v{ACC+i}, v{ACC+8+i}")
    for i in range(8):
        a(f"v_add_f32 v{ACC+i}, v{ACC+i}, v{ACC+8+i}")
    for i in range(4):
        a(f"v_permlane16_swap_b32 v{ACC+i}, v{ACC+4+i}")
    for i in range(4):
        a(f"v_add_f32 v{ACC+i}, v{ACC+i}, v{ACC+4+i}")
    for ror in (8, 4, 2, 1):
        for i in range(4):
            a(f"v_add_f32_dpp v{ACC+i}, v{ACC+i}, v{ACC+i} row_ror:{ror} row_mask:0xf bank_mask:0xf")
    stamp(a, 6)
    a.c("row g (= lane>>4) now holds value 8*(g>>1)+4*(g&1)+i in reg i ; LDS [value][wave]")
    a(f"""
    v_lshrrev_b32 v20, 4, v{LANE}
    v_lshlrev_b32 v20, 6, v20
    v_add_u32 v20, s55, v20
    v_and_b32 v21, 7, v{LANE}
    v_lshlrev_b32 v21, 4, v21
    ds_write_b32 v20, v{ACC} offset:256
    ds_write_b32 v20, v{ACC+1} offset:272
    ds_write_b32 v20, v{ACC+2} offset:288
    ds_write_b32 v20, v{ACC+3} offset:304
    s_waitcnt lgkmcnt(0)
    s_barrier
    ds_read_b128 v[24:27], v21 offset:256
    ds_read_b128 v[28:31], v21 offset:384
    s_waitcnt lgkmcnt(0)
    v_add_f32 v24, v24, v25
    v_add_f32 v28, v28, v29
    v_add_f32 v26, v26, v27
    v_add_f32 v30, v30, v31
    v_add_f32 v24, v24, v26
    v_add_f32 v28, v28, v30
    """)
    rnd_bf16(a, 24, 24)
    rnd_bf16(a, 28, 28)
    a(f"""
    v_mul_f32 v25, {f32hex(-LOG2E)}, v24
    v_exp_f32 v25, v25
    s_nop 0
    v_add_f32 v25, 1.0, v25
    v_rcp_f32 v25, v25
    s_nop 0
    v_mul_f32 v24, v24, v25
    """)
    rnd_bf16(a, 24, 24)
    a("v_mul_f32 v24, v24, v28")
    rnd_bf16(a, 24, 24)
    a("s_nop 0")
    for f in range(8):
        a(f"v_readlane_b32 s{64+f}, v24, {f}")
    a(f"""
    v_lshrrev_b32 v20, 2, v0
    v_mul_u32_u24 v20, {224*32}, v20
    v_and_b32 v21, 3, v0
    v_lshl_add_u32 v20, v21, 3, v20
    v_mul_f32 v26, s64, v72
    v_mul_f32 v27, s64, v73
    """)
    for f in range(1, 8):
        a(f"v_fmac_f32 v26, s{64+f}, v{72+2*f}")
        a(f"v_fmac_f32 v27, s{64+f}, v{72+2*f+1}")
    a(f"""
    s_lshl_b32 s62, s31, 5
    s_add_u32 s62, s62, {WS_YP:#x}
    buffer_store_dwordx2 v[26:27], v20, s[24:27], s62 offen
    {name}_fin:
    """)
    stamp_flush(a, 3, 7)
    a(f"""
    {name}_end:
    s_endpgm
    """)
    return descriptor(name, 108)

def gen_k5(a, name):
    LANE = 2
    kernel_head(a, name)
    a(f"""
    s_cmp_ge_u32 s2, 64
    s_cbranch_scc1 {name}_end
    s_load_dwordx2 s[12:13], s[0:1], 64
    s_load_dwordx2 s[14:15], s[0:1], 80
    """)
    stamp(a, 0)
    a(f"""
    v_lshrrev_b32 v1, 6, v0
    v_and_b32 v{LANE}, 63, v0
    v_lshlrev_b32 v3, 5, v0
    v_readfirstlane_b32 s28, v1
    s_mul_i32 s40, s2, {224*32}
    s_add_u32 s40, s40, {WS_YP:#x}
    v_mov_b32 v4, 0x7fffffff
    v_cmp_gt_u32 vcc, 224, v0
    v_and_b32 v5, 7, v{LANE}
    v_cndmask_b32 v3, v4, v3, vcc
    v_lshlrev_b32 v6, 3, v5
    s_and_b32 s41, s2, 31
    s_lshl_b32 s41, s41, 6
    s_add_u32 s41, s41, {WS_SEL:#x}
    s_mov_b32 s42, {WS_SEL+2048:#x}
    v_mov_b32 v7, 0
    s_waitcnt lgkmcnt(0)
    """)
    srd(a, 24, 14, WS_BYTES)
    a(f"""
    buffer_load_dwordx4 v[8:11], v3, s[24:27], s40 offen
    buffer_load_dwordx4 v[12:15], v3, s[24:27], s40 offen offset:16
    buffer_load_dwordx2 v[16:17], v6, s[24:27], s41 offen
    buffer_load_dwordx2 v[18:19], v7, s[24:27], s42 offen
    """)
    srd(a, 16, 12, 2048 * 512 * 2)
    a("s_lshl_b32 s55, s28, 2")
    stamp(a, 1)
    a("s_waitcnt vmcnt(2)")
    stamp(a, 2)
    for i in range(4):
        a(f"v_permlane32_swap_b32 v{8+i}, v{12+i}")
    for i in range(4):
        a(f"v_add_f32 v{8+i}, v{8+i}, v{12+i}")
    a("s_nop 0")
    for i in range(2):
        a(f"v_permlane16_swap_b32 v{8+i}, v{10+i}")
    a("s_nop 0")
    for i in range(2):
        a(f"v_add_f32 v{8+i}, v{8+i}, v{10+i}")
    for ror in (8, 4, 2, 1):
        a("s_nop 0")
        for i in range(2):
            a(f"v_add_f32_dpp v{8+i}, v{8+i}, v{8+i} row_ror:{ror} row_mask:0xf bank_mask:0xf")
    a.c("row g holds value 4*(g>>1)+2*(g&1)+i in reg i ; LDS [value][wave]")
    a(f"""
    v_lshrrev_b32 v20, 4, v{LANE}
    v_lshlrev_b32 v20, 5, v20
    v_add_u32 v20, s55, v20
    v_lshlrev_b32 v21, 4, v5
    ds_write_b32 v20, v8
    ds_write_b32 v20, v9 offset:16
    s_waitcnt lgkmcnt(0)
    s_barrier
    s_cmp_lg_u32 s28, 0
    s_cbranch_scc1 {name}_fin
    ds_read_b128 v[24:27], v21
    s_waitcnt vmcnt(0)
    """)
    a.c("gate = bf16(sigmoid(bf16(r)))")
    rnd_bf16(a, 19, 19)
    a(f"""
    v_mul_f32 v19, {f32hex(-LOG2E)}, v19
    v_exp_f32 v19, v19
    s_cmp_ge_u32 s2, 32
    v_add_f32 v19, 1.0, v19
    v_rcp_f32 v19, v19
    s_cselect_b64 vcc, -1, 0
    v_lshlrev_b32 v28, 16, v16
    v_and_b32 v29, 0xffff0000, v16
    v_lshlrev_b32 v30, 16, v17
    v_and_b32 v31, 0xffff0000, v17
    v_cndmask_b32 v28, v28, v29, vcc
    v_cndmask_b32 v30, v30, v31, vcc
    """)
    rnd_bf16(a, 19, 19)
    a(f"""
    s_waitcnt lgkmcnt(0)
    v_add_f32 v24, v24, v25
    v_add_f32 v26, v26, v27
    v_add_f32 v24, v24, v26
    """)
    rnd_bf16(a, 24, 24)
    a("v_mul_f32 v24, v24, v19")
    rnd_bf16(a, 24, 24)
    a("v_add_f32 v24, v24, v30")
    rnd_bf16(a, 24, 24)
    a(f"""
    v_add_f32 v24, v24, v28
    v_cvt_pk_bf16_f32 v24, v24, v24
    v_and_b32 v18, 0x7ff, v18
    v_lshlrev_b32 v18, 10, v18
    v_lshl_add_u32 v18, v5, 1, v18
    s_lshl_b32 s43, s2, 4
    s_mov_b64 exec, 0xff
    buffer_store_short v24, v18, s[16:19], s43 offen
    {name}_fin:
    """)
    stamp_flush(a, 4, 3)
    a(f"""
    {name}_end:
    s_endpgm
    """)
    return descriptor(name, 32)
```

```python
from asmlib import *
from layout import *
import os

SLOT = 28672
NSLOT = 5
LDS_P = SLOT * NSLOT
LDS_CS = LDS_P + 1536
LDS_NR = LDS_CS + 2048
K1_LDS = LDS_NR + 128
SPIN = 200000
HI = 0x20000
QKV_SC = "sc1"
AHEAD = int(os.environ.get('AHEAD', '3'))
LA = 2
ROTC = {"full": "", "xcd": "s_mov_b32 s49, s29", "none": "s_mov_b32 s49, 0",
        "x2": "s_and_b32 s49, s49, 1\n    s_add_u32 s49, s49, s29", "x4": "s_and_b32 s49, s49, 3\n    s_add_u32 s49, s49, s29",
        "fx": "s_add_u32 s49, s49, s29"}[os.environ.get("ROT", "full")]

def gen_k1(a, name):
    LANE = 2; HALF = 3
    VL = [8, 9, 10, 11]
    VXR = [12, 13, 14, 15]
    VS = [40, 41, 42, 43]
    VDX = 16; VDW = 44
    ONES = 18
    XF = [128 + 4 * i for i in range(8)]
    WF = [160 + 12 * i for i in range(LA + 1)]
    ACC = [56, 72, 88]
    CS = [104, 108, 112]; SX = [24, 28]; SXX = [32, 36]
    kernel_head(a, name)
    a(f"""
    s_cmp_ge_u32 s2, 256
    s_cbranch_scc1 {name}_end
    s_load_dwordx4 s[4:7], s[0:1], 0
    s_load_dwordx4 s[8:11], s[0:1], 72
    s_getpc_b64 s[36:37]
    {name}_pc:
    """)
    stamp(a, 0)
    a(f"""
    v_lshrrev_b32 v1, 6, v0
    v_and_b32 v{LANE}, 63, v0
    s_and_b32 s29, s2, 7
    v_readfirstlane_b32 s28, v1
    s_lshr_b32 s30, s2, 3
    s_lshr_b32 s31, s29, 1
    s_lshl_b32 s31, s31, 2
    s_and_b32 s33, s30, 3
    s_add_u32 s31, s31, s33
    s_lshl_b32 s49, s33, 1
    s_and_b32 s32, s29, 1
    s_lshl_b32 s32, s32, 3
    s_lshr_b32 s33, s30, 2
    s_add_u32 s32, s32, s33
    s_add_u32 s49, s49, s33
    s_and_b32 s45, s28, 3
    {ROTC}
    s_mov_b32 s14, {2048*512*2:#x}
    s_mov_b32 s15, 0x00020000
    s_mov_b32 s18, {512*1536*2:#x}
    s_mov_b32 s19, 0x00020000
    v_lshrrev_b32 v4, 3, v{LANE}
    v_and_b32 v6, 7, v{LANE}
    s_mul_i32 s56, s32, 3
    s_and_b32 s33, s32, 1
    s_add_u32 s57, s56, s33
    s_xor_b32 s33, s33, 1
    s_lshl_b32 s33, s33, 1
    s_add_u32 s58, s56, s33
    """)
    a.c("s28=wave s45=token tile / k-step s31=mb s32=nb s49=phase rotation s57=first sub-tile of the 64-col pair s58=single sub-tile")
    a.c("x staging: lane -> row l>>3 of an 8-row group, LDS chunk q=l&7 holds global chunk q^((row>>1)&7)")
    a.c("W staging: full 128-byte lines for the pair (halves swapped on rows with bit1 set) + 64 B rows for the single")
    a(f"""
    v_lshrrev_b32 v5, 4, v{LANE}
    v_xor_b32 v5, v5, v6
    v_lshlrev_b32 v{VDX}, 10, v4
    v_lshl_add_u32 v{VDX}, v5, 4, v{VDX}
    v_xor_b32 v{VDX+1}, 64, v{VDX}
    s_lshl_b32 s40, s31, 17
    s_lshl_b32 s33, s45, 15
    s_add_u32 s40, s40, s33
    s_lshl_b32 s42, s45, 12
    s_add_u32 s42, s42, 12288
    v_bfe_u32 v5, v{LANE}, 4, 1
    v_lshlrev_b32 v5, 2, v5
    v_xor_b32 v5, v5, v6
    v_mul_u32_u24 v{VDW}, 3072, v4
    v_lshl_add_u32 v{VDW}, v5, 4, v{VDW}
    v_lshrrev_b32 v{VDW+1}, 2, v{LANE}
    v_mul_u32_u24 v{VDW+1}, 3072, v{VDW+1}
    v_and_b32 v6, 3, v{LANE}
    v_lshl_add_u32 v{VDW+1}, v6, 4, v{VDW+1}
    s_mul_i32 s41, s45, 49152
    s_lshl_b32 s33, s57, 6
    s_add_u32 s50, s41, s33
    s_lshl_b32 s33, s58, 6
    s_add_u32 s59, s41, s33
    s_mul_i32 s52, s45, 3072
    v_lshlrev_b32 v117, 4, v{LANE}
    s_waitcnt lgkmcnt(0)
    s_mov_b32 s12, s4
    s_and_b32 s13, s5, 0xffff
    s_mov_b32 s16, s6
    s_and_b32 s17, s7, 0xffff
    """)
    def dma_x(p):
        so = (p % NSLOT) * SLOT
        a(f"s_add_u32 s43, s49, {p}")
        a(f"s_and_b32 s43, s43, 7")
        a(f"s_lshl_b32 s43, s43, 7")
        a(f"s_add_u32 s43, s43, s40")
        for g in range(4):
            a(f"s_add_u32 m0, s42, {so + g * 1024}")
            a(f"s_add_u32 s41, s43, {g * 8192}")
            a(f"buffer_load_dwordx4 v{VDX + (g & 1)}, s[12:15], s41 offen lds")
    def dma_w(p):
        so = (p % NSLOT) * SLOT
        a(f"s_add_u32 s43, s49, {p}")
        a(f"s_and_b32 s43, s43, 7")
        a(f"s_mul_i32 s43, s43, {4*49152}")
        a(f"s_add_u32 m0, s52, {so}")
        a(f"s_add_u32 s41, s43, s50")
        a(f"buffer_load_dwordx4 v{VDW}, s[16:19], s41 offen lds")
        a(f"s_add_u32 m0, s52, {so + 1024}")
        a(f"s_add_u32 s41, s41, {8*3072}")
        a(f"buffer_load_dwordx4 v{VDW}, s[16:19], s41 offen lds")
        a(f"s_add_u32 m0, s52, {so + 2048}")
        a(f"s_add_u32 s41, s43, s59")
        a(f"buffer_load_dwordx4 v{VDW+1}, s[16:19], s41 offen lds")
    NX = AHEAD
    a(f"""
    s_cmp_lt_u32 s28, 4
    s_cbranch_scc1 {name}_C
    """)
    outst = []
    for p in range(AHEAD):
        dma_w(p); outst += [p] * 3
        if p == 0:
            a.c("code prefetch through an exact-size descriptor (2 KB per helper wave)")
            a(f"""
            s_and_b32 s37, s37, 0xffff
            s_mov_b32 s38, code_end-{name}_pc
            s_mov_b32 s39, 0x00020000
            s_lshl_b32 s33, s30, 2
            s_add_u32 s33, s33, s45
            s_and_b32 s33, s33, 15
            s_lshl_b32 s33, s33, 11
            buffer_load_dwordx4 v[20:23], v117, s[36:39], s33 offen
            buffer_load_dwordx4 v[20:23], v117, s[36:39], s33 offen offset:1024
            """)
            outst += ["x", "x"]
    srd(a, 24, 10, WS_BYTES)
    a.c("pre-fill this workgroup's share of the hand-off region with the 'not yet written' sentinel, then count it in d_debug")
    a(f"""
    v_mov_b32 v120, -1
    v_mov_b32 v121, -1
    v_mov_b32 v122, -1
    v_mov_b32 v123, -1
    s_mul_i32 s34, s2, {SENT_PER_WG}
    s_mul_i32 s35, s45, 3072
    s_add_u32 s34, s34, s35
    s_add_u32 s34, s34, {WS_SENT:#x}
    """)
    for i in range(3):
        a(f"buffer_store_dwordx4 v[120:123], v117, s[24:27], s34 offen offset:{i*1024} sc1")
        outst.append("s")
    srd(a, 20, 8, 256)
    a(f"""
    v_mov_b32 v4, 0
    v_mov_b32 v5, 1
    """)
    for p in range(8):
        idx = max(i for i, x in enumerate(outst) if x == p or (p == 3 and x == "s"))
        a(f"s_waitcnt vmcnt({len(outst) - 1 - idx})")
        del outst[:idx + 1]
        a("s_barrier")
        if p == 0: stamp(a, 1)
        if p + AHEAD < 8:
            dma_w(p + AHEAD); dma_x(p + AHEAD); outst += [p + AHEAD] * 7
    stamp(a, 2)
    a(f"""
    s_barrier
    s_cmp_lg_u32 s28, 4
    s_cbranch_scc1 {name}_J
    s_mov_b32 s53, 0
    {name}_ipoll:
    buffer_load_dword v5, v4, s[20:23], 0 offen sc1
    s_add_u32 s53, s53, 1
    s_waitcnt vmcnt(0)
    v_cmp_gt_u32 vcc, 256, v5
    s_cmp_gt_u32 s53, {SPIN}
    s_cbranch_scc1 {name}_J
    s_cbranch_vccnz {name}_ipoll
    s_branch {name}_J
    """)
    a.label(f"{name}_C")
    for p in range(NX):
        dma_x(p)
    a(f"""
    v_lshrrev_b32 v{HALF}, 5, v{LANE}
    v_bfe_u32 v5, v{LANE}, 2, 2
    v_bfe_u32 v6, v{LANE}, 4, 1
    v_lshlrev_b32 v7, 5, v6
    v_and_b32 v6, 3, v{LANE}
    v_lshl_add_u32 v7, v6, 3, v7
    v_lshl_add_u32 v4, v{HALF}, 10, v7
    v_lshl_add_u32 v4, v5, 7, v4
    v_bfe_u32 v6, v{LANE}, 3, 1
    v_lshl_add_u32 v4, v6, 6, v4
    v_lshl_add_u32 v7, v{HALF}, 9, v7
    v_lshl_add_u32 v7, v5, 6, v7
    v_add_u32 v46, 2048, v7
    v_and_b32 v116, 31, v{LANE}
    v_bfe_u32 v6, v{LANE}, 1, 3
    v_xor_b32 v6, v6, v{HALF}
    v_lshlrev_b32 v5, 7, v116
    v_add_u32 v5, s42, v5
    """)
    for j in range(4):
        a(f"""
        s_add_u32 s33, s45, {j}
        s_and_b32 s33, s33, 3
        s_mul_i32 s35, s33, 3072
        s_lshl_b32 s34, s33, 1
        v_add_u32 v{VL[j]}, s35, v4
        v_add_u32 v{VS[j]}, s35, v46
        v_xor_b32 v7, s34, v6
        v_lshl_add_u32 v{VXR[j]}, v7, 4, v5
        """)
    a(f"""
    v_mov_b32 v{ONES}, 0x3f803f80
    v_mov_b32 v{ONES+1}, 0x3f803f80
    """)
    srd(a, 24, 10, WS_BYTES)
    srd(a, 20, 8, 256)
    a.c("epilogue addresses")
    a(f"""
    s_lshl_b32 s33, s45, 9
    v_lshlrev_b32 v118, 4, v{HALF}
    v_add_u32 v118, {HI:#x}, v118
    v_add_u32 v118, s33, v118
    v_lshlrev_b32 v119, 2, v{LANE}
    v_add_u32 v119, {HI:#x}, v119
    v_add_u32 v119, s33, v119
    v_lshlrev_b32 v120, 5, v116
    v_lshl_add_u32 v120, v{HALF}, 4, v120
    s_lshl_b32 s34, s31, 12
    s_lshl_b32 s35, s45, 10
    s_add_u32 s34, s34, s35
    s_lshl_b32 s35, s45, 2
    s_add_u32 s44, s35, {HI:#x}
    """)
    for us, ty, dst, nr, sc in ((57, 60, 46, 48, 61), (58, 63, 64, 65, 66)):
        a(f"""
        s_lshr_b32 s{ty}, s{us}, 4
        s_lshl_b32 s{dst}, s{ty}, 21
        s_and_b32 s35, s{us}, 15
        s_lshl_b32 s35, s35, 17
        s_add_u32 s{dst}, s{dst}, s35
        s_add_u32 s{dst}, s{dst}, s34
        s_cmp_eq_u32 s{ty}, 0
        s_cselect_b32 s{sc}, {f32hex(QSCALE)}, 1.0
        """)
    a(f"""
    s_mul_i32 s33, s45, {3*2304}
    v_mul_u32_u24 v124, 72, v116
    v_lshl_add_u32 v124, v{HALF}, 3, v124
    v_add_u32 v124, s33, v124
    v_bfe_u32 v125, v{LANE}, 2, 2
    v_lshl_add_u32 v125, v{HALF}, 3, v125
    v_mul_u32_u24 v125, 72, v125
    v_bfe_u32 v6, v{LANE}, 4, 1
    v_lshl_add_u32 v125, v6, 5, v125
    v_and_b32 v5, 1, v{LANE}
    v_lshl_add_u32 v125, v5, 4, v125
    v_bfe_u32 v5, v{LANE}, 1, 1
    v_lshl_add_u32 v125, v5, 3, v125
    v_add_u32 v125, s33, v125
    v_and_b32 v126, 15, v{LANE}
    v_lshlrev_b32 v126, 4, v126
    v_lshl_add_u32 v126, v{HALF}, 8, v126
    v_lshl_add_u32 v126, v6, 16, v126
    v_add_u32 v121, s44, v117
    v_lshlrev_b32 v122, 4, v116
    v_add_u32 v123, {HI:#x}, v122
    v_add_u32 v122, s44, v122
    v_add_u32 v127, {HI:#x}, v117
    v_and_b32 v5, 3, v{LANE}
    v_cmp_eq_u32 s[50:51], 1, v5
    v_cmp_eq_u32 s[52:53], 2, v5
    v_cmp_eq_u32 s[54:55], 3, v5
    """)
    cur_base = [0]
    def rebase(p):
        so = (p % NSLOT) * SLOT
        want = (so // (2 * SLOT)) * 2 * SLOT
        ops = []
        if want != cur_base[0]:
            d = want - cur_base[0]
            ops = [f"v_add_u32 v{r}, {d & 0xffffffff:#x}, v{r}" for r in VL + VXR + VS]
            cur_base[0] = want
        return so - want, ops
    def reads(t):
        p, j = t >> 2, t & 3
        off, pre = rebase(p)
        wf = WF[t % (LA + 1)]
        return pre, [f"ds_read_b128 {vr(XF[t & 7],4)}, v{VXR[j]} offset:{off}",
                f"ds_read_b64_tr_b16 {vr(wf,2)}, v{VL[j]} offset:{off}",
                f"v_xor_b32 v7, 64, v{VL[j]}\nds_read_b64_tr_b16 {vr(wf+2,2)}, v{VL[j]} offset:{off+512}",
                f"ds_read_b64_tr_b16 {vr(wf+4,2)}, v7 offset:{off}",
                f"ds_read_b64_tr_b16 {vr(wf+6,2)}, v7 offset:{off+512}",
                f"ds_read_b64_tr_b16 {vr(wf+8,2)}, v{VS[j]} offset:{off}",
                f"ds_read_b64_tr_b16 {vr(wf+10,2)}, v{VS[j]} offset:{off+256}"]
    for t in range(32 + LA):
        p, j = t >> 2, t & 3
        rd = []
        if t < 32:
            if j == 0:
                if p < NX:
                    a(f"s_waitcnt vmcnt({4 * (NX - 1 - p)})")
                a("s_barrier")
                if p == 0: stamp(a, 1)
                if p == 3:
                    a.c("the helper waves drained their sentinel fills before this barrier: count this workgroup in d_debug")
                    a(f"""
                    s_cmp_lg_u32 s28, 0
                    s_cbranch_scc1 {name}_noinc
                    v_mov_b32 v4, 0
                    v_mov_b32 v5, 1
                    s_mov_b64 exec, 1
                    buffer_atomic_add v5, v4, s[20:23], 0 offen sc1
                    s_mov_b64 exec, -1
                    {name}_noinc:
                    """)
            pre, rd = reads(t)
            for o in pre: a(o)
        if t < LA:
            for o in rd: a(o)
            continue
        u = t - LA
        up, uj = u >> 2, u & 3
        a(f"s_waitcnt lgkmcnt({7 * (min(t - 1, 31) - u)})")
        wf = WF[u % (LA + 1)]; xf = XF[u & 7]
        for i in range(3):
            c = "0" if u == 0 else vr(ACC[i], 16)
            a(f"v_mfma_f32_32x32x16_bf16 {vr(ACC[i],16)}, {vr(wf+4*i,4)}, {vr(xf,4)}, {c}")
            for o in rd[[0, 3, 5][i]:[3, 5, 7][i]]: a(o)
        if uj == 3:
            z = lambda cond, r: "0" if cond else vr(r, 4)
            for q in range(8):
                x2 = XF[(4 * up) & 7] + 2 * q
                zz = (up == 0 and q < 2)
                a(f"v_mfma_f32_4x4x4_16b_bf16 {vr(SX[q&1],4)}, {vr(ONES,2)}, {vr(x2,2)}, {z(zz, SX[q&1])}")
                a(f"v_mfma_f32_4x4x4_16b_bf16 {vr(SXX[q&1],4)}, {vr(x2,2)}, {vr(x2,2)}, {z(zz, SXX[q&1])}")
                if q < 6:
                    i, hh = q % 3, q // 3
                    a(f"v_mfma_f32_4x4x4_16b_bf16 {vr(CS[i],4)}, {vr(ONES,2)}, {vr(wf+4*i+2*hh,2)}, {z(up == 0 and hh == 0, CS[i])}")
    stamp(a, 2)
    a.c("publish colsum partials P[col][tile]; finish the row statistics (lane = token)")
    a(f"""
    s_nop 1
    v_mov_b32 v{CS[2]+1}, v{CS[2]}
    v_permlane32_swap_b32 v{CS[0]}, v{CS[1]}
    s_nop 0
    v_permlane32_swap_b32 v{CS[2]}, v{CS[2]+1}
    v_add_f32 v{CS[0]}, v{CS[0]}, v{CS[1]}
    v_add_f32 v{SX[0]}, v{SX[0]}, v{SX[1]}
    v_add_f32 v{CS[2]}, v{CS[2]}, v{CS[2]+1}
    ds_write_b32 v121, v{CS[0]} offset:{LDS_P-HI}
    ds_write_b32 v122, v{CS[2]} offset:{LDS_P-HI+1024}
    v_pk_add_f32 {vr(SXX[0],2)}, {vr(SXX[0],2)}, {vr(SXX[1],2)}
    v_pk_add_f32 {vr(SXX[0]+2,2)}, {vr(SXX[0]+2,2)}, {vr(SXX[1]+2,2)}
    v_cndmask_b32 v{SXX[0]}, v{SXX[0]}, v{SXX[0]+1}, s[50:51]
    v_cndmask_b32 v{SXX[0]}, v{SXX[0]}, v{SXX[0]+2}, s[52:53]
    v_cndmask_b32 v{SXX[0]}, v{SXX[0]}, v{SXX[0]+3}, s[54:55]
    s_waitcnt lgkmcnt(0)
    s_barrier
    ds_read_b128 v[4:7], v127 offset:{LDS_P-HI}
    ds_read_b128 v[8:11], v123 offset:{LDS_P-HI+1024}
    v_permlane32_swap_b32 v{SX[0]}, v{SXX[0]}
    v_mov_b64 v[40:41], 0
    v_add_f32 v{SX[0]}, v{SX[0]}, v{SXX[0]}
    v_mov_b32 v{SXX[0]}, v{SX[0]}
    v_mov_b64 v[42:43], 0
    v_mov_b64 v[44:45], 0
    v_permlane32_swap_b32 v{SX[0]}, v{SXX[0]}
    v_mov_b64 v[46:47], 0
    v_mul_f32 v{SX[0]}, {f32hex(1/512)}, v{SX[0]}
    v_mul_f32 v{SXX[0]}, {f32hex(1/512)}, v{SXX[0]}
    v_fma_f32 v{SXX[0]}, -v{SX[0]}, v{SX[0]}, v{SXX[0]}
    v_max_f32 v{SXX[0]}, 0, v{SXX[0]}
    v_add_f32 v{SXX[0]}, {f32hex(1e-5)}, v{SXX[0]}
    v_rsq_f32 v{SXX[0]}, v{SXX[0]}
    s_waitcnt lgkmcnt(0)
    v_pk_add_f32 v[4:5], v[4:5], v[6:7]
    v_pk_add_f32 v[8:9], v[8:9], v[10:11]
    v_add_f32 v4, v4, v5
    v_add_f32 v8, v8, v9
    ds_write_b32 v119, v4 offset:{LDS_CS-HI}
    ds_write_b32 v119, v8 offset:{LDS_CS-HI+256}
    v_mul_f32 v16, s61, v{SXX[0]}
    v_mul_f32 v18, s66, v{SXX[0]}
    v_mul_f32 v17, v{SX[0]}, v16
    v_mul_f32 v19, v{SX[0]}, v18
    v_sub_f32 v17, 0, v17
    v_sub_f32 v19, 0, v19
    v_mov_b64 v[48:49], 0
    v_mov_b64 v[50:51], 0
    s_waitcnt lgkmcnt(0)
    """)
    CSB = 128; PK = 176
    for n in range(3):
        for g in range(4):
            a(f"ds_read_b128 {vr(CSB+16*n+4*g,4)}, v118 offset:{LDS_CS-HI+128*n+32*g}")
    for n in range(3):
        ab = 16 if n < 2 else 18
        for i in range(0, 16, 2):
            a(f"v_pk_mul_f32 {vr(ACC[n]+i,2)}, {vr(ACC[n]+i,2)}, {vr(ab,2)} op_sel_hi:[1,0]")
    def finish(n):
        ab = 16 if n < 2 else 18
        for i in range(0, 16, 2):
            a(f"v_pk_fma_f32 {vr(ACC[n]+i,2)}, {vr(CSB+16*n+i,2)}, {vr(ab,2)}, {vr(ACC[n]+i,2)} op_sel:[0,1,0] op_sel_hi:[1,1,1]")
        for i in range(8):
            a(f"v_cvt_pk_bf16_f32 v{PK+8*n+i}, v{ACC[n]+2*i}, v{ACC[n]+2*i+1}")
    def norm(n):
        for i in range(0, 8, 2):
            a(f"v_pk_fma_f32 {vr(40+4*n,2)}, {vr(ACC[n]+i,2)}, {vr(ACC[n]+i,2)}, {vr(40+4*n,2)}")
            a(f"v_pk_fma_f32 {vr(42+4*n,2)}, {vr(ACC[n]+8+i,2)}, {vr(ACC[n]+8+i,2)}, {vr(42+4*n,2)}")
    def store(tiles, ty, dst, tag):
        a(f"""
        s_cmp_eq_u32 s{ty}, 2
        s_cbranch_scc1 {name}_v{tag}
        """)
        for k, n in enumerate(tiles):
            a(f"s_add_u32 s47, s{dst}, {k*0x20000:#x}")
            a(f"s_add_u32 s35, s{dst}, {k*0x20000+0x10000:#x}")
            a(f"buffer_store_dwordx4 {vr(PK+8*n,4)}, v120, s[24:27], s47 offen {QKV_SC}")
            a(f"buffer_store_dwordx4 {vr(PK+8*n+4,4)}, v120, s[24:27], s35 offen {QKV_SC}")
        for n in tiles: norm(n)
        a(f"s_branch {name}_n{tag}")
        a.label(f"{name}_v{tag}")
        a.c("V tiles: transpose through LDS (wave-private scratch) into [head][tile][c][h][m][8 keys]")
        for n in tiles:
            for g in range(4):
                a(f"ds_write_b64 v124, {vr(PK+8*n+2*g,2)} offset:{n*2304+16*g}")
        norm(tiles[0])
        a("s_waitcnt lgkmcnt(0)")
        for n in tiles:
            for c in range(2):
                a(f"ds_read_b64_tr_b16 {vr(CSB+16*n+4*c,2)}, v125 offset:{n*2304+c*16*72}")
                a(f"ds_read_b64_tr_b16 {vr(CSB+16*n+4*c+2,2)}, v125 offset:{n*2304+c*16*72+4*72}")
        for n in tiles[1:]: norm(n)
        for k, n in enumerate(tiles):
            a(f"s_add_u32 s47, s{dst}, {k*0x20000:#x}")
            a(f"s_waitcnt lgkmcnt({4*(len(tiles)-1-k)})")
            a(f"buffer_store_dwordx4 {vr(CSB+16*n,4)}, v126, s[24:27], s47 offen {QKV_SC}")
            a(f"buffer_store_dwordx4 {vr(CSB+16*n+4,4)}, v126, s[24:27], s47 offen offset:512 {QKV_SC}")
        a.label(f"{name}_n{tag}")
    a("s_waitcnt lgkmcnt(4)")
    finish(0); finish(1)
    a("s_waitcnt lgkmcnt(0)")
    finish(2)
    store([0, 1], 60, 46, "p")
    store([2], 63, 64, "s")
    a.c("max squared norm over tokens and both heads of each sub-tile")
    for n in range(3):
        a(f"v_add_f32 v{40+4*n}, v{40+4*n}, v{41+4*n}")
        a(f"v_add_f32 v{42+4*n}, v{42+4*n}, v{43+4*n}")
    a("s_mov_b32 s34, 0")
    for n in range(3):
        a(f"v_permlane32_swap_b32 v{40+4*n}, v{42+4*n}")
    a("v_mov_b32 v4, 0")
    for n in range(3):
        a(f"v_add_f32 v{40+4*n}, v{40+4*n}, v{42+4*n}")
    a("s_mov_b32 s35, 0x80000000")
    for dpp in DPP_MAX:
        for n in range(3):
            a(f"v_max_u32_dpp v{40+4*n}, v{40+4*n}, v{40+4*n} {dpp}")
    a(f"""
    v_mov_b32 v4, s44
    s_mov_b64 exec, s[34:35]
    ds_write_b32 v4, v40 offset:{LDS_NR-HI}
    ds_write_b32 v4, v44 offset:{LDS_NR-HI+16}
    ds_write_b32 v4, v48 offset:{LDS_NR-HI+32}
    s_mov_b64 exec, -1
    s_waitcnt vmcnt(0) lgkmcnt(0)
    {name}_J:
    s_barrier
    """)
    stamp(a, 3)
    a.c("wave 4 publishes the norms of this workgroup's three sub-tiles (they double as 'written' flags)")
    a(f"""
    s_cmp_lg_u32 s28, 4
    s_cbranch_scc1 {name}_nopub
    v_lshlrev_b32 v4, 4, v{LANE}
    v_add_u32 v4, {LDS_NR:#x}, v4
    s_mov_b64 exec, 7
    ds_read_b128 v[8:11], v4
    s_add_u32 s33, s57, 1
    v_mov_b32 v5, s57
    v_writelane_b32 v5, s33, 1
    v_writelane_b32 v5, s58, 2
    s_lshl_b32 s33, s31, 7
    s_add_u32 s33, s33, {WS_NRM:#x}
    v_lshlrev_b32 v5, 11, v5
    s_waitcnt lgkmcnt(0)
    v_min_u32 v8, 0x7fffffff, v8
    buffer_store_dwordx4 v[8:11], v5, s[24:27], s33 offen sc1
    s_mov_b64 exec, -1
    {name}_nopub:
    """)
```

```python
from asmlib import *
from layout import *
from k1 import LDS_NR as K1_NR

LDS_WO = 65536
LDS_ST = LDS_WO + 65536
LDS_FF = LDS_ST + 4096
KB_LDS = LDS_FF + 1024
LOG2E = 1.4426950408889634
SPIN = 200000

def rnd_bf16(a, d, s):
    a(f"v_cvt_pk_bf16_f32 v{d}, v{s}, v{s}")
    a(f"v_and_b32 v{d}, 0xffff0000, v{d}")

def gen_kb(a, name):
    S = [16, 32, 48, 64]
    O = [80, 96, 112, 128]
    Q = [144, 148, 152, 156]
    KB = [160, 164, 168, 172]
    VB = [176, 184, 192, 200]
    IDX = 208
    MX = [209, 210, 211, 212]
    XR = 216; WR = 220; GW = 224; UW = 228; WD = 232; WRF = 240
    VWO = 213; VXO = 214; VGU = 215; VT2 = 244; VCG = 245
    VKQ = 4; VV = 5; LANE = 2; L31 = 3; HALF = 6; L16 = 7
    a(f"""
    s_load_dwordx2 s[4:5], s[0:1], 0
    s_load_dwordx2 s[6:7], s[0:1], 16
    s_load_dwordx4 s[8:11], s[0:1], 32
    s_load_dwordx4 s[12:15], s[0:1], 48
    s_load_dwordx2 s[16:17], s[0:1], 64
    s_setprio 3
    s_lshl_b32 s31, s29, 2
    s_lshr_b32 s33, s30, 3
    s_add_u32 s31, s31, s33
    s_and_b32 s32, s30, 7
    v_and_b32 v{L31}, 31, v{LANE}
    v_lshrrev_b32 v{HALF}, 5, v{LANE}
    v_lshlrev_b32 v{VKQ}, 5, v{L31}
    v_lshl_add_u32 v{VKQ}, v{HALF}, 4, v{VKQ}
    v_and_b32 v{VV}, 15, v{LANE}
    v_lshlrev_b32 v{VV}, 4, v{VV}
    v_lshl_add_u32 v{VV}, v{HALF}, 8, v{VV}
    v_lshlrev_b32 v{L16}, 4, v{LANE}
    s_and_b32 s34, s28, 1
    s_lshr_b32 s35, s28, 1
    """)
    a.c("s28=wave s31=head(=rowblock later) s32=qblock(=colblock later) s34=qg(=tt) s35=kq")
    a(f"""
    s_lshl_b32 s40, s31, 16
    s_lshl_b32 s33, s32, 13
    s_add_u32 s41, s40, s33
    s_lshl_b32 s33, s34, 12
    s_add_u32 s41, s41, s33
    s_lshl_b32 s33, s35, 14
    s_add_u32 s42, s40, s33
    s_add_u32 s43, s42, {WS_V:#x}
    s_add_u32 s42, s42, {WS_K:#x}
    s_lshl_b32 s45, s32, 1
    s_add_u32 s45, s45, s34
    s_lshl_b32 s45, s45, 10
    s_mov_b32 s46, 0x0000ffff
    s_mov_b32 s47, 0x0000ffff
    s_mov_b32 s23, 0x00020000
    v_and_b32 v8, 27, v{LANE}
    v_mov_b32 v9, 0x3f803f80
    v_cmp_eq_u32 vcc, 16, v8
    v_mov_b32 v{IDX}, 0xdddddddd
    s_nop 0
    v_cndmask_b32 v8, 0, v9, vcc
    v_cndmask_b32 v9, 0, v9, vcc
    """)
    for b in range(4):
        for r in range(0, 8, 2):
            a(f"v_mov_b64 {vr(VB[b]+r,2)}, v[8:9]")
    outst = []
    def vm(tag): outst.append(tag)
    def wait_for(tag):
        idx = max(i for i, t in enumerate(outst) if t == tag)
        n = len(outst) - 1 - idx
        a(f"s_waitcnt vmcnt({n})")
        del outst[:idx + 1]
    def kv_load(b, tag=None, mid=()):
        a("s_add_u32 s48, s42, s45")
        a("s_add_u32 s49, s43, s45")
        a(f"buffer_load_dwordx4 {vr(KB[b],4)}, v{VKQ}, s[24:27], s48 offen sc1")
        if tag is not None: vm("k" + tag)
        for (ins, tg) in mid:
            a(ins); vm(tg)
        a("s_mov_b64 exec, s[46:47]")
        a(f"buffer_load_dwordx4 {vr(VB[b],4)}, v{VV}, s[24:27], s49 offen sc1")
        a(f"buffer_load_dwordx4 {vr(VB[b]+4,4)}, v{VV}, s[24:27], s49 offen offset:512 sc1")
        a("s_mov_b64 exec, -1")
        a("s_add_u32 s45, s45, 1024")
        a("s_and_b32 s45, s45, 0x3fff")
        if tag is not None:
            for _ in range(2): vm(tag)
    for qt in range(4):
        for r in range(0, 16, 2):
            a(f"v_mov_b64 {vr(O[qt]+r,2)}, 0")
    a.c("addresses for the side loads (operands of the later phases, fetched under the attention loop)")
    a(f"""
    v_lshrrev_b32 v12, 3, v{LANE}
    v_lshlrev_b32 v{VWO}, 10, v12
    v_and_b32 v12, 7, v{LANE}
    v_bfe_u32 v13, v{LANE}, 4, 1
    v_lshlrev_b32 v13, 2, v13
    v_xor_b32 v12, v12, v13
    v_lshl_add_u32 v{VWO}, v12, 4, v{VWO}
    v_and_b32 v12, 7, v{LANE}
    v_lshlrev_b32 v{VXO}, 10, v12
    v_lshrrev_b32 v12, 3, v{LANE}
    v_lshlrev_b32 v{VCG}, 4, v12
    v_add_u32 v{VXO}, v{VCG}, v{VXO}
    v_mul_u32_u24 v{VGU}, 3584, v0
    v_lshlrev_b32 v{VT2}, 1, v0
    s_mul_i32 s60, s29, 28
    s_add_u32 s60, s60, s30
    s_lshl_b32 s61, s28, 16
    s_lshl_b32 s33, s32, 7
    s_add_u32 s61, s61, s33
    s_lshl_b32 s62, s28, 13
    s_add_u32 s62, s62, {LDS_WO}
    s_lshl_b32 s63, s32, 7
    s_lshl_b32 s64, s31, 16
    s_lshl_b32 s33, s34, 15
    s_add_u32 s64, s64, s33
    s_lshl_b32 s33, s35, 13
    s_add_u32 s64, s64, s33
    s_add_u32 s64, s64, s63
    s_cmp_lt_u32 s30, 28
    s_cselect_b32 s65, {512*1792*2:#x}, 0
    """)
    a.c("s60=ffn slice j, s61=Wo global off, s62=Wo lds off, s63=col byte off of this wave's 8-col piece, s64=x/out off, s65=ffn weight bytes (0: none)")
    def side_ops():
        ops = []
        def tsrd(p, nbytes):
            return f"s_mov_b32 s20, s{p}\ns_and_b32 s21, s{p+1}, 0xffff\ns_mov_b32 s22, {nbytes}\n"
        for i in range(8):
            ops.append(tsrd(6, hex(512*512*2)) + f"s_add_u32 m0, s62, {i*1024}\ns_add_u32 s33, s61, {i*8192}\nbuffer_load_dwordx4 v{VWO}, s[20:23], s33 offen lds")
        ops.append(tsrd(4, hex(2048*512*2)) + f"buffer_load_dwordx4 {vr(XR,4)}, v{VXO}, s[20:23], s64 offen")
        ops.append(tsrd(8, 1024) + f"buffer_load_dwordx4 {vr(WR,4)}, v{VCG}, s[20:23], s63 offen")
        ops.append(tsrd(8, 1024) + f"buffer_load_dwordx4 {vr(WRF,4)}, v{L16}, s[20:23], 0 offen")
        ops.append(tsrd(10, "s65") + f"s_lshl_b32 s33, s60, 4\nbuffer_load_dwordx4 {vr(GW,4)}, v{VGU}, s[20:23], s33 offen")
        ops.append(tsrd(12, "s65") + f"s_lshl_b32 s33, s60, 4\nbuffer_load_dwordx4 {vr(UW,4)}, v{VGU}, s[20:23], s33 offen")
        for f in range(8):
            ops.append(tsrd(14, "s65") + f"s_lshl_b32 s33, s60, 13\ns_add_u32 s33, s33, {f*1024}\nbuffer_load_ushort v{WD+f}, v{VT2}, s[20:23], s33 offen")
        return ops
    a.c("wave 4 waits for the 48 producer records of this head pair and decides the softmax path:")
    a.c("zero stand-in iff max|q|^2*max|k|^2 <= 50^2 and max|v|^2 <= 2^120, else the true-max path")
    a(f"""
    s_cmp_lg_u32 s28, 4
    s_cbranch_scc1 {name}_K
    v_lshrrev_b32 v8, 4, v{LANE}
    v_min_u32 v8, 2, v8
    v_lshlrev_b32 v8, 15, v8
    v_and_b32 v9, 15, v{LANE}
    v_lshl_add_u32 v12, v9, 7, v8
    s_lshr_b32 s44, s31, 1
    s_lshl_b32 s44, s44, 11
    s_add_u32 s44, s44, {WS_NRM:#x}
    s_mov_b32 s53, 0
    {name}_npoll:
    buffer_load_dwordx4 v[8:11], v12, s[24:27], s44 offen sc1
    s_add_u32 s53, s53, 1
    s_waitcnt vmcnt(0)
    v_cmp_eq_u32 vcc, -1, v8
    s_cmp_gt_u32 s53, {SPIN}
    s_cbranch_scc1 {name}_ndone
    s_cbranch_vccnz {name}_npoll
    {name}_ndone:
    v_max_u32 v8, v8, v9
    v_max3_u32 v8, v8, v10, v11
    s_nop 1
    """)
    for ror in (8, 4, 2, 1):
        a(f"v_max_u32_dpp v8, v8, v8 row_ror:{ror} row_mask:0xf bank_mask:0xf")
        a("s_nop 1")
    a(f"""
    v_readlane_b32 s50, v8, 16
    v_readlane_b32 s51, v8, 32
    v_mov_b32 v9, {K1_NR+64:#x}
    v_mul_f32 v8, s50, v8
    s_cmp_gt_u32 s51, {f32hex(2.0**120)}
    s_cselect_b32 s51, -1, 0
    v_or_b32 v8, s51, v8
    s_mov_b64 exec, 1
    ds_write_b32 v9, v8
    s_mov_b64 exec, -1
    s_waitcnt lgkmcnt(0)
    {name}_K:
    s_waitcnt lgkmcnt(0)
    s_barrier
    v_mov_b32 v9, {K1_NR+64:#x}
    ds_read_b32 v8, v9
    """)
    stamp(a, 4)
    a(f"buffer_load_dwordx4 {vr(Q[0],4)}, v{VKQ}, s[24:27], s41 offen sc1"); vm("q0")
    kv_load(0, "kv0", mid=[(f"buffer_load_dwordx4 {vr(Q[1],4)}, v{VKQ}, s[24:27], s41 offen offset:1024 sc1", "q1")])
    for qt in range(2, 4):
        a(f"buffer_load_dwordx4 {vr(Q[qt],4)}, v{VKQ}, s[24:27], s41 offen offset:{qt*1024} sc1"); vm(f"q{qt}")
    for b in range(1, 3):
        kv_load(b, f"kv{b}")
    a(f"""
    s_waitcnt lgkmcnt(0)
    v_readfirstlane_b32 s50, v8
    s_nop 3
    s_cmp_gt_u32 s50, {f32hex(2500.0)}
    s_cbranch_scc1 {name}_slow
    """)
    wait_for("kkv0")
    a(f"v_mfma_f32_32x32x16_bf16 {vr(S[0],16)}, {vr(KB[0],4)}, {vr(Q[0],4)}, 0")
    stamp(a, 5)
    a("s_setprio 2")
    a("s_nop 10")
    sides = side_ops()
    for kt in range(16):
        kb = kt & 3
        if kt == 5: a("s_setprio 1")
        if kt == 11: a("s_setprio 0")
        for qt in range(4):
            t = kt * 4 + qt
            nq = (qt + 1) & 3; nkt = kt if qt < 3 else kt + 1
            pq = (qt - 1) & 3; pkt = kt if qt > 0 else kt - 1
            if t < 63:
                if qt == 3:
                    wait_for(f"kv{nkt}")
                if t < 3:
                    wait_for(f"q{t+1}")
                a(f"v_mfma_f32_32x32x16_bf16 {vr(S[nq],16)}, {vr(KB[nkt&3],4)}, {vr(Q[nq],4)}, 0")
            for i in range(16):
                if t > 0 and i == 5:
                    a(f"v_smfmac_f32_32x32x32_bf16 {vr(O[pq],16)}, {vr(VB[pkt&3],4)}, {vr(S[pq],8)}, v{IDX}")
                if t > 0 and i == 10:
                    a(f"v_smfmac_f32_32x32x32_bf16 {vr(O[pq],16)}, {vr(VB[pkt&3]+4,4)}, {vr(S[pq]+8,8)}, v{IDX}")
                a(f"v_exp_f32 v{S[qt]+i}, v{S[qt]+i}")
            if qt == 0 and kt + 3 < 16:
                kv_load((kt + 3) & 3, f"kv{kt+3}")
            nearly = 11
            if qt in (1, 2) and kt >= 1 and len(sides) > 21 - nearly:
                a(sides.pop(0)); vm("side")
            if kt >= 12 and qt >= 1 and sides and len(sides) <= 21 - nearly:
                for _ in range(2 if len(sides) < 9 else 1):
                    if sides:
                        a(sides.pop(0)); vm("late")
    assert not sides
    a(f"""
    s_nop 1
    v_smfmac_f32_32x32x32_bf16 {vr(O[3],16)}, {vr(VB[3],4)}, {vr(S[3],8)}, v{IDX}
    v_smfmac_f32_32x32x32_bf16 {vr(O[3],16)}, {vr(VB[3]+4,4)}, {vr(S[3]+8,8)}, v{IDX}
    """)
    a.label(f"{name}_combine")
    a.c("combine the 4 key-quarter partials through LDS; wave (qg,kq) finalises q-tile kq")
    a(f"""
    s_mul_i32 s53, s34, {4*3*2304}
    v_lshlrev_b32 v8, 2, v{LANE}
    s_nop 7
    """)
    for d in range(4):
        a(f"""
        s_cmp_eq_u32 s35, {d}
        s_cbranch_scc1 {name}_w{d}
        s_cmp_gt_u32 s35, {d}
        s_cselect_b32 s54, 1, 0
        s_sub_u32 s54, s35, s54
        s_mul_i32 s54, s54, 2304
        s_add_u32 s54, s54, s53
        v_add_u32 v9, s54, v{L16}
        v_add_u32 v10, s54, v8
        ds_write_b128 v9, {vr(O[d],4)} offset:{d*3*2304}
        ds_write_b128 v9, {vr(O[d]+4,4)} offset:{d*3*2304+1024}
        ds_write_b32 v10, v{O[d]+8} offset:{d*3*2304+2048}
        s_branch {name}_x{d}
        {name}_w{d}:
        """)
        for r in range(0, 8, 2):
            a(f"v_mov_b64 {vr(S[0]+r,2)}, {vr(O[d]+r,2)}")
        a(f"v_mov_b32 v{S[0]+8}, v{O[d]+8}")
        a.label(f"{name}_x{d}")
    a(f"""
    s_mul_i32 s54, s35, {3*2304}
    s_add_u32 s54, s54, s53
    v_add_u32 v9, s54, v{L16}
    v_add_u32 v10, s54, v8
    s_waitcnt vmcnt(10) lgkmcnt(0)
    s_barrier
    """)
    for si in range(3):
        b = 32 + 12 * si
        a(f"ds_read_b128 {vr(b,4)}, v9 offset:{si*2304}")
        a(f"ds_read_b128 {vr(b+4,4)}, v9 offset:{si*2304+1024}")
        a(f"ds_read_b32 v{b+8}, v10 offset:{si*2304+2048}")
    a(f"""
    s_lshl_b32 s33, s35, 10
    s_add_u32 s41, s41, s33
    s_add_u32 s41, s41, {WS_O:#x}
    """)
    for si in range(3):
        b = 32 + 12 * si
        a(f"s_waitcnt lgkmcnt({6-3*si})")
        for r in range(0, 8, 2):
            a(f"v_pk_add_f32 {vr(S[0]+r,2)}, {vr(S[0]+r,2)}, {vr(b+r,2)}")
        a(f"v_add_f32 v{S[0]+8}, v{S[0]+8}, v{b+8}")
    a(f"v_rcp_f32 v{S[0]+8}, v{S[0]+8}")
    a("s_nop 0")
    for r in range(0, 8, 2):
        a(f"v_pk_mul_f32 {vr(S[0]+r,2)}, {vr(S[0]+r,2)}, {vr(S[0]+8,2)} op_sel_hi:[1,0]")
    for r in range(4):
        a(f"v_cvt_pk_bf16_f32 v{12+r}, v{S[0]+2*r}, v{S[0]+2*r+1}")
    a(f"buffer_store_dwordx4 v[12:15], v{VKQ}, s[24:27], s41 offen sc1")
    stamp(a, 6)
    BF = 16
    AF = 96
    AC = [48, 64]
    a.c("==== out projection: wave (tt,kq): tokens 32tt.., heads 8kq..8kq+7, 64 columns")
    a(f"""
    s_lshl_b32 s40, s35, 19
    s_lshl_b32 s33, s31, 11
    s_add_u32 s40, s40, s33
    s_lshl_b32 s33, s34, 10
    s_add_u32 s40, s40, s33
    s_add_u32 s40, s40, {WS_O:#x}
    s_mov_b32 s52, 0xff
    s_mov_b32 s53, 0
    s_barrier
    """)
    def o_issue():
        for f in range(8):
            a(f"""
            s_bitcmp1_b32 s52, {f}
            s_cbranch_scc0 {name}_oi{f}_{o_issue.n}
            s_add_u32 s33, s40, {f*65536}
            buffer_load_dwordx4 {vr(BF+4*f,4)}, v{VKQ}, s[24:27], s33 offen sc1
            {name}_oi{f}_{o_issue.n}:
            """)
        o_issue.n += 1
    o_issue.n = 0
    for f in range(8):
        a(f"s_add_u32 s33, s40, {f*65536}")
        a(f"buffer_load_dwordx4 {vr(BF+4*f,4)}, v{VKQ}, s[24:27], s33 offen sc1")
    a.c("Wo fragments from LDS (transposing reads, 4-column chunks permuted so a lane ends with 16 consecutive columns)")
    a(f"""
    v_bfe_u32 v8, v{LANE}, 2, 2
    v_lshlrev_b32 v9, 10, v{HALF}
    v_lshl_add_u32 v9, v8, 7, v9
    v_bfe_u32 v8, v{LANE}, 3, 1
    v_lshl_add_u32 v9, v8, 6, v9
    v_and_b32 v8, 1, v{LANE}
    v_lshl_add_u32 v9, v8, 5, v9
    v_bfe_u32 v8, v{LANE}, 4, 1
    v_lshl_add_u32 v9, v8, 4, v9
    v_bfe_u32 v8, v{LANE}, 1, 1
    v_lshl_add_u32 v9, v8, 3, v9
    s_lshl_b32 s33, s35, 14
    s_add_u32 s33, s33, {LDS_WO}
    v_add_u32 v9, s33, v9
    v_xor_b32 v10, 64, v9
    """)
    for ks in range(8):
        for ct in range(2):
            r = AF + 4 * (ks * 2 + ct)
            a(f"ds_read_b64_tr_b16 {vr(r,2)}, v{9+ct} offset:{ks*2048}")
            a(f"ds_read_b64_tr_b16 {vr(r+2,2)}, v{9+ct} offset:{ks*2048+512}")
    a.c("sum of w_r, unpack x and w_down while waiting")
    a(f"""
    v_mov_b32 v14, 0x3f803f80
    s_mov_b32 s66, 0xffff0000
    v_dot2_f32_bf16 v15, v{WRF}, v14, 0
    v_dot2_f32_bf16 v15, v{WRF+1}, v14, v15
    v_dot2_f32_bf16 v15, v{WRF+2}, v14, v15
    v_dot2_f32_bf16 v15, v{WRF+3}, v14, v15
    """)
    XU = 160
    for i in range(4):
        a(f"v_lshlrev_b32 v{XU+2*i}, 16, v{XR+i}")
        a(f"v_and_b32 v{XU+2*i+1}, s66, v{XR+i}")
    a("s_waitcnt vmcnt(9)")
    for n, ror in enumerate((8, 4, 2, 1)):
        a(f"v_add_f32_dpp v15, v15, v15 row_ror:{ror} row_mask:0xf bank_mask:0xf")
        a(f"v_lshlrev_b32 v{WD+2*n}, 16, v{WD+2*n}")
        a(f"v_lshlrev_b32 v{WD+2*n+1}, 16, v{WD+2*n+1}")
    a(f"""
    v_readlane_b32 s50, v15, 0
    v_readlane_b32 s51, v15, 16
    v_readlane_b32 s54, v15, 32
    v_readlane_b32 s55, v15, 48
    v_mov_b32 v15, s50
    v_add_f32 v15, s51, v15
    v_add_f32 v15, s54, v15
    v_add_f32 v15, s55, v15
""")
    for ct in range(2):
        for r in range(0, 16, 2):
            a(f"v_mov_b64 {vr(AC[ct]+r,2)}, 0")
    a(f"""
    s_waitcnt lgkmcnt(0)
    {name}_opoll:
    s_waitcnt vmcnt(0)
    """)
    for f in range(8):
        a(f"""
        s_bitcmp1_b32 s52, {f}
        s_cbranch_scc0 {name}_oc{f}
        v_cmp_eq_u32 vcc, -1, v{BF+4*f}
        s_cbranch_vccnz {name}_or{f}
        {name}_om{f}:
        s_bitset0_b32 s52, {f}
        v_mfma_f32_32x32x16_bf16 {vr(AC[0],16)}, {vr(AF+8*f,4)}, {vr(BF+4*f,4)}, {vr(AC[0],16)}
        v_mfma_f32_32x32x16_bf16 {vr(AC[1],16)}, {vr(AF+8*f+4,4)}, {vr(BF+4*f,4)}, {vr(AC[1],16)}
        s_branch {name}_oc{f}
        {name}_or{f}:
        s_cmp_gt_u32 s53, {SPIN}
        s_cbranch_scc1 {name}_om{f}
        s_add_u32 s33, s40, {f*65536}
        buffer_load_dwordx4 {vr(BF+4*f,4)}, v{VKQ}, s[24:27], s33 offen sc1
        {name}_oc{f}:
        """)
    a(f"""
    s_add_u32 s53, s53, 1
    s_cmp_lg_u32 s52, 0
    s_cbranch_scc1 {name}_opoll
    """)
    stamp(a, 7)
    a.c("split-K reduction: every wave stores its 32x64 partial; wave kq then owns tokens 8kq..8kq+7, lane -> (token l&7, 8-column group l>>3)")
    a(f"""
    s_lshl_b32 s53, s28, 13
    v_add_u32 v9, s53, v{L16}
    v_and_b32 v10, 7, v{LANE}
    s_lshl_b32 s33, s35, 3
    v_add_u32 v10, s33, v10
    v_bfe_u32 v11, v{LANE}, 4, 1
    v_lshl_add_u32 v10, v11, 5, v10
    v_lshlrev_b32 v10, 4, v10
    v_bfe_u32 v11, v{LANE}, 3, 1
    v_lshl_add_u32 v10, v11, 11, v10
    v_lshl_add_u32 v10, v{HALF}, 12, v10
    s_lshl_b32 s33, s34, 13
    v_add_u32 v10, s33, v10
    """)
    for g in range(8):
        a(f"ds_write_b128 v9, {vr(AC[0]+4*g,4)} offset:{g*1024}")
    a(f"""
    s_lshl_b32 s40, s31, 13
    s_add_u32 s40, s40, {WS_PST:#x}
    s_lshl_b32 s33, s34, 9
    s_add_u32 s40, s40, s33
    s_lshl_b32 s33, s35, 7
    s_add_u32 s40, s40, s33
    s_lshl_b32 s33, s32, 10
    s_add_u32 s41, s40, s33
    s_waitcnt lgkmcnt(0)
    s_barrier
    """)
    for si in range(4):
        a(f"ds_read_b128 {vr(16+8*si,4)}, v10 offset:{si*16384}")
        a(f"ds_read_b128 {vr(20+8*si,4)}, v10 offset:{si*16384+1024}")
    R = XU
    for si in range(4):
        a(f"s_waitcnt lgkmcnt({6-2*si})")
        for r in range(0, 8, 2):
            a(f"v_pk_add_f32 {vr(R+r,2)}, {vr(R+r,2)}, {vr(16+8*si+r,2)}")
    H = 48
    for i in range(4):
        a(f"v_cvt_pk_bf16_f32 v{H+i}, v{R+2*i}, v{R+2*i+1}")
    for i in range(4):
        z = lambda r: "0" if i == 0 else f"v{r}"
        a(f"v_dot2_f32_bf16 v52, v{H+i}, v14, {z(52)}")
        a(f"v_dot2_f32_bf16 v53, v{H+i}, v{H+i}, {z(53)}")
        a(f"v_dot2_f32_bf16 v54, v{H+i}, v{WR+i}, {z(54)}")
    HU = 56
    def red3(x, y, z, fill):
        t = [80, 81, 82]
        f = lambda: a(fill.pop(0)) if fill else a("s_nop 0")
        for r in (x, y, z):
            a(f"v_add_f32_dpp v{r}, v{r}, v{r} row_ror:8 row_mask:0xf bank_mask:0xf")
        for op in ("v_permlane16_swap_b32", "v_permlane32_swap_b32"):
            for r, tt in zip((x, y, z), t):
                a(f"v_mov_b32 v{tt}, v{r}")
            for r, tt in zip((x, y, z), t):
                a(f"{op} v{r}, v{tt}")
            for r, tt in zip((x, y, z), t):
                a(f"v_add_f32 v{r}, v{r}, v{tt}")
    for i in range(2):
        a(f"v_lshlrev_b32 v{HU+2*i}, 16, v{H+i}")
        a(f"v_and_b32 v{HU+2*i+1}, s66, v{H+i}")
    a("v_mov_b32 v55, 0")
    red3(52, 53, 54, [])
    a(f"""
    s_mov_b64 exec, 0xff
    buffer_store_dwordx4 v[52:55], v{L16}, s[24:27], s41 offen sc1
    s_mov_b64 exec, -1
    """)
    stamp(a, 8)
    for i in range(2, 4):
        a(f"v_lshlrev_b32 v{HU+2*i}, 16, v{H+i}")
        a(f"v_and_b32 v{HU+2*i+1}, s66, v{H+i}")
    a.c("==== hop A: lane (token l&7, column block l>>3) gathers one partial record")
    a(f"""
    v_and_b32 v9, 7, v{LANE}
    v_lshlrev_b32 v11, 4, v9
    v_lshl_add_u32 v11, v{VCG}, 6, v11
    s_mov_b32 s53, 0
    s_mov_b32 s48, {f32hex(1/512)}
    s_mov_b32 s49, {f32hex(1e-5)}
    s_lshl_b32 s33, s31, 6
    s_lshl_b32 s54, s34, 5
    s_add_u32 s33, s33, s54
    s_lshl_b32 s54, s35, 3
    s_add_u32 s33, s33, s54
    s_sub_u32 s33, 2047, s33
    v_sub_u32 v28, s33, v9
    s_mov_b32 s56, s16
    s_and_b32 s57, s17, 0xffff
    s_mov_b32 s58, {2048*512*2:#x}
    s_mov_b32 s59, 0x00020000
    {name}_apoll:
    buffer_load_dwordx4 v[24:27], v11, s[24:27], s40 offen sc1
    s_add_u32 s53, s53, 1
    s_waitcnt vmcnt(0)
    v_cmp_ne_u32 vcc, 0, v27
    s_cmp_gt_u32 s53, {SPIN}
    s_cbranch_scc1 {name}_adone
    s_cbranch_vccnz {name}_apoll
    {name}_adone:
    """)
    red3(24, 25, 26, [])
    a(f"""
    v_mul_f32 v24, s48, v24
    v_mul_f32 v25, s48, v25
    v_fma_f32 v25, -v24, v24, v25
    v_fma_f32 v26, -v24, v15, v26
    v_max_f32 v25, 0, v25
    v_add_f32 v25, s49, v25
    v_rsq_f32 v25, v25
    s_lshl_b32 s33, s28, 2
    s_add_u32 s33, s33, {LDS_ST}
    v_mul_f32 v26, v26, v25
    """)
    stamp(a, 9)
    a.c("v24=mean v25=rstd v26=r ; key = ordered(r) top 21 bits | (2047-row)")
    a(f"""
    v_ashrrev_i32 v27, 31, v26
    v_cmp_o_f32 vcc, v26, v26
    v_or_b32 v27, 0x80000000, v27
    v_xor_b32 v27, v27, v26
    v_and_b32 v27, 0xfffff800, v27
    v_cndmask_b32 v27, 0, v27, vcc
    v_or_b32 v27, v27, v28
    v_mov_b32 v28, v27
    v_mul_f32 v30, v24, v25
    v_add_f32 v31, 1.0, v25
    v_max_u32_dpp v28, v28, v28 row_ror:4 row_mask:0xf bank_mask:0xf
    v_mov_b32 v9, s33
    v_mov_b32 v10, {LDS_ST}
    v_max_u32_dpp v28, v28, v28 row_ror:2 row_mask:0xf bank_mask:0xf
    v_fma_f32 v64, v{HU}, v31, -v30
    v_fma_f32 v65, v{HU+1}, v31, -v30
    v_max_u32_dpp v28, v28, v28 row_ror:1 row_mask:0xf bank_mask:0xf
    v_fma_f32 v66, v{HU+2}, v31, -v30
    ds_write_b32 v9, v28
    """)
    for i in range(3, 8):
        a(f"v_fma_f32 v{64+i}, v{HU+i}, v31, -v30")
    a(f"""
    s_waitcnt lgkmcnt(0)
    s_barrier
    ds_read_b128 v[32:35], v10
    ds_read_b128 v[36:39], v10 offset:16
    """)
    for i in range(4):
        a(f"v_cvt_pk_bf16_f32 v{72+i}, v{64+2*i}, v{64+2*i+1}")
    a(f"""
    s_lshl_b32 s33, s31, 10
    s_add_u32 s33, s33, s63
    s_add_u32 s33, s33, {WS_CROW:#x}
    s_lshl_b32 s54, s31, 7
    s_add_u32 s54, s54, {WS_CKEY:#x}
    v_mov_b32 v9, 0
    v_mov_b32 v20, v27
    v_mov_b32 v21, v24
    v_mov_b32 v22, v25
    v_mov_b32 v23, v26
    s_waitcnt lgkmcnt(0)
    v_max3_u32 v32, v32, v33, v34
    v_max3_u32 v36, v36, v37, v38
    v_max3_u32 v32, v32, v35, v39
    v_max_u32 v32, v32, v36
    v_cmp_eq_u32 vcc, v32, v27
    s_mov_b64 s[36:37], vcc
    s_cbranch_vccz {name}_nokey
    """)
    a.c("the candidate row's lanes publish key record (column block 0) and h piece; the others write their output rows")
    a(f"""
    s_mov_b64 exec, s[36:37]
    s_cmp_lg_u32 s32, 0
    s_cbranch_scc1 {name}_nokey2
    buffer_store_dwordx4 v[20:23], v9, s[24:27], s54 offen sc1
    {name}_nokey2:
    buffer_store_dwordx4 {vr(H,4)}, v{VCG}, s[24:27], s33 offen sc1
    {name}_nokey:
    s_not_b64 exec, s[36:37]
    buffer_store_dwordx4 v[72:75], v{VXO}, s[56:59], s64 offen
    s_mov_b64 exec, -1
    """)
    a.c("==== hop B: wave 0 gathers the 32 candidates and the winner's row, then broadcasts through LDS")
    a(f"""
    s_cmp_lg_u32 s28, 0
    s_cbranch_scc1 {name}_bwait
    v_lshlrev_b32 v9, 7, v{L31}
    s_mov_b32 s40, {WS_CKEY:#x}
    s_mov_b32 s53, 0
    {name}_bpoll:
    buffer_load_dwordx4 v[24:27], v9, s[24:27], s40 offen sc1
    s_add_u32 s53, s53, 1
    s_waitcnt vmcnt(0)
    v_cmp_eq_u32 vcc, -1, v24
    s_cmp_gt_u32 s53, {SPIN}
    s_cbranch_scc1 {name}_bdone
    s_cbranch_vccnz {name}_bpoll
    {name}_bdone:
    v_mov_b32 v28, v24
    s_nop 1
    """)
    for dpp in DPP_MAX[:5]:
        a(f"v_max_u32_dpp v28, v28, v28 {dpp}")
        a("s_nop 1")
    a(f"""
    v_readlane_b32 s69, v28, 31
    s_nop 3
    s_and_b32 s50, s69, 0x7ff
    s_sub_u32 s50, 2047, s50
    s_lshr_b32 s51, s50, 6
    s_lshl_b32 s40, s51, 10
    s_add_u32 s40, s40, {WS_CROW:#x}
    s_mov_b32 s53, 0
    v_cmp_eq_u32 s[38:39], s69, v24
    v_mov_b32 v10, {LDS_ST+64}
    v_add_u32 v11, {LDS_ST+1024}, v{L16}
    {name}_rpoll:
    buffer_load_dwordx4 v[32:35], v{L16}, s[24:27], s40 offen sc1
    s_add_u32 s53, s53, 1
    s_waitcnt vmcnt(0)
    v_cmp_eq_u32 vcc, -1, v32
    s_cmp_gt_u32 s53, {SPIN}
    s_cbranch_scc1 {name}_rdone
    s_cbranch_vccnz {name}_rpoll
    {name}_rdone:
    ds_write_b128 v11, v[32:35]
    s_mov_b64 exec, s[38:39]
    ds_write_b128 v10, v[24:27]
    s_mov_b64 exec, -1
    s_waitcnt lgkmcnt(0)
    {name}_bwait:
    s_barrier
    v_mov_b32 v10, {LDS_ST+64}
    v_add_u32 v11, {LDS_ST+1024}, v{VT2}
    ds_read_b128 v[24:27], v10
    ds_read_u16 v29, v11
    s_waitcnt lgkmcnt(0)
    v_readfirstlane_b32 s69, v24
    v_lshlrev_b32 v29, 16, v29
    v_sub_f32 v30, v29, v25
    v_mul_f32 v30, v30, v26
    v_cvt_pk_bf16_f32 v31, v30, v30
    s_and_b32 s50, s69, 0x7ff
    s_sub_u32 s50, 2047, s50
    s_lshr_b32 s51, s50, 6
    v_and_b32 v32, 0xffff, v31
    v_and_b32 v33, s66, v31
    v_mov_b32 v19, v27
    s_cmp_eq_u32 s51, s31
    s_cbranch_scc1 {name}_winner
    s_cmp_eq_u64 s[36:37], 0
    s_cbranch_scc1 {name}_winner
    s_mov_b64 exec, s[36:37]
    buffer_store_dwordx4 v[72:75], v{VXO}, s[56:59], s64 offen
    s_mov_b64 exec, -1
    {name}_winner:
    """)
    stamp(a, 10)
    a(f"""
    s_cmp_eq_u32 s65, 0
    s_cbranch_scc1 {name}_fin
    """)
    ACC = 96
    for m, W in enumerate((GW, UW)):
        for p in range(4):
            a(f"v_dot2_f32_bf16 v{ACC+8*m+2*p}, v{W+p}, v32, 0")
            a(f"v_dot2_f32_bf16 v{ACC+8*m+2*p+1}, v{W+p}, v33, 0")
    a(f"""
    v_lshrrev_b32 v20, 4, v{LANE}
    v_lshlrev_b32 v20, 7, v20
    s_lshl_b32 s33, s28, 2
    s_add_u32 s33, s33, {LDS_FF}
    """)
    for i in range(8):
        a(f"v_permlane32_swap_b32 v{ACC+i}, v{ACC+8+i}")
    for i in range(0, 8, 2):
        a(f"v_pk_add_f32 {vr(ACC+i,2)}, {vr(ACC+i,2)}, {vr(ACC+8+i,2)}")
    a(f"""
    v_add_u32 v20, s33, v20
    v_and_b32 v21, 7, v{LANE}
    """)
    for i in range(4):
        a(f"v_permlane16_swap_b32 v{ACC+i}, v{ACC+4+i}")
    a(f"v_lshlrev_b32 v21, 5, v21")
    for i in range(0, 4, 2):
        a(f"v_pk_add_f32 {vr(ACC+i,2)}, {vr(ACC+i,2)}, {vr(ACC+4+i,2)}")
    a(f"v_add_u32 v21, {LDS_FF}, v21")
    a("s_nop 0")
    for ror in (8, 4, 2, 1):
        for i in range(4):
            a(f"v_add_f32_dpp v{ACC+i}, v{ACC+i}, v{ACC+i} row_ror:{ror} row_mask:0xf bank_mask:0xf")
    a.c("row g holds value 4g+i in reg i ; LDS [value][wave]")
    a(f"""
    ds_write_b32 v20, v{ACC}
    ds_write_b32 v20, v{ACC+1} offset:32
    ds_write_b32 v20, v{ACC+2} offset:64
    ds_write_b32 v20, v{ACC+3} offset:96
    s_waitcnt lgkmcnt(0)
    s_barrier
    ds_read_b128 v[24:27], v21
    ds_read_b128 v[32:35], v21 offset:16
    ds_read_b128 v[36:39], v21 offset:256
    ds_read_b128 v[40:43], v21 offset:272
    v_lshrrev_b32 v20, 5, v0
    v_mul_u32_u24 v20, {224*128}, v20
    v_lshl_add_u32 v20, v{L31}, 2, v20
    s_lshl_b32 s33, s60, 7
    s_add_u32 s33, s33, {WS_YP:#x}
    s_mov_b32 s12, 0x11111111
    s_mov_b32 s13, 0x11111111
    s_waitcnt lgkmcnt(0)
    v_pk_add_f32 v[24:25], v[24:25], v[26:27]
    v_pk_add_f32 v[32:33], v[32:33], v[34:35]
    v_pk_add_f32 v[36:37], v[36:37], v[38:39]
    v_pk_add_f32 v[40:41], v[40:41], v[42:43]
    v_pk_add_f32 v[24:25], v[24:25], v[32:33]
    v_pk_add_f32 v[36:37], v[36:37], v[40:41]
    v_add_f32 v24, v24, v25
    v_add_f32 v36, v36, v37
    """)
    rnd_bf16(a, 24, 24)
    rnd_bf16(a, 36, 36)
    a(f"""
    v_mul_f32 v25, {f32hex(-LOG2E)}, v24
    v_exp_f32 v25, v25
    s_nop 0
    v_add_f32 v25, 1.0, v25
    v_rcp_f32 v25, v25
    s_nop 0
    v_mul_f32 v24, v24, v25
    """)
    rnd_bf16(a, 24, 24)
    a("v_mul_f32 v24, v24, v36")
    rnd_bf16(a, 24, 24)
    a("s_nop 0")
    for f in range(8):
        a(f"v_readlane_b32 s{4+f}, v24, {f}")
    a(f"v_mul_f32 v24, s4, v{WD}")
    for f in range(1, 8):
        a(f"v_fmac_f32 v24, s{4+f}, v{WD+f}")
    a.c("the partial must never equal the sentinel; gather 4 columns per lane for full-line stores")
    a(f"""
    v_cmp_ne_u32 vcc, -1, v24
    v_mov_b32 v27, 0x7fc00000
    s_nop 0
    v_cndmask_b32 v24, v27, v24, vcc
    s_nop 1
    v_mov_b32_dpp v25, v24 quad_perm:[1,1,1,1] row_mask:0xf bank_mask:0xf
    v_mov_b32_dpp v26, v24 quad_perm:[2,2,2,2] row_mask:0xf bank_mask:0xf
    v_mov_b32_dpp v27, v24 quad_perm:[3,3,3,3] row_mask:0xf bank_mask:0xf
    s_mov_b64 exec, s[12:13]
    buffer_store_dwordx4 v[24:27], v20, s[24:27], s33 offen sc1
    s_mov_b64 exec, -1
    """)
    stamp(a, 11)
    a.c("==== hop C: workgroups 0..15 reduce 32 output columns each")
    a(f"""
    s_cmp_ge_u32 s2, 16
    s_cbranch_scc1 {name}_fin
    v_lshlrev_b32 v9, 4, v0
    v_mov_b32 v10, 0x7fffffff
    v_cmp_gt_u32 vcc, 256, v0
    s_mul_i32 s40, s2, {224*128}
    s_add_u32 s40, s40, {WS_YP:#x}
    v_cndmask_b32 v10, v10, v9, vcc
    s_add_u32 s41, s40, 8192
    s_add_u32 s42, s40, 16384
    s_add_u32 s43, s40, 24576
    s_mov_b32 s53, 0
    """)
    rnd_bf16(a, 19, 19)
    a(f"""
    v_mul_f32 v19, {f32hex(-LOG2E)}, v19
    v_exp_f32 v19, v19
    v_and_b32 v31, s66, v31
    v_add_f32 v19, 1.0, v19
    v_rcp_f32 v19, v19
    s_nop 0
    """)
    rnd_bf16(a, 19, 19)
    a(f"""
    {name}_cpoll:
    buffer_load_dwordx4 v[32:35], v9, s[24:27], s40 offen sc1
    buffer_load_dwordx4 v[36:39], v9, s[24:27], s41 offen sc1
    buffer_load_dwordx4 v[40:43], v9, s[24:27], s42 offen sc1
    buffer_load_dwordx4 v[44:47], v10, s[24:27], s43 offen sc1
    s_add_u32 s53, s53, 1
    s_waitcnt vmcnt(0)
    v_max3_u32 v24, v32, v36, v40
    v_max_u32 v24, v24, v44
    v_cmp_eq_u32 vcc, -1, v24
    s_cmp_gt_u32 s53, {SPIN}
    s_cbranch_scc1 {name}_cdone
    s_cbranch_vccnz {name}_cpoll
    {name}_cdone:
    v_pk_add_f32 v[32:33], v[32:33], v[36:37]
    v_pk_add_f32 v[34:35], v[34:35], v[38:39]
    v_pk_add_f32 v[40:41], v[40:41], v[44:45]
    v_pk_add_f32 v[42:43], v[42:43], v[46:47]
    v_pk_add_f32 v[24:25], v[32:33], v[40:41]
    v_pk_add_f32 v[26:27], v[34:35], v[42:43]
    s_lshl_b32 s33, s28, 2
    s_add_u32 s33, s33, {LDS_ST+2048}
    v_permlane32_swap_b32 v24, v26
    v_permlane32_swap_b32 v25, v27
    v_lshrrev_b32 v20, 4, v{LANE}
    v_pk_add_f32 v[24:25], v[24:25], v[26:27]
    v_and_b32 v21, 7, v{LANE}
    v_lshlrev_b32 v20, 5, v20
    v_permlane16_swap_b32 v24, v25
    v_lshl_add_u32 v20, v21, 7, v20
    v_add_u32 v20, s33, v20
    v_add_f32 v24, v24, v25
    v_lshlrev_b32 v22, 5, v{L31}
    v_add_u32 v22, {LDS_ST+2048}, v22
    v_add_f32_dpp v24, v24, v24 row_ror:8 row_mask:0xf bank_mask:0xf
    s_lshr_b32 s33, s2, 1
    s_nop 0
    ds_write_b32 v20, v24
    s_waitcnt lgkmcnt(0)
    s_barrier
    s_cmp_lg_u32 s28, s33
    s_cbranch_scc1 {name}_fin
    ds_read_b128 v[24:27], v22
    ds_read_b128 v[32:35], v22 offset:16
    s_and_b32 s33, s2, 1
    s_lshl_b32 s33, s33, 5
    s_waitcnt lgkmcnt(0)
    v_pk_add_f32 v[24:25], v[24:25], v[26:27]
    v_pk_add_f32 v[32:33], v[32:33], v[34:35]
    v_pk_add_f32 v[24:25], v[24:25], v[32:33]
    v_add_f32 v24, v24, v25
    """)
    rnd_bf16(a, 24, 24)
    a("v_mul_f32 v24, v24, v19")
    rnd_bf16(a, 24, 24)
    a("v_add_f32 v24, v24, v31")
    rnd_bf16(a, 24, 24)
    a(f"""
    v_add_f32 v24, v24, v29
    v_cvt_pk_bf16_f32 v24, v24, v24
    s_lshl_b32 s40, s50, 10
    s_mov_b32 s4, -1
    s_mov_b32 s5, 0
    s_lshl_b64 exec, s[4:5], s33
    buffer_store_short v24, v{VT2}, s[56:59], s40 offen
    {name}_fin:
    """)
    stamp_flush(a, 0, 12)
    a(f"""
    {name}_end:
    s_endpgm
    """)
    a.label(f"{name}_slow")
    a.c("true-max path: side loads first, then pass 1: row maxima over this wave's keys")
    for op in side_ops():
        a(op)
    a(f"""
    s_waitcnt vmcnt(0)
    s_mov_b32 s55, s42
    s_mov_b32 s52, 16
    """)
    for qt in range(4):
        a(f"v_mov_b32 v{MX[qt]}, 0xff800000")
    a.label(f"{name}_s1")
    a(f"buffer_load_dwordx4 {vr(KB[0],4)}, v{VKQ}, s[24:27], s55 offen sc1")
    a("s_add_u32 s55, s55, 1024")
    a("s_waitcnt vmcnt(0)")
    for qt in range(4):
        a(f"v_mfma_f32_32x32x16_bf16 {vr(S[qt],16)}, {vr(KB[0],4)}, {vr(Q[qt],4)}, 0")
    a("s_nop 15")
    for qt in range(4):
        for i in range(0, 16, 2):
            a(f"v_max3_f32 v{MX[qt]}, v{S[qt]+i}, v{S[qt]+i+1}, v{MX[qt]}")
    a(f"""
    s_sub_u32 s52, s52, 1
    s_cmp_lg_u32 s52, 0
    s_cbranch_scc1 {name}_s1
    s_lshl_b32 s53, s28, 10
    v_lshlrev_b32 v8, 2, v{LANE}
    v_add_u32 v9, s53, v8
    """)
    for qt in range(4):
        a(f"ds_write_b32 v9, v{MX[qt]} offset:{qt*256}")
    a(f"""
    s_lshl_b32 s53, s34, 10
    v_lshlrev_b32 v8, 2, v{L31}
    v_add_u32 v9, s53, v8
    s_waitcnt lgkmcnt(0)
    s_barrier
    """)
    for qt in range(4):
        for kq in range(4):
            a(f"ds_read_b32 v{S[0]+2*kq}, v9 offset:{kq*2048+qt*256}\nds_read_b32 v{S[0]+2*kq+1}, v9 offset:{kq*2048+qt*256+128}")
        a("s_waitcnt lgkmcnt(0)")
        a(f"v_max3_f32 v{MX[qt]}, v{S[0]}, v{S[0]+1}, v{S[0]+2}")
        a(f"v_max3_f32 v{MX[qt]}, v{S[0]+3}, v{S[0]+4}, v{MX[qt]}")
        a(f"v_max3_f32 v{MX[qt]}, v{S[0]+5}, v{S[0]+6}, v{MX[qt]}")
        a(f"v_max_f32 v{MX[qt]}, v{S[0]+7}, v{MX[qt]}")
    a(f"""
    s_barrier
    s_mov_b32 s52, 16
    """)
    a.label(f"{name}_s2")
    kv_load(0)
    a("s_waitcnt vmcnt(0)")
    for qt in range(4):
        a(f"v_mfma_f32_32x32x16_bf16 {vr(S[qt],16)}, {vr(KB[0],4)}, {vr(Q[qt],4)}, 0")
    a("s_nop 15")
    for qt in range(4):
        for i in range(16):
            a(f"v_sub_f32 v{S[qt]+i}, v{S[qt]+i}, v{MX[qt]}")
        for i in range(16):
            a(f"v_exp_f32 v{S[qt]+i}, v{S[qt]+i}")
        a("s_nop 1")
        a(f"v_smfmac_f32_32x32x32_bf16 {vr(O[qt],16)}, {vr(VB[0],4)}, {vr(S[qt],8)}, v{IDX}")
        a(f"v_smfmac_f32_32x32x32_bf16 {vr(O[qt],16)}, {vr(VB[0]+4,4)}, {vr(S[qt]+8,8)}, v{IDX}")
    a(f"""
    s_nop 7
    s_sub_u32 s52, s52, 1
    s_cmp_lg_u32 s52, 0
    s_cbranch_scc1 {name}_s2
    s_branch {name}_combine
    """)
    return descriptor(name, 248)
```

```python
WS_Q   = 0x000000
WS_K   = 0x200000
WS_V   = 0x400000
WS_SENT = 0x800000
WS_O   = WS_SENT
WS_PST = WS_O + 0x200000
WS_YP  = WS_PST + 0x40000
WS_CROW = WS_YP + 64 * 224 * 32
WS_CKEY = WS_CROW + 0x10000
WS_NRM = WS_CKEY + 0x2000
SENT_END = WS_NRM + 48 * 16 * 128
SENT_PER_WG = 12288
assert WS_SENT + 256 * SENT_PER_WG >= SENT_END
WS_BYTES = 0x1000000
QSCALE = 0.25 * 1.4426950408889634
import struct
def f32hex(x):
    return "0x%08x" % struct.unpack("<I", struct.pack("<f", x))[0]
```

```python
import sys
sys.path.insert(0, "gen")
from asmlib import *
from layout import *
from k1 import *
from kb import *
ref = open("sequential_preLN__mha_block__moe_arch_mod__prompt.s.ref").read()
hdr = "".join(l + "\n" for l in ref.split("\n") if l.startswith(";") and "@launch" not in l and "Override" not in l and "grid=ceil" not in l)
a = Asm()
name = "sequential_preLN__mha_block__moe_arch_mod__prompt_kernel"
hdr += f"; @launch grid=(256,1,1) block=(512,1,1) lds={max(K1_LDS, KB_LDS)}\n"
gen_k1(a, name)
desc = gen_kb(a, name)
txt = hdr + '.amdgcn_target "amdgcn-amd-amdhsa--gfx950"\n.text\n' + a.text() + "code_end:\n    s_endpgm\n" + '.section .rodata,"a"\n' + desc
txt = txt.replace(name + "_", "L_")
out = sys.argv[1] if len(sys.argv) > 1 else "sequential_preLN__mha_block__moe_arch_mod__prompt.s"
open(out, "w").write(txt)
print("wrote", out, len(txt))
```

```python
from asmlib import *
from layout import *
import os

SLOT = 28672
NSLOT = 5
LDS_P = SLOT * NSLOT
LDS_CS = LDS_P + 1536
LDS_NR = LDS_CS + 2048
LDS_GU = LDS_NR + 128
K1_LDS = LDS_GU + 16384
SPIN = 200000
HI = 0x20000
QKV_SC = "sc1"
AHEAD = int(os.environ.get('AHEAD', '3'))
LA = 2
GUP = int(os.environ.get('GUP', '4'))
INITM = os.environ.get("INITM", "shard")
INC = {"one": "buffer_atomic_add v5, v4, s[20:23], 0 offen sc1", "shard": "buffer_atomic_add v5, v4, s[20:23], s33 offen sc1",
       "byte": "buffer_store_byte v5, v4, s[20:23], s2 offen sc1"}[INITM]
ICHK = {"one": "v_cmp_gt_u32 vcc, 256, v5", "shard": "v_cmp_gt_u32 vcc, 4, v5", "byte": "v_cmp_ne_u32 vcc, 0x01010101, v5"}[INITM]
FILLP = int(os.environ.get('FILLP', '3'))
ROTC = {"full": "", "xcd": "s_mov_b32 s49, s29", "none": "s_mov_b32 s49, 0",
        "x2": "s_and_b32 s49, s49, 1\n    s_add_u32 s49, s49, s29", "x4": "s_and_b32 s49, s49, 3\n    s_add_u32 s49, s49, s29",
        "fx": "s_add_u32 s49, s49, s29"}[os.environ.get("ROT", "full")]

def gen_k1(a, name):
    LANE = 2; HALF = 3
    VL = [8, 9, 10, 11]
    VXR = [12, 13, 14, 15]
    VS = [40, 41, 42, 43]
    VDX = 16; VDW = 44
    ONES = 18
    XF = [128 + 4 * i for i in range(8)]
    WF = [160 + 12 * i for i in range(LA + 1)]
    ACC = [56, 72, 88]
    CS = [104, 108, 112]; SX = [24, 28]; SXX = [32, 36]
    kernel_head(a, name)
    a(f"""
    s_cmp_ge_u32 s2, 256
    s_cbranch_scc1 {name}_end
    s_load_dwordx4 s[4:7], s[0:1], 0
    s_load_dwordx4 s[8:11], s[0:1], 72
    s_getpc_b64 s[36:37]
    {name}_pc:
    """)
    stamp(a, 0)
    a(f"""
    v_lshrrev_b32 v1, 6, v0
    v_and_b32 v{LANE}, 63, v0
    s_and_b32 s29, s2, 7
    v_readfirstlane_b32 s28, v1
    s_lshr_b32 s30, s2, 3
    s_lshr_b32 s31, s29, 1
    s_lshl_b32 s31, s31, 2
    s_and_b32 s33, s30, 3
    s_add_u32 s31, s31, s33
    s_lshl_b32 s49, s33, 1
    s_and_b32 s32, s29, 1
    s_lshl_b32 s32, s32, 3
    s_lshr_b32 s33, s30, 2
    s_add_u32 s32, s32, s33
    s_add_u32 s49, s49, s33
    s_and_b32 s45, s28, 3
    {ROTC}
    s_mov_b32 s14, {2048*512*2:#x}
    s_mov_b32 s15, 0x00020000
    s_mov_b32 s18, {512*1536*2:#x}
    s_mov_b32 s19, 0x00020000
    v_lshrrev_b32 v4, 3, v{LANE}
    v_and_b32 v6, 7, v{LANE}
    s_mul_i32 s56, s32, 3
    s_and_b32 s33, s32, 1
    s_add_u32 s57, s56, s33
    s_xor_b32 s33, s33, 1
    s_lshl_b32 s33, s33, 1
    s_add_u32 s58, s56, s33
    """)
    a.c("s28=wave s45=token tile / k-step s31=mb s32=nb s49=phase rotation s57=first sub-tile of the 64-col pair s58=single sub-tile")
    a.c("x staging: lane -> row l>>3 of an 8-row group, LDS chunk q=l&7 holds global chunk q^((row>>1)&7)")
    a.c("W staging: full 128-byte lines for the pair (halves swapped on rows with bit1 set) + 64 B rows for the single")
    a(f"""
    v_lshrrev_b32 v5, 4, v{LANE}
    v_xor_b32 v5, v5, v6
    v_lshlrev_b32 v{VDX}, 10, v4
    v_lshl_add_u32 v{VDX}, v5, 4, v{VDX}
    v_xor_b32 v{VDX+1}, 64, v{VDX}
    s_lshl_b32 s40, s31, 17
    s_lshl_b32 s33, s45, 15
    s_add_u32 s40, s40, s33
    s_lshl_b32 s42, s45, 12
    s_add_u32 s42, s42, 12288
    v_bfe_u32 v5, v{LANE}, 4, 1
    v_lshlrev_b32 v5, 2, v5
    v_xor_b32 v5, v5, v6
    v_mul_u32_u24 v{VDW}, 3072, v4
    v_lshl_add_u32 v{VDW}, v5, 4, v{VDW}
    v_lshrrev_b32 v{VDW+1}, 2, v{LANE}
    v_mul_u32_u24 v{VDW+1}, 3072, v{VDW+1}
    v_and_b32 v6, 3, v{LANE}
    v_lshl_add_u32 v{VDW+1}, v6, 4, v{VDW+1}
    s_mul_i32 s41, s45, 49152
    s_lshl_b32 s33, s57, 6
    s_add_u32 s50, s41, s33
    s_lshl_b32 s33, s58, 6
    s_add_u32 s59, s41, s33
    s_mul_i32 s52, s45, 3072
    v_lshlrev_b32 v117, 4, v{LANE}
    s_waitcnt lgkmcnt(0)
    s_mov_b32 s12, s4
    s_and_b32 s13, s5, 0xffff
    s_mov_b32 s16, s6
    s_and_b32 s17, s7, 0xffff
    """)
    def dma_x(p):
        so = (p % NSLOT) * SLOT
        a(f"s_add_u32 s43, s49, {p}")
        a(f"s_and_b32 s43, s43, 7")
        a(f"s_lshl_b32 s43, s43, 7")
        a(f"s_add_u32 s43, s43, s40")
        for g in range(4):
            a(f"s_add_u32 m0, s42, {so + g * 1024}")
            a(f"s_add_u32 s41, s43, {g * 8192}")
            a(f"buffer_load_dwordx4 v{VDX + (g & 1)}, s[12:15], s41 offen lds")
    def dma_w(p):
        so = (p % NSLOT) * SLOT
        a(f"s_add_u32 s43, s49, {p}")
        a(f"s_and_b32 s43, s43, 7")
        a(f"s_mul_i32 s43, s43, {4*49152}")
        a(f"s_add_u32 m0, s52, {so}")
        a(f"s_add_u32 s41, s43, s50")
        a(f"buffer_load_dwordx4 v{VDW}, s[16:19], s41 offen lds")
        a(f"s_add_u32 m0, s52, {so + 1024}")
        a(f"s_add_u32 s41, s41, {8*3072}")
        a(f"buffer_load_dwordx4 v{VDW}, s[16:19], s41 offen lds")
        a(f"s_add_u32 m0, s52, {so + 2048}")
        a(f"s_add_u32 s41, s43, s59")
        a(f"buffer_load_dwordx4 v{VDW+1}, s[16:19], s41 offen lds")
    NX = AHEAD
    a(f"""
    s_cmp_lt_u32 s28, 4
    s_cbranch_scc1 {name}_C
    """)
    outst = []
    for p in range(AHEAD):
        dma_w(p); outst += [p] * 3
        if p == 0:
            a.c("code prefetch through an exact-size descriptor (2 KB per helper wave)")
            a(f"""
            s_and_b32 s37, s37, 0xffff
            s_mov_b32 s38, code_end-{name}_pc
            s_mov_b32 s39, 0x00020000
            s_lshl_b32 s33, s30, 2
            s_add_u32 s33, s33, s45
            s_and_b32 s33, s33, 15
            s_lshl_b32 s33, s33, 11
            buffer_load_dwordx4 v[20:23], v117, s[36:39], s33 offen
            buffer_load_dwordx4 v[20:23], v117, s[36:39], s33 offen offset:1024
            """)
            outst += ["x", "x"]
    srd(a, 24, 10, WS_BYTES)
    srd(a, 20, 8, 256)
    a(f"""
    v_lshlrev_b32 v4, 2, v{LANE}
    {"v_mov_b32 v4, 0" if INITM == "one" else ""}
    """)
    for p in range(8):
        idx = max(i for i, x in enumerate(outst) if x == p)
        a(f"s_waitcnt vmcnt({len(outst) - 1 - idx})")
        del outst[:idx + 1]
        a("s_barrier")
        if p == 0: stamp(a, 1)
        if p + AHEAD < 8:
            dma_w(p + AHEAD); dma_x(p + AHEAD); outst += [p + AHEAD] * 7
    stamp(a, 2)
    a(f"""
    s_barrier
    s_cmp_lg_u32 s28, 4
    s_cbranch_scc1 {name}_J
    s_mov_b32 s53, 0
    {name}_ipoll:
    buffer_load_dword v5, v4, s[20:23], 0 offen sc1
    s_add_u32 s53, s53, 1
    s_waitcnt vmcnt(0)
    {ICHK}
    s_cmp_gt_u32 s53, {SPIN}
    s_cbranch_scc1 {name}_J
    s_cbranch_vccnz {name}_ipoll
    s_branch {name}_J
    """)
    a.label(f"{name}_C")
    for p in range(NX):
        dma_x(p)
    a(f"""
    v_lshrrev_b32 v{HALF}, 5, v{LANE}
    v_bfe_u32 v5, v{LANE}, 2, 2
    v_bfe_u32 v6, v{LANE}, 4, 1
    v_lshlrev_b32 v7, 5, v6
    v_and_b32 v6, 3, v{LANE}
    v_lshl_add_u32 v7, v6, 3, v7
    v_lshl_add_u32 v4, v{HALF}, 10, v7
    v_lshl_add_u32 v4, v5, 7, v4
    v_bfe_u32 v6, v{LANE}, 3, 1
    v_lshl_add_u32 v4, v6, 6, v4
    v_lshl_add_u32 v7, v{HALF}, 9, v7
    v_lshl_add_u32 v7, v5, 6, v7
    v_add_u32 v46, 2048, v7
    v_and_b32 v116, 31, v{LANE}
    v_bfe_u32 v6, v{LANE}, 1, 3
    v_xor_b32 v6, v6, v{HALF}
    v_lshlrev_b32 v5, 7, v116
    v_add_u32 v5, s42, v5
    """)
    for j in range(4):
        a(f"""
        s_add_u32 s33, s45, {j}
        s_and_b32 s33, s33, 3
        s_mul_i32 s35, s33, 3072
        s_lshl_b32 s34, s33, 1
        v_add_u32 v{VL[j]}, s35, v4
        v_add_u32 v{VS[j]}, s35, v46
        v_xor_b32 v7, s34, v6
        v_lshl_add_u32 v{VXR[j]}, v7, 4, v5
        """)
    a(f"""
    v_mov_b32 v{ONES}, 0x3f803f80
    v_mov_b32 v{ONES+1}, 0x3f803f80
    """)
    srd(a, 24, 10, WS_BYTES)
    srd(a, 20, 8, 256)
    a.c("pre-fill this workgroup's share of the hand-off region with the 'not yet written' sentinel, then count it in d_debug")
    a(f"""
    v_mov_b32 v196, -1
    v_mov_b32 v197, -1
    v_mov_b32 v198, -1
    v_mov_b32 v199, -1
    s_mul_i32 s34, s2, {SENT_PER_WG}
    s_mul_i32 s35, s45, 3072
    s_add_u32 s34, s34, s35
    s_add_u32 s34, s34, {WS_SENT:#x}
    """)
    for i in range(3):
        a(f"buffer_store_dwordx4 v[196:199], v117, s[24:27], s34 offen offset:{i*1024} sc1")
    a.c("epilogue addresses")
    a(f"""
    s_lshl_b32 s33, s45, 9
    v_lshlrev_b32 v118, 4, v{HALF}
    v_add_u32 v118, {HI:#x}, v118
    v_add_u32 v118, s33, v118
    v_lshlrev_b32 v119, 2, v{LANE}
    v_add_u32 v119, {HI:#x}, v119
    v_add_u32 v119, s33, v119
    v_lshlrev_b32 v120, 5, v116
    v_lshl_add_u32 v120, v{HALF}, 4, v120
    s_lshl_b32 s34, s31, 12
    s_lshl_b32 s35, s45, 10
    s_add_u32 s34, s34, s35
    s_lshl_b32 s35, s45, 2
    s_add_u32 s44, s35, {HI:#x}
    """)
    for us, ty, dst, nr, sc in ((57, 60, 46, 48, 61), (58, 63, 64, 65, 66)):
        a(f"""
        s_lshr_b32 s{ty}, s{us}, 4
        s_lshl_b32 s{dst}, s{ty}, 21
        s_and_b32 s35, s{us}, 15
        s_lshl_b32 s35, s35, 17
        s_add_u32 s{dst}, s{dst}, s35
        s_add_u32 s{dst}, s{dst}, s34
        s_cmp_eq_u32 s{ty}, 0
        s_cselect_b32 s{sc}, {f32hex(QSCALE)}, 1.0
        """)
    a(f"""
    s_mul_i32 s33, s45, {3*2304}
    v_mul_u32_u24 v124, 72, v116
    v_lshl_add_u32 v124, v{HALF}, 3, v124
    v_add_u32 v124, s33, v124
    v_bfe_u32 v125, v{LANE}, 2, 2
    v_lshl_add_u32 v125, v{HALF}, 3, v125
    v_mul_u32_u24 v125, 72, v125
    v_bfe_u32 v6, v{LANE}, 4, 1
    v_lshl_add_u32 v125, v6, 5, v125
    v_and_b32 v5, 1, v{LANE}
    v_lshl_add_u32 v125, v5, 4, v125
    v_bfe_u32 v5, v{LANE}, 1, 1
    v_lshl_add_u32 v125, v5, 3, v125
    v_add_u32 v125, s33, v125
    v_and_b32 v126, 15, v{LANE}
    v_lshlrev_b32 v126, 4, v126
    v_lshl_add_u32 v126, v{HALF}, 8, v126
    v_lshl_add_u32 v126, v6, 16, v126
    v_add_u32 v121, s44, v117
    v_lshlrev_b32 v122, 4, v116
    v_add_u32 v123, {HI:#x}, v122
    v_add_u32 v122, s44, v122
    v_add_u32 v127, {HI:#x}, v117
    v_and_b32 v5, 3, v{LANE}
    v_cmp_eq_u32 s[50:51], 1, v5
    v_cmp_eq_u32 s[52:53], 2, v5
    v_cmp_eq_u32 s[54:55], 3, v5
    """)
    cur_base = [0]
    def rebase(p):
        so = (p % NSLOT) * SLOT
        want = (so // (2 * SLOT)) * 2 * SLOT
        ops = []
        if want != cur_base[0]:
            d = want - cur_base[0]
            ops = [f"v_add_u32 v{r}, {d & 0xffffffff:#x}, v{r}" for r in VL + VXR + VS]
            cur_base[0] = want
        return so - want, ops
    def reads(t):
        p, j = t >> 2, t & 3
        off, pre = rebase(p)
        wf = WF[t % (LA + 1)]
        return pre, [f"ds_read_b128 {vr(XF[t & 7],4)}, v{VXR[j]} offset:{off}",
                f"ds_read_b64_tr_b16 {vr(wf,2)}, v{VL[j]} offset:{off}",
                f"v_xor_b32 v7, 64, v{VL[j]}\nds_read_b64_tr_b16 {vr(wf+2,2)}, v{VL[j]} offset:{off+512}",
                f"ds_read_b64_tr_b16 {vr(wf+4,2)}, v7 offset:{off}",
                f"ds_read_b64_tr_b16 {vr(wf+6,2)}, v7 offset:{off+512}",
                f"ds_read_b64_tr_b16 {vr(wf+8,2)}, v{VS[j]} offset:{off}",
                f"ds_read_b64_tr_b16 {vr(wf+10,2)}, v{VS[j]} offset:{off+256}"]
    for t in range(32 + LA):
        p, j = t >> 2, t & 3
        rd = []
        if t < 32:
            if j == 0:
                if p < NX:
                    a(f"s_waitcnt vmcnt({4 * (NX - 1 - p) + 3})")
                if p == FILLP:
                    a("s_waitcnt vmcnt(0)")
                a("s_barrier")
                if p == 0: stamp(a, 1)
                if p == FILLP:
                    a.c("the compute waves drained their sentinel fills before this barrier: count this workgroup in d_debug")
                    a(f"""
                    s_cmp_lg_u32 s28, 0
                    s_cbranch_scc1 {name}_noinc
                    v_mov_b32 v4, 0
                    v_mov_b32 v5, 1
                    s_and_b32 s33, s2, 63
                    s_lshl_b32 s33, s33, 2
                    s_mov_b64 exec, 1
                    {INC}
                    s_mov_b64 exec, -1
                    {name}_noinc:
                    """)
            pre, rd = reads(t)
            for o in pre: a(o)
        if t < LA:
            for o in rd: a(o)
            continue
        u = t - LA
        up, uj = u >> 2, u & 3
        a(f"s_waitcnt lgkmcnt({7 * (min(t - 1, 31) - u)})")
        wf = WF[u % (LA + 1)]; xf = XF[u & 7]
        for i in range(3):
            c = "0" if u == 0 else vr(ACC[i], 16)
            a(f"v_mfma_f32_32x32x16_bf16 {vr(ACC[i],16)}, {vr(wf+4*i,4)}, {vr(xf,4)}, {c}")
            for o in rd[[0, 3, 5][i]:[3, 5, 7][i]]: a(o)
        if uj == 3:
            z = lambda cond, r: "0" if cond else vr(r, 4)
            for q in range(8):
                x2 = XF[(4 * up) & 7] + 2 * q
                zz = (up == 0 and q < 2)
                a(f"v_mfma_f32_4x4x4_16b_bf16 {vr(SX[q&1],4)}, {vr(ONES,2)}, {vr(x2,2)}, {z(zz, SX[q&1])}")
                a(f"v_mfma_f32_4x4x4_16b_bf16 {vr(SXX[q&1],4)}, {vr(x2,2)}, {vr(x2,2)}, {z(zz, SXX[q&1])}")
                if q < 6:
                    i, hh = q % 3, q // 3
                    a(f"v_mfma_f32_4x4x4_16b_bf16 {vr(CS[i],4)}, {vr(ONES,2)}, {vr(wf+4*i+2*hh,2)}, {z(up == 0 and hh == 0, CS[i])}")
    stamp(a, 2)
    a.c("publish colsum partials P[col][tile]; finish the row statistics (lane = token)")
    a(f"""
    s_nop 1
    v_mov_b32 v{CS[2]+1}, v{CS[2]}
    v_permlane32_swap_b32 v{CS[0]}, v{CS[1]}
    s_nop 0
    v_permlane32_swap_b32 v{CS[2]}, v{CS[2]+1}
    v_add_f32 v{CS[0]}, v{CS[0]}, v{CS[1]}
    v_add_f32 v{SX[0]}, v{SX[0]}, v{SX[1]}
    v_add_f32 v{CS[2]}, v{CS[2]}, v{CS[2]+1}
    ds_write_b32 v121, v{CS[0]} offset:{LDS_P-HI}
    ds_write_b32 v122, v{CS[2]} offset:{LDS_P-HI+1024}
    v_pk_add_f32 {vr(SXX[0],2)}, {vr(SXX[0],2)}, {vr(SXX[1],2)}
    v_pk_add_f32 {vr(SXX[0]+2,2)}, {vr(SXX[0]+2,2)}, {vr(SXX[1]+2,2)}
    v_cndmask_b32 v{SXX[0]}, v{SXX[0]}, v{SXX[0]+1}, s[50:51]
    v_cndmask_b32 v{SXX[0]}, v{SXX[0]}, v{SXX[0]+2}, s[52:53]
    v_cndmask_b32 v{SXX[0]}, v{SXX[0]}, v{SXX[0]+3}, s[54:55]
    s_waitcnt lgkmcnt(0)
    s_barrier
    ds_read_b128 v[4:7], v127 offset:{LDS_P-HI}
    ds_read_b128 v[8:11], v123 offset:{LDS_P-HI+1024}
    v_permlane32_swap_b32 v{SX[0]}, v{SXX[0]}
    v_mov_b64 v[40:41], 0
    v_add_f32 v{SX[0]}, v{SX[0]}, v{SXX[0]}
    v_mov_b32 v{SXX[0]}, v{SX[0]}
    v_mov_b64 v[42:43], 0
    v_mov_b64 v[44:45], 0
    v_permlane32_swap_b32 v{SX[0]}, v{SXX[0]}
    v_mov_b64 v[46:47], 0
    v_mul_f32 v{SX[0]}, {f32hex(1/512)}, v{SX[0]}
    v_mul_f32 v{SXX[0]}, {f32hex(1/512)}, v{SXX[0]}
    v_fma_f32 v{SXX[0]}, -v{SX[0]}, v{SX[0]}, v{SXX[0]}
    v_max_f32 v{SXX[0]}, 0, v{SXX[0]}
    v_add_f32 v{SXX[0]}, {f32hex(1e-5)}, v{SXX[0]}
    v_rsq_f32 v{SXX[0]}, v{SXX[0]}
    s_waitcnt lgkmcnt(0)
    v_pk_add_f32 v[4:5], v[4:5], v[6:7]
    v_pk_add_f32 v[8:9], v[8:9], v[10:11]
    v_add_f32 v4, v4, v5
    v_add_f32 v8, v8, v9
    ds_write_b32 v119, v4 offset:{LDS_CS-HI}
    ds_write_b32 v119, v8 offset:{LDS_CS-HI+256}
    v_mul_f32 v16, s61, v{SXX[0]}
    v_mul_f32 v18, s66, v{SXX[0]}
    v_mul_f32 v17, v{SX[0]}, v16
    v_mul_f32 v19, v{SX[0]}, v18
    v_sub_f32 v17, 0, v17
    v_sub_f32 v19, 0, v19
    v_mov_b64 v[48:49], 0
    v_mov_b64 v[50:51], 0
    s_waitcnt lgkmcnt(0)
    """)
    CSB = 128; PK = 176
    for n in range(3):
        for g in range(4):
            a(f"ds_read_b128 {vr(CSB+16*n+4*g,4)}, v118 offset:{LDS_CS-HI+128*n+32*g}")
    for n in range(3):
        ab = 16 if n < 2 else 18
        for i in range(0, 16, 2):
            a(f"v_pk_mul_f32 {vr(ACC[n]+i,2)}, {vr(ACC[n]+i,2)}, {vr(ab,2)} op_sel_hi:[1,0]")
    def finish(n):
        ab = 16 if n < 2 else 18
        for i in range(0, 16, 2):
            a(f"v_pk_fma_f32 {vr(ACC[n]+i,2)}, {vr(CSB+16*n+i,2)}, {vr(ab,2)}, {vr(ACC[n]+i,2)} op_sel:[0,1,0] op_sel_hi:[1,1,1]")
        for i in range(8):
            a(f"v_cvt_pk_bf16_f32 v{PK+8*n+i}, v{ACC[n]+2*i}, v{ACC[n]+2*i+1}")
    def norm(n):
        for i in range(0, 8, 2):
            a(f"v_pk_fma_f32 {vr(40+4*n,2)}, {vr(ACC[n]+i,2)}, {vr(ACC[n]+i,2)}, {vr(40+4*n,2)}")
            a(f"v_pk_fma_f32 {vr(42+4*n,2)}, {vr(ACC[n]+8+i,2)}, {vr(ACC[n]+8+i,2)}, {vr(42+4*n,2)}")
    def store(tiles, ty, dst, tag):
        a(f"""
        s_cmp_eq_u32 s{ty}, 2
        s_cbranch_scc1 {name}_v{tag}
        """)
        for k, n in enumerate(tiles):
            a(f"s_add_u32 s47, s{dst}, {k*0x20000:#x}")
            a(f"s_add_u32 s35, s{dst}, {k*0x20000+0x10000:#x}")
            a(f"buffer_store_dwordx4 {vr(PK+8*n,4)}, v120, s[24:27], s47 offen {QKV_SC}")
            a(f"buffer_store_dwordx4 {vr(PK+8*n+4,4)}, v120, s[24:27], s35 offen {QKV_SC}")
        for n in tiles: norm(n)
        a(f"s_branch {name}_n{tag}")
        a.label(f"{name}_v{tag}")
        a.c("V tiles: transpose through LDS (wave-private scratch) into [head][tile][c][h][m][8 keys]")
        for n in tiles:
            for g in range(4):
                a(f"ds_write_b64 v124, {vr(PK+8*n+2*g,2)} offset:{n*2304+16*g}")
        norm(tiles[0])
        a("s_waitcnt lgkmcnt(0)")
        for n in tiles:
            for c in range(2):
                a(f"ds_read_b64_tr_b16 {vr(CSB+16*n+4*c,2)}, v125 offset:{n*2304+c*16*72}")
                a(f"ds_read_b64_tr_b16 {vr(CSB+16*n+4*c+2,2)}, v125 offset:{n*2304+c*16*72+4*72}")
        for n in tiles[1:]: norm(n)
        for k, n in enumerate(tiles):
            a(f"s_add_u32 s47, s{dst}, {k*0x20000:#x}")
            a(f"s_waitcnt lgkmcnt({4*(len(tiles)-1-k)})")
            a(f"buffer_store_dwordx4 {vr(CSB+16*n,4)}, v126, s[24:27], s47 offen {QKV_SC}")
            a(f"buffer_store_dwordx4 {vr(CSB+16*n+4,4)}, v126, s[24:27], s47 offen offset:512 {QKV_SC}")
        a.label(f"{name}_n{tag}")
    a("s_waitcnt lgkmcnt(4)")
    finish(0); finish(1)
    a("s_waitcnt lgkmcnt(0)")
    finish(2)
    store([0, 1], 60, 46, "p")
    store([2], 63, 64, "s")
    a.c("max squared norm over tokens and both heads of each sub-tile")
    for n in range(3):
        a(f"v_add_f32 v{40+4*n}, v{40+4*n}, v{41+4*n}")
        a(f"v_add_f32 v{42+4*n}, v{42+4*n}, v{43+4*n}")
    a("s_mov_b32 s34, 0")
    for n in range(3):
        a(f"v_permlane32_swap_b32 v{40+4*n}, v{42+4*n}")
    a("v_mov_b32 v4, 0")
    for n in range(3):
        a(f"v_add_f32 v{40+4*n}, v{40+4*n}, v{42+4*n}")
    a("s_mov_b32 s35, 0x80000000")
    for dpp in DPP_MAX:
        for n in range(3):
            a(f"v_max_u32_dpp v{40+4*n}, v{40+4*n}, v{40+4*n} {dpp}")
    a(f"""
    v_mov_b32 v4, s44
    s_mov_b64 exec, s[34:35]
    ds_write_b32 v4, v40 offset:{LDS_NR-HI}
    ds_write_b32 v4, v44 offset:{LDS_NR-HI+16}
    ds_write_b32 v4, v48 offset:{LDS_NR-HI+32}
    s_mov_b64 exec, -1
    s_waitcnt vmcnt(0) lgkmcnt(0)
    {name}_J:
    s_barrier
    """)
    stamp(a, 3)
    a.c("wave 4 publishes the norms of this workgroup's three sub-tiles (they double as 'written' flags)")
    a(f"""
    s_cmp_lg_u32 s28, 4
    s_cbranch_scc1 {name}_nopub
    v_lshlrev_b32 v4, 4, v{LANE}
    v_add_u32 v4, {LDS_NR:#x}, v4
    s_mov_b64 exec, 7
    ds_read_b128 v[8:11], v4
    s_add_u32 s33, s57, 1
    v_mov_b32 v5, s57
    v_writelane_b32 v5, s33, 1
    v_writelane_b32 v5, s58, 2
    s_lshl_b32 s33, s31, 7
    s_add_u32 s33, s33, {WS_NRM:#x}
    v_lshlrev_b32 v5, 11, v5
    s_waitcnt lgkmcnt(0)
    v_min_u32 v8, 0x7fffffff, v8
    buffer_store_dwordx4 v[8:11], v5, s[24:27], s33 offen sc1
    s_mov_b64 exec, -1
    {name}_nopub:
    """)
```

```python
from asmlib import *
from layout import *
from k1 import LDS_NR as K1_NR, LDS_GU

LDS_WO = 65536
LDS_ST = LDS_WO + 65536
LDS_FF = LDS_ST + 4096
LDS_WD = LDS_FF + 1024
KB_LDS = LDS_WD + 8192
assert KB_LDS <= K1_NR
LOG2E = 1.4426950408889634
SPIN = 200000
import os
EXP = os.environ.get('EXP', '')
GUS = int(os.environ.get('GUS', '1'))
GUK = eval(os.environ.get('GUK', '(4, 14)'))

def rnd_bf16(a, d, s):
    a(f"v_cvt_pk_bf16_f32 v{d}, v{s}, v{s}")
    a(f"v_and_b32 v{d}, 0xffff0000, v{d}")

def gen_kb(a, name):
    S = [16, 32, 48, 64]
    O = [80, 96, 112, 128]
    Q = [144, 148, 152, 156]
    KB = [160, 164, 168, 172]
    VB = [176, 184, 192, 200]
    IDX = 208
    MX = [209, 210, 211, 212]
    XR = 216; WR = 220; GW = 224; UW = 228; WD = 232; WRF = 240
    VWO = 213; VXO = 214; VGU = 215; VT2 = 244; VCG = 245
    VKQ = 4; VV = 5; LANE = 2; L31 = 3; HALF = 6; L16 = 7
    a(f"""
    s_load_dwordx2 s[4:5], s[0:1], 0
    s_load_dwordx2 s[6:7], s[0:1], 16
    s_load_dwordx4 s[8:11], s[0:1], 32
    s_load_dwordx4 s[12:15], s[0:1], 48
    s_load_dwordx2 s[16:17], s[0:1], 64
    s_setprio 3
    s_lshl_b32 s31, s29, 2
    s_lshr_b32 s33, s30, 3
    s_add_u32 s31, s31, s33
    s_and_b32 s32, s30, 7
    v_and_b32 v{L31}, 31, v{LANE}
    v_lshrrev_b32 v{HALF}, 5, v{LANE}
    v_lshlrev_b32 v{VKQ}, 5, v{L31}
    v_lshl_add_u32 v{VKQ}, v{HALF}, 4, v{VKQ}
    v_and_b32 v{VV}, 15, v{LANE}
    v_lshlrev_b32 v{VV}, 4, v{VV}
    v_lshl_add_u32 v{VV}, v{HALF}, 8, v{VV}
    v_lshlrev_b32 v{L16}, 4, v{LANE}
    s_and_b32 s34, s28, 1
    s_lshr_b32 s35, s28, 1
    """)
    a.c("s28=wave s31=head(=rowblock later) s32=qblock(=colblock later) s34=qg(=tt) s35=kq")
    a(f"""
    s_lshl_b32 s40, s31, 16
    s_lshl_b32 s33, s32, 13
    s_add_u32 s41, s40, s33
    s_lshl_b32 s33, s34, 12
    s_add_u32 s41, s41, s33
    s_lshl_b32 s33, s35, 14
    s_add_u32 s42, s40, s33
    s_add_u32 s43, s42, {WS_V:#x}
    s_add_u32 s42, s42, {WS_K:#x}
    s_lshl_b32 s45, s32, 1
    s_add_u32 s45, s45, s34
    s_lshl_b32 s45, s45, 10
    s_mov_b32 s46, 0x0000ffff
    s_mov_b32 s47, 0x0000ffff
    s_mov_b32 s23, 0x00020000
    v_and_b32 v8, 27, v{LANE}
    v_mov_b32 v9, 0x3f803f80
    v_cmp_eq_u32 vcc, 16, v8
    v_mov_b32 v{IDX}, 0xdddddddd
    s_nop 0
    v_cndmask_b32 v8, 0, v9, vcc
    v_cndmask_b32 v9, 0, v9, vcc
    """)
    for b in range(4):
        for r in range(0, 8, 2):
            a(f"v_mov_b64 {vr(VB[b]+r,2)}, v[8:9]")
    outst = []
    def vm(tag): outst.append(tag)
    def wait_for(tag):
        idx = max(i for i, t in enumerate(outst) if t == tag)
        n = len(outst) - 1 - idx
        a(f"s_waitcnt vmcnt({n})")
        del outst[:idx + 1]
    def kv_load(b, tag=None, mid=()):
        a("s_add_u32 s48, s42, s45")
        a("s_add_u32 s49, s43, s45")
        a(f"buffer_load_dwordx4 {vr(KB[b],4)}, v{VKQ}, s[24:27], s48 offen sc1")
        if tag is not None: vm("k" + tag)
        for (ins, tg) in mid:
            a(ins); vm(tg)
        a("s_mov_b64 exec, s[46:47]")
        a(f"buffer_load_dwordx4 {vr(VB[b],4)}, v{VV}, s[24:27], s49 offen sc1")
        a(f"buffer_load_dwordx4 {vr(VB[b]+4,4)}, v{VV}, s[24:27], s49 offen offset:512 sc1")
        a("s_mov_b64 exec, -1")
        a("s_add_u32 s45, s45, 1024")
        a("s_and_b32 s45, s45, 0x3fff")
        if tag is not None:
            for _ in range(2): vm(tag)
    for qt in range(4):
        for r in range(0, 16, 2):
            a(f"v_mov_b64 {vr(O[qt]+r,2)}, 0")
    a.c("addresses for the side loads (operands of the later phases, fetched under the attention loop)")
    a(f"""
    v_lshrrev_b32 v12, 3, v{LANE}
    v_lshlrev_b32 v{VWO}, 10, v12
    v_and_b32 v12, 7, v{LANE}
    v_bfe_u32 v13, v{LANE}, 4, 1
    v_lshlrev_b32 v13, 2, v13
    v_xor_b32 v12, v12, v13
    v_lshl_add_u32 v{VWO}, v12, 4, v{VWO}
    v_and_b32 v12, 7, v{LANE}
    v_lshlrev_b32 v{VXO}, 10, v12
    v_lshrrev_b32 v12, 3, v{LANE}
    v_lshlrev_b32 v{VCG}, 4, v12
    v_add_u32 v{VXO}, v{VCG}, v{VXO}
    v_lshlrev_b32 v{VT2}, 1, v0
    v_mul_u32_u24 v{VGU}, 3584, v0
    s_mul_i32 s60, s29, 28
    s_add_u32 s60, s60, s30
    s_lshl_b32 s61, s28, 16
    s_lshl_b32 s33, s32, 7
    s_add_u32 s61, s61, s33
    s_lshl_b32 s62, s28, 13
    s_add_u32 s62, s62, {LDS_WO}
    s_lshl_b32 s63, s32, 7
    s_lshl_b32 s64, s31, 16
    s_lshl_b32 s33, s34, 15
    s_add_u32 s64, s64, s33
    s_lshl_b32 s33, s35, 13
    s_add_u32 s64, s64, s33
    s_add_u32 s64, s64, s63
    s_cmp_lt_u32 s30, 28
    s_cselect_b32 s65, {512*1792*2:#x}, 0
    """)
    a.c("s60=ffn slice j, s61=Wo global off, s62=Wo lds off, s63=col byte off of this wave's 8-col piece, s64=x/out off, s65=ffn weight bytes (0: none)")
    def side_ops():
        ops = []
        def tsrd(p, nbytes):
            return f"s_mov_b32 s20, s{p}\ns_and_b32 s21, s{p+1}, 0xffff\ns_mov_b32 s22, {nbytes}\n"
        for i in range(8):
            ops.append(tsrd(6, hex(512*512*2)) + f"s_add_u32 m0, s62, {i*1024}\ns_add_u32 s33, s61, {i*8192}\nbuffer_load_dwordx4 v{VWO}, s[20:23], s33 offen lds")
        ops.append(tsrd(4, hex(2048*512*2)) + f"buffer_load_dwordx4 {vr(XR,4)}, v{VXO}, s[20:23], s64 offen")
        ops.append(tsrd(8, 1024) + f"buffer_load_dwordx4 {vr(WR,4)}, v{VCG}, s[20:23], s63 offen")
        ops.append(tsrd(8, 1024) + f"buffer_load_dwordx4 {vr(WRF,4)}, v{L16}, s[20:23], 0 offen")
        ops.append(tsrd(14, "s65") + f"s_lshl_b32 s33, s28, 10\ns_add_u32 m0, s33, {LDS_WD}\ns_lshl_b32 s50, s60, 13\ns_add_u32 s33, s33, s50\nbuffer_load_dwordx4 v{L16}, s[20:23], s33 offen lds")
        return ops
    def gu_op(m):
        return (f"s_mov_b32 s20, s{10+2*m}\ns_and_b32 s21, s{11+2*m}, 0xffff\ns_mov_b32 s22, s65\n"
                f"s_lshl_b32 s33, s28, 10\ns_add_u32 m0, s33, {LDS_GU + m*8192}\ns_lshl_b32 s33, s60, 4\nbuffer_load_dwordx4 v{VGU}, s[20:23], s33 offen lds")
    a.c("wave 4 waits for the 48 producer records of this head pair and decides the softmax path:")
    a.c("zero stand-in iff max|q|^2*max|k|^2 <= 50^2 and max|v|^2 <= 2^120, else the true-max path")
    a(f"""
    s_cmp_lg_u32 s28, 4
    s_cbranch_scc1 {name}_K
    v_lshrrev_b32 v8, 4, v{LANE}
    v_min_u32 v8, 2, v8
    v_lshlrev_b32 v8, 15, v8
    v_and_b32 v9, 15, v{LANE}
    v_lshl_add_u32 v12, v9, 7, v8
    s_lshr_b32 s44, s31, 1
    s_lshl_b32 s44, s44, 11
    s_add_u32 s44, s44, {WS_NRM:#x}
    s_mov_b32 s53, 0
    {name}_npoll:
    buffer_load_dwordx4 v[8:11], v12, s[24:27], s44 offen sc1
    s_add_u32 s53, s53, 1
    s_waitcnt vmcnt(0)
    v_cmp_eq_u32 vcc, -1, v8
    s_cmp_gt_u32 s53, {SPIN}
    s_cbranch_scc1 {name}_ndone
    s_cbranch_vccnz {name}_npoll
    {name}_ndone:
    v_max_u32 v8, v8, v9
    v_max3_u32 v8, v8, v10, v11
    s_nop 1
    """)
    for ror in (8, 4, 2, 1):
        a(f"v_max_u32_dpp v8, v8, v8 row_ror:{ror} row_mask:0xf bank_mask:0xf")
        a("s_nop 1")
    a(f"""
    v_readlane_b32 s50, v8, 16
    v_readlane_b32 s51, v8, 32
    v_mov_b32 v9, {K1_NR+64:#x}
    v_mul_f32 v8, s50, v8
    s_cmp_gt_u32 s51, {f32hex(2.0**120)}
    s_cselect_b32 s51, -1, 0
    v_or_b32 v8, s51, v8
    s_mov_b64 exec, 1
    ds_write_b32 v9, v8
    s_mov_b64 exec, -1
    s_waitcnt lgkmcnt(0)
    {name}_K:
    s_waitcnt lgkmcnt(0)
    s_barrier
    v_mov_b32 v9, {K1_NR+64:#x}
    ds_read_b32 v8, v9
    """)
    stamp(a, 4)
    a(f"buffer_load_dwordx4 {vr(Q[0],4)}, v{VKQ}, s[24:27], s41 offen sc1"); vm("q0")
    kv_load(0, "kv0", mid=[(f"buffer_load_dwordx4 {vr(Q[1],4)}, v{VKQ}, s[24:27], s41 offen offset:1024 sc1", "q1")])
    for qt in range(2, 4):
        a(f"buffer_load_dwordx4 {vr(Q[qt],4)}, v{VKQ}, s[24:27], s41 offen offset:{qt*1024} sc1"); vm(f"q{qt}")
    for b in range(1, 3):
        kv_load(b, f"kv{b}")
    a(f"""
    s_waitcnt lgkmcnt(0)
    v_readfirstlane_b32 s50, v8
    s_nop 3
    s_cmp_gt_u32 s50, {f32hex(2500.0)}
    s_cbranch_scc1 {name}_slow
    """)
    wait_for("kkv0")
    a(f"v_mfma_f32_32x32x16_bf16 {vr(S[0],16)}, {vr(KB[0],4)}, {vr(Q[0],4)}, 0")
    stamp(a, 5)
    a("s_setprio 2")
    a("s_nop 10")
    sides = side_ops()
    if "sidefirst" in EXP: pass
    late_all = []
    if "sidelast" in EXP:
        late_all = sides; sides = []
    for kt in range(16):
        kb = kt & 3
        if "noprio" not in EXP:
            if kt == 5: a("s_setprio 1")
            if kt == 11: a("s_setprio 0")
        for qt in range(4):
            t = kt * 4 + qt
            nq = (qt + 1) & 3; nkt = kt if qt < 3 else kt + 1
            pq = (qt - 1) & 3; pkt = kt if qt > 0 else kt - 1
            if t < 63:
                if qt == 3:
                    wait_for(f"kv{nkt}")
                if t < 3:
                    wait_for(f"q{t+1}")
                a(f"v_mfma_f32_32x32x16_bf16 {vr(S[nq],16)}, {vr(KB[nkt&3],4)}, {vr(Q[nq],4)}, 0")
            for i in range(16):
                if t > 0 and i == 5:
                    a(f"v_smfmac_f32_32x32x32_bf16 {vr(O[pq],16)}, {vr(VB[pkt&3],4)}, {vr(S[pq],8)}, v{IDX}")
                if t > 0 and i == 10:
                    a(f"v_smfmac_f32_32x32x32_bf16 {vr(O[pq],16)}, {vr(VB[pkt&3]+4,4)}, {vr(S[pq]+8,8)}, v{IDX}")
                a(f"v_exp_f32 v{S[qt]+i}, v{S[qt]+i}")
            if qt == 0 and kt + 3 < 16:
                kv_load((kt + 3) & 3, f"kv{kt+3}")
            if qt in (1, 2) and kt >= 1 and sides:
                a(sides.pop(0)); vm("side")
            G0, U0 = GUK
            for m, base in ((0, G0), (1, U0)):
                slot = 2 * kt + (qt >> 1) - base
                if qt in (0, 2) and slot % GUS == 0 and 0 <= slot // GUS < 8:
                    w = slot // GUS
                    w = (w >> 1) + 4 * (w & 1)
                    a(f"s_cmp_lg_u32 s28, {w}\ns_cbranch_scc1 {name}_gu{m}_{w}")
                    a(gu_op(m))
                    a.label(f"{name}_gu{m}_{w}")
    assert not sides
    a(f"""
    s_nop 1
    v_smfmac_f32_32x32x32_bf16 {vr(O[3],16)}, {vr(VB[3],4)}, {vr(S[3],8)}, v{IDX}
    v_smfmac_f32_32x32x32_bf16 {vr(O[3],16)}, {vr(VB[3]+4,4)}, {vr(S[3]+8,8)}, v{IDX}
    """)
    a.label(f"{name}_combine")
    a.c("combine the 4 key-quarter partials through LDS; wave (qg,kq) finalises q-tile kq")
    a(f"""
    s_mul_i32 s53, s34, {4*3*2304}
    v_lshlrev_b32 v8, 2, v{LANE}
    s_nop 7
    """)
    for d in range(4):
        a(f"""
        s_cmp_eq_u32 s35, {d}
        s_cbranch_scc1 {name}_w{d}
        s_cmp_gt_u32 s35, {d}
        s_cselect_b32 s54, 1, 0
        s_sub_u32 s54, s35, s54
        s_mul_i32 s54, s54, 2304
        s_add_u32 s54, s54, s53
        v_add_u32 v9, s54, v{L16}
        v_add_u32 v10, s54, v8
        ds_write_b128 v9, {vr(O[d],4)} offset:{d*3*2304}
        ds_write_b128 v9, {vr(O[d]+4,4)} offset:{d*3*2304+1024}
        ds_write_b32 v10, v{O[d]+8} offset:{d*3*2304+2048}
        s_branch {name}_x{d}
        {name}_w{d}:
        """)
        for r in range(0, 8, 2):
            a(f"v_mov_b64 {vr(S[0]+r,2)}, {vr(O[d]+r,2)}")
        a(f"v_mov_b32 v{S[0]+8}, v{O[d]+8}")
        a.label(f"{name}_x{d}")
    a(f"""
    s_mul_i32 s54, s35, {3*2304}
    s_add_u32 s54, s54, s53
    v_add_u32 v9, s54, v{L16}
    v_add_u32 v10, s54, v8
    s_waitcnt vmcnt(0) lgkmcnt(0)
    s_barrier
    """)
    for si in range(3):
        b = 32 + 12 * si
        a(f"ds_read_b128 {vr(b,4)}, v9 offset:{si*2304}")
        a(f"ds_read_b128 {vr(b+4,4)}, v9 offset:{si*2304+1024}")
        a(f"ds_read_b32 v{b+8}, v10 offset:{si*2304+2048}")
    a(f"""
    s_lshl_b32 s33, s35, 10
    s_add_u32 s41, s41, s33
    s_add_u32 s41, s41, {WS_O:#x}
    """)
    for si in range(3):
        b = 32 + 12 * si
        a(f"s_waitcnt lgkmcnt({6-3*si})")
        for r in range(0, 8, 2):
            a(f"v_pk_add_f32 {vr(S[0]+r,2)}, {vr(S[0]+r,2)}, {vr(b+r,2)}")
        a(f"v_add_f32 v{S[0]+8}, v{S[0]+8}, v{b+8}")
    a(f"v_rcp_f32 v{S[0]+8}, v{S[0]+8}")
    a("s_nop 0")
    for r in range(0, 8, 2):
        a(f"v_pk_mul_f32 {vr(S[0]+r,2)}, {vr(S[0]+r,2)}, {vr(S[0]+8,2)} op_sel_hi:[1,0]")
    for r in range(4):
        a(f"v_cvt_pk_bf16_f32 v{12+r}, v{S[0]+2*r}, v{S[0]+2*r+1}")
    a(f"buffer_store_dwordx4 v[12:15], v{VKQ}, s[24:27], s41 offen sc1")
    stamp(a, 6)
    BF = 16
    AF = 96
    AC = [48, 64]
    a.c("==== out projection: wave (tt,kq): tokens 32tt.., heads 8kq..8kq+7, 64 columns")
    a(f"""
    s_lshl_b32 s40, s35, 19
    s_lshl_b32 s33, s31, 11
    s_add_u32 s40, s40, s33
    s_lshl_b32 s33, s34, 10
    s_add_u32 s40, s40, s33
    s_add_u32 s40, s40, {WS_O:#x}
    s_mov_b32 s52, 0xff
    s_mov_b32 s53, 0
    s_barrier
    """)
    def o_issue():
        for f in range(8):
            a(f"""
            s_bitcmp1_b32 s52, {f}
            s_cbranch_scc0 {name}_oi{f}_{o_issue.n}
            s_add_u32 s33, s40, {f*65536}
            buffer_load_dwordx4 {vr(BF+4*f,4)}, v{VKQ}, s[24:27], s33 offen sc1
            {name}_oi{f}_{o_issue.n}:
            """)
        o_issue.n += 1
    o_issue.n = 0
    for f in range(8):
        a(f"s_add_u32 s33, s40, {f*65536}")
        a(f"buffer_load_dwordx4 {vr(BF+4*f,4)}, v{VKQ}, s[24:27], s33 offen sc1")
    a.c("Wo fragments from LDS (transposing reads, 4-column chunks permuted so a lane ends with 16 consecutive columns)")
    a(f"""
    v_bfe_u32 v8, v{LANE}, 2, 2
    v_lshlrev_b32 v9, 10, v{HALF}
    v_lshl_add_u32 v9, v8, 7, v9
    v_bfe_u32 v8, v{LANE}, 3, 1
    v_lshl_add_u32 v9, v8, 6, v9
    v_and_b32 v8, 1, v{LANE}
    v_lshl_add_u32 v9, v8, 5, v9
    v_bfe_u32 v8, v{LANE}, 4, 1
    v_lshl_add_u32 v9, v8, 4, v9
    v_bfe_u32 v8, v{LANE}, 1, 1
    v_lshl_add_u32 v9, v8, 3, v9
    s_lshl_b32 s33, s35, 14
    s_add_u32 s33, s33, {LDS_WO}
    v_add_u32 v9, s33, v9
    v_xor_b32 v10, 64, v9
    """)
    for ks in range(8):
        for ct in range(2):
            r = AF + 4 * (ks * 2 + ct)
            a(f"ds_read_b64_tr_b16 {vr(r,2)}, v{9+ct} offset:{ks*2048}")
            a(f"ds_read_b64_tr_b16 {vr(r+2,2)}, v{9+ct} offset:{ks*2048+512}")
    a.c("sum of w_r, unpack x and w_down while waiting")
    a(f"""
    v_mov_b32 v14, 0x3f803f80
    s_mov_b32 s66, 0xffff0000
    v_dot2_f32_bf16 v15, v{WRF}, v14, 0
    v_dot2_f32_bf16 v15, v{WRF+1}, v14, v15
    v_dot2_f32_bf16 v15, v{WRF+2}, v14, v15
    v_dot2_f32_bf16 v15, v{WRF+3}, v14, v15
    """)
    XU = 160
    for i in range(4):
        a(f"v_lshlrev_b32 v{XU+2*i}, 16, v{XR+i}")
        a(f"v_and_b32 v{XU+2*i+1}, s66, v{XR+i}")
    a(f"v_add_u32 v8, {LDS_WD}, v{VT2}")
    a(f"v_lshlrev_b32 v11, 4, v0")
    a(f"v_add_u32 v11, {LDS_GU}, v11")
    for n, ror in enumerate((8, 4, 2, 1)):
        a(f"v_add_f32_dpp v15, v15, v15 row_ror:{ror} row_mask:0xf bank_mask:0xf")
        a(f"ds_read_u16 v{WD+2*n}, v8 offset:{2*n*1024}")
        a(f"ds_read_u16 v{WD+2*n+1}, v8 offset:{(2*n+1)*1024}")
    a(f"ds_read_b128 {vr(GW,4)}, v11")
    a(f"ds_read_b128 {vr(UW,4)}, v11 offset:8192")
    a(f"""
    v_readlane_b32 s50, v15, 0
    v_readlane_b32 s51, v15, 16
    v_readlane_b32 s54, v15, 32
    v_readlane_b32 s55, v15, 48
    v_mov_b32 v15, s50
    v_add_f32 v15, s51, v15
    v_add_f32 v15, s54, v15
    v_add_f32 v15, s55, v15
""")
    for ct in range(2):
        for r in range(0, 16, 2):
            a(f"v_mov_b64 {vr(AC[ct]+r,2)}, 0")
    a("s_waitcnt lgkmcnt(0)")
    for f in range(8):
        a(f"v_lshlrev_b32 v{WD+f}, 16, v{WD+f}")
    a(f"""
    {name}_opoll:
    s_waitcnt vmcnt(0)
    """)
    for f in range(8):
        a(f"""
        s_bitcmp1_b32 s52, {f}
        s_cbranch_scc0 {name}_oc{f}
        v_cmp_eq_u32 vcc, -1, v{BF+4*f}
        s_cbranch_vccnz {name}_or{f}
        {name}_om{f}:
        s_bitset0_b32 s52, {f}
        v_mfma_f32_32x32x16_bf16 {vr(AC[0],16)}, {vr(AF+8*f,4)}, {vr(BF+4*f,4)}, {vr(AC[0],16)}
        v_mfma_f32_32x32x16_bf16 {vr(AC[1],16)}, {vr(AF+8*f+4,4)}, {vr(BF+4*f,4)}, {vr(AC[1],16)}
        s_branch {name}_oc{f}
        {name}_or{f}:
        s_cmp_gt_u32 s53, {SPIN}
        s_cbranch_scc1 {name}_om{f}
        s_add_u32 s33, s40, {f*65536}
        buffer_load_dwordx4 {vr(BF+4*f,4)}, v{VKQ}, s[24:27], s33 offen sc1
        {name}_oc{f}:
        """)
    a(f"""
    s_add_u32 s53, s53, 1
    s_cmp_lg_u32 s52, 0
    s_cbranch_scc1 {name}_opoll
    """)
    stamp(a, 7)
    a.c("split-K reduction: every wave stores its 32x64 partial; wave kq then owns tokens 8kq..8kq+7, lane -> (token l&7, 8-column group l>>3)")
    a(f"""
    s_lshl_b32 s53, s28, 13
    v_add_u32 v9, s53, v{L16}
    v_and_b32 v10, 7, v{LANE}
    s_lshl_b32 s33, s35, 3
    v_add_u32 v10, s33, v10
    v_bfe_u32 v11, v{LANE}, 4, 1
    v_lshl_add_u32 v10, v11, 5, v10
    v_lshlrev_b32 v10, 4, v10
    v_bfe_u32 v11, v{LANE}, 3, 1
    v_lshl_add_u32 v10, v11, 11, v10
    v_lshl_add_u32 v10, v{HALF}, 12, v10
    s_lshl_b32 s33, s34, 13
    v_add_u32 v10, s33, v10
    """)
    for g in range(8):
        a(f"ds_write_b128 v9, {vr(AC[0]+4*g,4)} offset:{g*1024}")
    a(f"""
    s_lshl_b32 s40, s31, 13
    s_add_u32 s40, s40, {WS_PST:#x}
    s_lshl_b32 s33, s34, 9
    s_add_u32 s40, s40, s33
    s_lshl_b32 s33, s35, 7
    s_add_u32 s40, s40, s33
    s_lshl_b32 s33, s32, 10
    s_add_u32 s41, s40, s33
    s_waitcnt lgkmcnt(0)
    s_barrier
    """)
    for si in range(4):
        a(f"ds_read_b128 {vr(16+8*si,4)}, v10 offset:{si*16384}")
        a(f"ds_read_b128 {vr(20+8*si,4)}, v10 offset:{si*16384+1024}")
    R = XU
    for si in range(4):
        a(f"s_waitcnt lgkmcnt({6-2*si})")
        for r in range(0, 8, 2):
            a(f"v_pk_add_f32 {vr(R+r,2)}, {vr(R+r,2)}, {vr(16+8*si+r,2)}")
    H = 48
    for i in range(4):
        a(f"v_cvt_pk_bf16_f32 v{H+i}, v{R+2*i}, v{R+2*i+1}")
    for i in range(4):
        z = lambda r: "0" if i == 0 else f"v{r}"
        a(f"v_dot2_f32_bf16 v52, v{H+i}, v14, {z(52)}")
        a(f"v_dot2_f32_bf16 v53, v{H+i}, v{H+i}, {z(53)}")
        a(f"v_dot2_f32_bf16 v54, v{H+i}, v{WR+i}, {z(54)}")
    HU = 56
    def red3(x, y, z, fill):
        t = [80, 81, 82]
        f = lambda: a(fill.pop(0)) if fill else a("s_nop 0")
        for r in (x, y, z):
            a(f"v_add_f32_dpp v{r}, v{r}, v{r} row_ror:8 row_mask:0xf bank_mask:0xf")
        for op in ("v_permlane16_swap_b32", "v_permlane32_swap_b32"):
            for r, tt in zip((x, y, z), t):
                a(f"v_mov_b32 v{tt}, v{r}")
            for r, tt in zip((x, y, z), t):
                a(f"{op} v{r}, v{tt}")
            for r, tt in zip((x, y, z), t):
                a(f"v_add_f32 v{r}, v{r}, v{tt}")
    for i in range(2):
        a(f"v_lshlrev_b32 v{HU+2*i}, 16, v{H+i}")
        a(f"v_and_b32 v{HU+2*i+1}, s66, v{H+i}")
    a("v_mov_b32 v55, 0")
    red3(52, 53, 54, [])
    a(f"""
    s_mov_b64 exec, 0xff
    buffer_store_dwordx4 v[52:55], v{L16}, s[24:27], s41 offen sc1
    s_mov_b64 exec, -1
    """)
    stamp(a, 8)
    for i in range(2, 4):
        a(f"v_lshlrev_b32 v{HU+2*i}, 16, v{H+i}")
        a(f"v_and_b32 v{HU+2*i+1}, s66, v{H+i}")
    a.c("==== hop A: lane (token l&7, column block l>>3) gathers one partial record")
    a(f"""
    v_and_b32 v9, 7, v{LANE}
    v_lshlrev_b32 v11, 4, v9
    v_lshl_add_u32 v11, v{VCG}, 6, v11
    s_mov_b32 s53, 0
    s_mov_b32 s48, {f32hex(1/512)}
    s_mov_b32 s49, {f32hex(1e-5)}
    s_lshl_b32 s33, s31, 6
    s_lshl_b32 s54, s34, 5
    s_add_u32 s33, s33, s54
    s_lshl_b32 s54, s35, 3
    s_add_u32 s33, s33, s54
    s_sub_u32 s33, 2047, s33
    v_sub_u32 v28, s33, v9
    s_mov_b32 s56, s16
    s_and_b32 s57, s17, 0xffff
    s_mov_b32 s58, {2048*512*2:#x}
    s_mov_b32 s59, 0x00020000
    {name}_apoll:
    buffer_load_dwordx4 v[24:27], v11, s[24:27], s40 offen sc1
    s_add_u32 s53, s53, 1
    s_waitcnt vmcnt(0)
    v_cmp_ne_u32 vcc, 0, v27
    s_cmp_gt_u32 s53, {SPIN}
    s_cbranch_scc1 {name}_adone
    s_cbranch_vccnz {name}_apoll
    {name}_adone:
    """)
    red3(24, 25, 26, [])
    a(f"""
    v_mul_f32 v24, s48, v24
    v_mul_f32 v25, s48, v25
    v_fma_f32 v25, -v24, v24, v25
    v_fma_f32 v26, -v24, v15, v26
    v_max_f32 v25, 0, v25
    v_add_f32 v25, s49, v25
    v_rsq_f32 v25, v25
    s_lshl_b32 s33, s28, 2
    s_add_u32 s33, s33, {LDS_ST}
    v_mul_f32 v26, v26, v25
    """)
    stamp(a, 9)
    a.c("v24=mean v25=rstd v26=r ; key = ordered(r) top 21 bits | (2047-row)")
    a(f"""
    v_ashrrev_i32 v27, 31, v26
    v_cmp_o_f32 vcc, v26, v26
    v_or_b32 v27, 0x80000000, v27
    v_xor_b32 v27, v27, v26
    v_and_b32 v27, 0xfffff800, v27
    v_cndmask_b32 v27, 0, v27, vcc
    v_or_b32 v27, v27, v28
    v_mov_b32 v28, v27
    v_mul_f32 v30, v24, v25
    v_add_f32 v31, 1.0, v25
    v_max_u32_dpp v28, v28, v28 row_ror:4 row_mask:0xf bank_mask:0xf
    v_mov_b32 v9, s33
    v_mov_b32 v10, {LDS_ST}
    v_max_u32_dpp v28, v28, v28 row_ror:2 row_mask:0xf bank_mask:0xf
    v_fma_f32 v64, v{HU}, v31, -v30
    v_fma_f32 v65, v{HU+1}, v31, -v30
    v_max_u32_dpp v28, v28, v28 row_ror:1 row_mask:0xf bank_mask:0xf
    v_fma_f32 v66, v{HU+2}, v31, -v30
    ds_write_b32 v9, v28
    """)
    for i in range(3, 8):
        a(f"v_fma_f32 v{64+i}, v{HU+i}, v31, -v30")
    a(f"""
    s_waitcnt lgkmcnt(0)
    s_barrier
    ds_read_b128 v[32:35], v10
    ds_read_b128 v[36:39], v10 offset:16
    """)
    for i in range(4):
        a(f"v_cvt_pk_bf16_f32 v{72+i}, v{64+2*i}, v{64+2*i+1}")
    a(f"""
    s_lshl_b32 s33, s31, 10
    s_add_u32 s33, s33, s63
    s_add_u32 s33, s33, {WS_CROW:#x}
    s_lshl_b32 s54, s31, 7
    s_add_u32 s54, s54, {WS_CKEY:#x}
    v_mov_b32 v9, 0
    v_mov_b32 v20, v27
    v_mov_b32 v21, v24
    v_mov_b32 v22, v25
    v_mov_b32 v23, v26
    s_waitcnt lgkmcnt(0)
    v_max3_u32 v32, v32, v33, v34
    v_max3_u32 v36, v36, v37, v38
    v_max3_u32 v32, v32, v35, v39
    v_max_u32 v32, v32, v36
    v_cmp_eq_u32 vcc, v32, v27
    s_mov_b64 s[36:37], vcc
    s_cbranch_vccz {name}_nokey
    """)
    a.c("the candidate row's lanes publish key record (column block 0) and h piece; the others write their output rows")
    a(f"""
    s_mov_b64 exec, s[36:37]
    s_cmp_lg_u32 s32, 0
    s_cbranch_scc1 {name}_nokey2
    buffer_store_dwordx4 v[20:23], v9, s[24:27], s54 offen sc1
    {name}_nokey2:
    buffer_store_dwordx4 {vr(H,4)}, v{VCG}, s[24:27], s33 offen sc1
    {name}_nokey:
    s_not_b64 exec, s[36:37]
    buffer_store_dwordx4 v[72:75], v{VXO}, s[56:59], s64 offen
    s_mov_b64 exec, -1
    """)
    a.c("==== hop B: wave 0 gathers the 32 candidates and the winner's row, then broadcasts through LDS")
    a(f"""
    s_cmp_lg_u32 s28, 0
    s_cbranch_scc1 {name}_bwait
    v_lshlrev_b32 v9, 7, v{L31}
    s_mov_b32 s40, {WS_CKEY:#x}
    s_mov_b32 s53, 0
    {name}_bpoll:
    buffer_load_dwordx4 v[24:27], v9, s[24:27], s40 offen sc1
    s_add_u32 s53, s53, 1
    s_waitcnt vmcnt(0)
    v_cmp_eq_u32 vcc, -1, v24
    s_cmp_gt_u32 s53, {SPIN}
    s_cbranch_scc1 {name}_bdone
    s_cbranch_vccnz {name}_bpoll
    {name}_bdone:
    v_mov_b32 v28, v24
    s_nop 1
    """)
    for dpp in DPP_MAX[:5]:
        a(f"v_max_u32_dpp v28, v28, v28 {dpp}")
        a("s_nop 1")
    a(f"""
    v_readlane_b32 s69, v28, 31
    s_nop 3
    s_and_b32 s50, s69, 0x7ff
    s_sub_u32 s50, 2047, s50
    s_lshr_b32 s51, s50, 6
    s_lshl_b32 s40, s51, 10
    s_add_u32 s40, s40, {WS_CROW:#x}
    s_mov_b32 s53, 0
    v_cmp_eq_u32 s[38:39], s69, v24
    v_mov_b32 v10, {LDS_ST+64}
    v_add_u32 v11, {LDS_ST+1024}, v{L16}
    {name}_rpoll:
    buffer_load_dwordx4 v[32:35], v{L16}, s[24:27], s40 offen sc1
    s_add_u32 s53, s53, 1
    s_waitcnt vmcnt(0)
    v_cmp_eq_u32 vcc, -1, v32
    s_cmp_gt_u32 s53, {SPIN}
    s_cbranch_scc1 {name}_rdone
    s_cbranch_vccnz {name}_rpoll
    {name}_rdone:
    ds_write_b128 v11, v[32:35]
    s_mov_b64 exec, s[38:39]
    ds_write_b128 v10, v[24:27]
    s_mov_b64 exec, -1
    s_waitcnt lgkmcnt(0)
    {name}_bwait:
    s_barrier
    v_mov_b32 v10, {LDS_ST+64}
    v_add_u32 v11, {LDS_ST+1024}, v{VT2}
    ds_read_b128 v[24:27], v10
    ds_read_u16 v29, v11
    s_waitcnt lgkmcnt(0)
    v_readfirstlane_b32 s69, v24
    v_lshlrev_b32 v29, 16, v29
    v_sub_f32 v30, v29, v25
    v_mul_f32 v30, v30, v26
    v_cvt_pk_bf16_f32 v31, v30, v30
    s_and_b32 s50, s69, 0x7ff
    s_sub_u32 s50, 2047, s50
    s_lshr_b32 s51, s50, 6
    v_and_b32 v32, 0xffff, v31
    v_and_b32 v33, s66, v31
    v_mov_b32 v19, v27
    s_cmp_eq_u32 s51, s31
    s_cbranch_scc1 {name}_winner
    s_cmp_eq_u64 s[36:37], 0
    s_cbranch_scc1 {name}_winner
    s_mov_b64 exec, s[36:37]
    buffer_store_dwordx4 v[72:75], v{VXO}, s[56:59], s64 offen
    s_mov_b64 exec, -1
    {name}_winner:
    """)
    stamp(a, 10)
    a(f"""
    s_cmp_eq_u32 s65, 0
    s_cbranch_scc1 {name}_fin
    """)
    ACC = 96
    for m, W in enumerate((GW, UW)):
        for p in range(4):
            a(f"v_dot2_f32_bf16 v{ACC+8*m+2*p}, v{W+p}, v32, 0")
            a(f"v_dot2_f32_bf16 v{ACC+8*m+2*p+1}, v{W+p}, v33, 0")
    a(f"""
    v_lshrrev_b32 v20, 4, v{LANE}
    v_lshlrev_b32 v20, 7, v20
    s_lshl_b32 s33, s28, 2
    s_add_u32 s33, s33, {LDS_FF}
    """)
    for i in range(8):
        a(f"v_permlane32_swap_b32 v{ACC+i}, v{ACC+8+i}")
    for i in range(0, 8, 2):
        a(f"v_pk_add_f32 {vr(ACC+i,2)}, {vr(ACC+i,2)}, {vr(ACC+8+i,2)}")
    a(f"""
    v_add_u32 v20, s33, v20
    v_and_b32 v21, 7, v{LANE}
    """)
    for i in range(4):
        a(f"v_permlane16_swap_b32 v{ACC+i}, v{ACC+4+i}")
    a(f"v_lshlrev_b32 v21, 5, v21")
    for i in range(0, 4, 2):
        a(f"v_pk_add_f32 {vr(ACC+i,2)}, {vr(ACC+i,2)}, {vr(ACC+4+i,2)}")
    a(f"v_add_u32 v21, {LDS_FF}, v21")
    a("s_nop 0")
    for ror in (8, 4, 2, 1):
        for i in range(4):
            a(f"v_add_f32_dpp v{ACC+i}, v{ACC+i}, v{ACC+i} row_ror:{ror} row_mask:0xf bank_mask:0xf")
    a.c("row g holds value 4g+i in reg i ; LDS [value][wave]")
    a(f"""
    ds_write_b32 v20, v{ACC}
    ds_write_b32 v20, v{ACC+1} offset:32
    ds_write_b32 v20, v{ACC+2} offset:64
    ds_write_b32 v20, v{ACC+3} offset:96
    s_waitcnt lgkmcnt(0)
    s_barrier
    ds_read_b128 v[24:27], v21
    ds_read_b128 v[32:35], v21 offset:16
    ds_read_b128 v[36:39], v21 offset:256
    ds_read_b128 v[40:43], v21 offset:272
    v_lshrrev_b32 v20, 5, v0
    v_mul_u32_u24 v20, {224*128}, v20
    v_lshl_add_u32 v20, v{L31}, 2, v20
    s_lshl_b32 s33, s60, 7
    s_add_u32 s33, s33, {WS_YP:#x}
    s_mov_b32 s12, 0x11111111
    s_mov_b32 s13, 0x11111111
    s_waitcnt lgkmcnt(0)
    v_pk_add_f32 v[24:25], v[24:25], v[26:27]
    v_pk_add_f32 v[32:33], v[32:33], v[34:35]
    v_pk_add_f32 v[36:37], v[36:37], v[38:39]
    v_pk_add_f32 v[40:41], v[40:41], v[42:43]
    v_pk_add_f32 v[24:25], v[24:25], v[32:33]
    v_pk_add_f32 v[36:37], v[36:37], v[40:41]
    v_add_f32 v24, v24, v25
    v_add_f32 v36, v36, v37
    """)
    rnd_bf16(a, 24, 24)
    rnd_bf16(a, 36, 36)
    a(f"""
    v_mul_f32 v25, {f32hex(-LOG2E)}, v24
    v_exp_f32 v25, v25
    s_nop 0
    v_add_f32 v25, 1.0, v25
    v_rcp_f32 v25, v25
    s_nop 0
    v_mul_f32 v24, v24, v25
    """)
    rnd_bf16(a, 24, 24)
    a("v_mul_f32 v24, v24, v36")
    rnd_bf16(a, 24, 24)
    a("s_nop 0")
    for f in range(8):
        a(f"v_readlane_b32 s{4+f}, v24, {f}")
    a(f"v_mul_f32 v24, s4, v{WD}")
    for f in range(1, 8):
        a(f"v_fmac_f32 v24, s{4+f}, v{WD+f}")
    a.c("the partial must never equal the sentinel; gather 4 columns per lane for full-line stores")
    a(f"""
    v_cmp_ne_u32 vcc, -1, v24
    v_mov_b32 v27, 0x7fc00000
    s_nop 0
    v_cndmask_b32 v24, v27, v24, vcc
    s_nop 1
    v_mov_b32_dpp v25, v24 quad_perm:[1,1,1,1] row_mask:0xf bank_mask:0xf
    v_mov_b32_dpp v26, v24 quad_perm:[2,2,2,2] row_mask:0xf bank_mask:0xf
    v_mov_b32_dpp v27, v24 quad_perm:[3,3,3,3] row_mask:0xf bank_mask:0xf
    s_mov_b64 exec, s[12:13]
    buffer_store_dwordx4 v[24:27], v20, s[24:27], s33 offen sc1
    s_mov_b64 exec, -1
    """)
    stamp(a, 11)
    a.c("==== hop C: workgroups 0..15 reduce 32 output columns each")
    a(f"""
    s_cmp_ge_u32 s2, 16
    s_cbranch_scc1 {name}_fin
    v_lshlrev_b32 v9, 4, v0
    v_mov_b32 v10, 0x7fffffff
    v_cmp_gt_u32 vcc, 256, v0
    s_mul_i32 s40, s2, {224*128}
    s_add_u32 s40, s40, {WS_YP:#x}
    v_cndmask_b32 v10, v10, v9, vcc
    s_add_u32 s41, s40, 8192
    s_add_u32 s42, s40, 16384
    s_add_u32 s43, s40, 24576
    s_mov_b32 s53, 0
    """)
    rnd_bf16(a, 19, 19)
    a(f"""
    v_mul_f32 v19, {f32hex(-LOG2E)}, v19
    v_exp_f32 v19, v19
    v_and_b32 v31, s66, v31
    v_add_f32 v19, 1.0, v19
    v_rcp_f32 v19, v19
    s_nop 0
    """)
    rnd_bf16(a, 19, 19)
    a(f"""
    {name}_cpoll:
    buffer_load_dwordx4 v[32:35], v9, s[24:27], s40 offen sc1
    buffer_load_dwordx4 v[36:39], v9, s[24:27], s41 offen sc1
    buffer_load_dwordx4 v[40:43], v9, s[24:27], s42 offen sc1
    buffer_load_dwordx4 v[44:47], v10, s[24:27], s43 offen sc1
    s_add_u32 s53, s53, 1
    s_waitcnt vmcnt(0)
    v_max3_u32 v24, v32, v36, v40
    v_max_u32 v24, v24, v44
    v_cmp_eq_u32 vcc, -1, v24
    s_cmp_gt_u32 s53, {SPIN}
    s_cbranch_scc1 {name}_cdone
    s_cbranch_vccnz {name}_cpoll
    {name}_cdone:
    v_pk_add_f32 v[32:33], v[32:33], v[36:37]
    v_pk_add_f32 v[34:35], v[34:35], v[38:39]
    v_pk_add_f32 v[40:41], v[40:41], v[44:45]
    v_pk_add_f32 v[42:43], v[42:43], v[46:47]
    v_pk_add_f32 v[24:25], v[32:33], v[40:41]
    v_pk_add_f32 v[26:27], v[34:35], v[42:43]
    s_lshl_b32 s33, s28, 2
    s_add_u32 s33, s33, {LDS_ST+2048}
    v_permlane32_swap_b32 v24, v26
    v_permlane32_swap_b32 v25, v27
    v_lshrrev_b32 v20, 4, v{LANE}
    v_pk_add_f32 v[24:25], v[24:25], v[26:27]
    v_and_b32 v21, 7, v{LANE}
    v_lshlrev_b32 v20, 5, v20
    v_permlane16_swap_b32 v24, v25
    v_lshl_add_u32 v20, v21, 7, v20
    v_add_u32 v20, s33, v20
    v_add_f32 v24, v24, v25
    v_lshlrev_b32 v22, 5, v{L31}
    v_add_u32 v22, {LDS_ST+2048}, v22
    v_add_f32_dpp v24, v24, v24 row_ror:8 row_mask:0xf bank_mask:0xf
    s_lshr_b32 s33, s2, 1
    s_nop 0
    ds_write_b32 v20, v24
    s_waitcnt lgkmcnt(0)
    s_barrier
    s_cmp_lg_u32 s28, s33
    s_cbranch_scc1 {name}_fin
    ds_read_b128 v[24:27], v22
    ds_read_b128 v[32:35], v22 offset:16
    s_and_b32 s33, s2, 1
    s_lshl_b32 s33, s33, 5
    s_waitcnt lgkmcnt(0)
    v_pk_add_f32 v[24:25], v[24:25], v[26:27]
    v_pk_add_f32 v[32:33], v[32:33], v[34:35]
    v_pk_add_f32 v[24:25], v[24:25], v[32:33]
    v_add_f32 v24, v24, v25
    """)
    rnd_bf16(a, 24, 24)
    a("v_mul_f32 v24, v24, v19")
    rnd_bf16(a, 24, 24)
    a("v_add_f32 v24, v24, v31")
    rnd_bf16(a, 24, 24)
    a(f"""
    v_add_f32 v24, v24, v29
    v_cvt_pk_bf16_f32 v24, v24, v24
    s_lshl_b32 s40, s50, 10
    s_mov_b32 s4, -1
    s_mov_b32 s5, 0
    s_lshl_b64 exec, s[4:5], s33
    buffer_store_short v24, v{VT2}, s[56:59], s40 offen
    {name}_fin:
    """)
    stamp_flush(a, 0, 12)
    a(f"""
    {name}_end:
    s_endpgm
    """)
    a.label(f"{name}_slow")
    a.c("true-max path: side loads first, then pass 1: row maxima over this wave's keys")
    for op in side_ops() + [gu_op(0), gu_op(1)]:
        a(op)
    a(f"""
    s_waitcnt vmcnt(0)
    s_mov_b32 s55, s42
    s_mov_b32 s52, 16
    """)
    for qt in range(4):
        a(f"v_mov_b32 v{MX[qt]}, 0xff800000")
    a.label(f"{name}_s1")
    a(f"buffer_load_dwordx4 {vr(KB[0],4)}, v{VKQ}, s[24:27], s55 offen sc1")
    a("s_add_u32 s55, s55, 1024")
    a("s_waitcnt vmcnt(0)")
    for qt in range(4):
        a(f"v_mfma_f32_32x32x16_bf16 {vr(S[qt],16)}, {vr(KB[0],4)}, {vr(Q[qt],4)}, 0")
    a("s_nop 15")
    for qt in range(4):
        for i in range(0, 16, 2):
            a(f"v_max3_f32 v{MX[qt]}, v{S[qt]+i}, v{S[qt]+i+1}, v{MX[qt]}")
    a(f"""
    s_sub_u32 s52, s52, 1
    s_cmp_lg_u32 s52, 0
    s_cbranch_scc1 {name}_s1
    s_lshl_b32 s53, s28, 10
    v_lshlrev_b32 v8, 2, v{LANE}
    v_add_u32 v9, s53, v8
    """)
    for qt in range(4):
        a(f"ds_write_b32 v9, v{MX[qt]} offset:{qt*256}")
    a(f"""
    s_lshl_b32 s53, s34, 10
    v_lshlrev_b32 v8, 2, v{L31}
    v_add_u32 v9, s53, v8
    s_waitcnt lgkmcnt(0)
    s_barrier
    """)
    for qt in range(4):
        for kq in range(4):
            a(f"ds_read_b32 v{S[0]+2*kq}, v9 offset:{kq*2048+qt*256}\nds_read_b32 v{S[0]+2*kq+1}, v9 offset:{kq*2048+qt*256+128}")
        a("s_waitcnt lgkmcnt(0)")
        a(f"v_max3_f32 v{MX[qt]}, v{S[0]}, v{S[0]+1}, v{S[0]+2}")
        a(f"v_max3_f32 v{MX[qt]}, v{S[0]+3}, v{S[0]+4}, v{MX[qt]}")
        a(f"v_max3_f32 v{MX[qt]}, v{S[0]+5}, v{S[0]+6}, v{MX[qt]}")
        a(f"v_max_f32 v{MX[qt]}, v{S[0]+7}, v{MX[qt]}")
    a(f"""
    s_barrier
    s_mov_b32 s52, 16
    """)
    a.label(f"{name}_s2")
    kv_load(0)
    a("s_waitcnt vmcnt(0)")
    for qt in range(4):
        a(f"v_mfma_f32_32x32x16_bf16 {vr(S[qt],16)}, {vr(KB[0],4)}, {vr(Q[qt],4)}, 0")
    a("s_nop 15")
    for qt in range(4):
        for i in range(16):
            a(f"v_sub_f32 v{S[qt]+i}, v{S[qt]+i}, v{MX[qt]}")
        for i in range(16):
            a(f"v_exp_f32 v{S[qt]+i}, v{S[qt]+i}")
        a("s_nop 1")
        a(f"v_smfmac_f32_32x32x32_bf16 {vr(O[qt],16)}, {vr(VB[0],4)}, {vr(S[qt],8)}, v{IDX}")
        a(f"v_smfmac_f32_32x32x32_bf16 {vr(O[qt],16)}, {vr(VB[0]+4,4)}, {vr(S[qt]+8,8)}, v{IDX}")
    a(f"""
    s_nop 7
    s_sub_u32 s52, s52, 1
    s_cmp_lg_u32 s52, 0
    s_cbranch_scc1 {name}_s2
    s_branch {name}_combine
    """)
    return descriptor(name, 248)
```

```python
class Asm:
    def __init__(self):
        self.lines = []
    def __call__(self, s):
        for l in s.strip("\n").split("\n"):
            l = l.strip()
            if not l:
                continue
            if l.endswith(":") or l.startswith("."):
                self.lines.append(l)
            else:
                self.lines.append("    " + l)
    def c(self, s):
        self.lines.append("    ; " + s)
    def label(self, s):
        self.lines.append(s + ":")
    def text(self):
        return "\n".join(self.lines) + "\n"

def vr(b, n=1):
    return f"v{b}" if n == 1 else f"v[{b}:{b+n-1}]"
def sr(b, n=1):
    return f"s{b}" if n == 1 else f"s[{b}:{b+n-1}]"

def srd(a, d, base, nbytes):
    a(f"s_mov_b32 s{d}, s{base}")
    a(f"s_and_b32 s{d+1}, s{base+1}, 0xffff")
    a(f"s_mov_b32 s{d+2}, {nbytes:#x}")
    a(f"s_mov_b32 s{d+3}, 0x00020000")

def kernel_head(a, name):
    a(f".globl {name}")
    a(".p2align 8")
    a(f".type {name},@function")
    a(f"{name}:")

def descriptor(name, vgpr, sgpr=100, accum=None):
    accum = accum if accum is not None else (vgpr + 3) // 4 * 4
    return f""".p2align 6
.amdhsa_kernel {name}
  .amdhsa_next_free_vgpr {vgpr}
  .amdhsa_next_free_sgpr {sgpr}
  .amdhsa_accum_offset {accum}
  .amdhsa_group_segment_fixed_size 0
  .amdhsa_kernarg_size 88
  .amdhsa_user_sgpr_count 2
  .amdhsa_user_sgpr_kernarg_segment_ptr 1
  .amdhsa_system_sgpr_workgroup_id_x 1
.end_amdhsa_kernel
"""

import os
STAMPS = bool(int(os.environ.get("STAMPS", "0")))
WS_STAMP = 0xC00000
def stamp(a, i):
    if STAMPS:
        a(f"{'s_memtime' if os.environ.get('STAMPCYC') else 's_memrealtime'} s[{72+2*i}:{73+2*i}]")
        a("s_waitcnt lgkmcnt(0)")
def stamp_flush(a, kidx, n, wave_sgpr=28, srd_base=24, vt=1):
    if not STAMPS:
        return
    a("s_mov_b64 exec, -1")
    stamp(a, n)
    if os.environ.get("DBGSTAMP"):
        a("s_load_dwordx2 s[4:5], s[0:1], 72")
        a("s_waitcnt lgkmcnt(0)")
        a("s_and_b32 s5, s5, 0xffff\ns_mov_b32 s6, 64\ns_mov_b32 s7, 0x00020000")
        a("s_not_b32 s72, s72")
        a(f"v_mov_b32 v{vt}, 0")
        a("s_mov_b64 exec, 1")
        for i in range(n + 1):
            if i == 11: continue
            a(f"v_mov_b32 v0, s{72+2*i}")
            a(f"buffer_atomic_umax v0, v{vt}, s[4:7], 0 offen offset:{4*i} sc1")
            a("s_nop 1")
        return
    a(f"s_lshl_b32 s70, s2, 9")
    a(f"s_lshl_b32 s71, s{wave_sgpr}, 6")
    a(f"s_add_u32 s70, s70, s71")
    a(f"s_add_u32 s70, s70, {WS_STAMP + kidx * 256 * 512:#x}")
    a(f"v_mov_b32 v{vt}, 0")
    for i in range(n + 1):
        a(f"v_mov_b32 v0, s{72+2*i}")
        a(f"buffer_store_dword v0, v{vt}, s[{srd_base}:{srd_base+3}], s70 offen offset:{4*i}")
        a("s_nop 1")

DPP_MAX = ("row_shr:1 row_mask:0xf bank_mask:0xf", "row_shr:2 row_mask:0xf bank_mask:0xf", "row_shr:4 row_mask:0xf bank_mask:0xf",
           "row_shr:8 row_mask:0xf bank_mask:0xf", "row_bcast:15 row_mask:0xa bank_mask:0xf", "row_bcast:31 row_mask:0xc bank_mask:0xf")
```

```python
from asmlib import *
from layout import *
import os

SLOT = 28672
NSLOT = 5
LDS_P = SLOT * NSLOT
LDS_CS = LDS_P + 1536
LDS_NR = LDS_CS + 2048
LDS_GU = LDS_NR + 128
K1_LDS = LDS_GU + 16384
SPIN = 200000
HI = 0x20000
QKV_SC = "sc1"
AHEAD = int(os.environ.get('AHEAD', '3'))
LA = 2
GUP = int(os.environ.get('GUP', '4'))
DBG = bool(os.environ.get("DBGSTAMP"))
INITM = os.environ.get("INITM", "shard")
INC = {"one": "buffer_atomic_add v5, v4, s[20:23], 0 offen sc1", "shard": "buffer_atomic_add v5, v4, s[20:23], s33 offen sc1",
       "byte": "buffer_store_byte v5, v4, s[20:23], s2 offen sc1"}[INITM]
ICHK = {"one": "v_cmp_gt_u32 vcc, 256, v5", "shard": f"v_cmp_gt_u32 vcc, {8 if DBG else 4}, v5", "byte": "v_cmp_ne_u32 vcc, 0x01010101, v5"}[INITM]
FILLP = int(os.environ.get('FILLP', '3'))
ROTC = {"full": "", "xcd": "s_mov_b32 s49, s29", "none": "s_mov_b32 s49, 0",
        "x2": "s_and_b32 s49, s49, 1\n    s_add_u32 s49, s49, s29", "x4": "s_and_b32 s49, s49, 3\n    s_add_u32 s49, s49, s29",
        "fx": "s_add_u32 s49, s49, s29"}[os.environ.get("ROT", "full")]

def gen_k1(a, name):
    LANE = 2; HALF = 3
    VL = [8, 9, 10, 11]
    VXR = [12, 13, 14, 15]
    VS = [40, 41, 42, 43]
    VDX = 16; VDW = 44
    ONES = 18
    XF = [128 + 4 * i for i in range(8)]
    WF = [160 + 12 * i for i in range(LA + 1)]
    ACC = [56, 72, 88]
    CS = [104, 108, 112]; SX = [24, 28]; SXX = [32, 36]
    kernel_head(a, name)
    a(f"""
    s_cmp_ge_u32 s2, 256
    s_cbranch_scc1 {name}_end
    s_load_dwordx4 s[4:7], s[0:1], 0
    s_load_dwordx4 s[8:11], s[0:1], 72
    s_getpc_b64 s[36:37]
    {name}_pc:
    """)
    stamp(a, 0)
    a(f"""
    v_lshrrev_b32 v1, 6, v0
    v_and_b32 v{LANE}, 63, v0
    s_and_b32 s29, s2, 7
    v_readfirstlane_b32 s28, v1
    s_lshr_b32 s30, s2, 3
    s_lshr_b32 s31, s29, 1
    s_lshl_b32 s31, s31, 2
    s_and_b32 s33, s30, 3
    s_add_u32 s31, s31, s33
    s_lshl_b32 s49, s33, 1
    s_and_b32 s32, s29, 1
    s_lshl_b32 s32, s32, 3
    s_lshr_b32 s33, s30, 2
    s_add_u32 s32, s32, s33
    s_add_u32 s49, s49, s33
    s_and_b32 s45, s28, 3
    {ROTC}
    s_mov_b32 s14, {2048*512*2:#x}
    s_mov_b32 s15, 0x00020000
    s_mov_b32 s18, {512*1536*2:#x}
    s_mov_b32 s19, 0x00020000
    v_lshrrev_b32 v4, 3, v{LANE}
    v_and_b32 v6, 7, v{LANE}
    s_mul_i32 s56, s32, 3
    s_and_b32 s33, s32, 1
    s_add_u32 s57, s56, s33
    s_xor_b32 s33, s33, 1
    s_lshl_b32 s33, s33, 1
    s_add_u32 s58, s56, s33
    """)
    a.c("s28=wave s45=token tile / k-step s31=mb s32=nb s49=phase rotation s57=first sub-tile of the 64-col pair s58=single sub-tile")
    a.c("x staging: lane -> row l>>3 of an 8-row group, LDS chunk q=l&7 holds global chunk q^((row>>1)&7)")
    a.c("W staging: full 128-byte lines for the pair (halves swapped on rows with bit1 set) + 64 B rows for the single")
    a(f"""
    v_lshrrev_b32 v5, 4, v{LANE}
    v_xor_b32 v5, v5, v6
    v_lshlrev_b32 v{VDX}, 10, v4
    v_lshl_add_u32 v{VDX}, v5, 4, v{VDX}
    v_xor_b32 v{VDX+1}, 64, v{VDX}
    s_lshl_b32 s40, s31, 17
    s_lshl_b32 s33, s45, 15
    s_add_u32 s40, s40, s33
    s_lshl_b32 s42, s45, 12
    s_add_u32 s42, s42, 12288
    v_bfe_u32 v5, v{LANE}, 4, 1
    v_lshlrev_b32 v5, 2, v5
    v_xor_b32 v5, v5, v6
    v_mul_u32_u24 v{VDW}, 3072, v4
    v_lshl_add_u32 v{VDW}, v5, 4, v{VDW}
    v_lshrrev_b32 v{VDW+1}, 2, v{LANE}
    v_mul_u32_u24 v{VDW+1}, 3072, v{VDW+1}
    v_and_b32 v6, 3, v{LANE}
    v_lshl_add_u32 v{VDW+1}, v6, 4, v{VDW+1}
    s_mul_i32 s41, s45, 49152
    s_lshl_b32 s33, s57, 6
    s_add_u32 s50, s41, s33
    s_lshl_b32 s33, s58, 6
    s_add_u32 s59, s41, s33
    s_mul_i32 s52, s45, 3072
    v_lshlrev_b32 v117, 4, v{LANE}
    s_waitcnt lgkmcnt(0)
    s_mov_b32 s12, s4
    s_and_b32 s13, s5, 0xffff
    s_mov_b32 s16, s6
    s_and_b32 s17, s7, 0xffff
    """)
    def dma_x(p):
        so = (p % NSLOT) * SLOT
        a(f"s_add_u32 s43, s49, {p}")
        a(f"s_and_b32 s43, s43, 7")
        a(f"s_lshl_b32 s43, s43, 7")
        a(f"s_add_u32 s43, s43, s40")
        for g in range(4):
            a(f"s_add_u32 m0, s42, {so + g * 1024}")
            a(f"s_add_u32 s41, s43, {g * 8192}")
            a(f"buffer_load_dwordx4 v{VDX + (g & 1)}, s[12:15], s41 offen lds")
    def dma_w(p):
        so = (p % NSLOT) * SLOT
        a(f"s_add_u32 s43, s49, {p}")
        a(f"s_and_b32 s43, s43, 7")
        a(f"s_mul_i32 s43, s43, {4*49152}")
        a(f"s_add_u32 m0, s52, {so}")
        a(f"s_add_u32 s41, s43, s50")
        a(f"buffer_load_dwordx4 v{VDW}, s[16:19], s41 offen lds")
        a(f"s_add_u32 m0, s52, {so + 1024}")
        a(f"s_add_u32 s41, s41, {8*3072}")
        a(f"buffer_load_dwordx4 v{VDW}, s[16:19], s41 offen lds")
        a(f"s_add_u32 m0, s52, {so + 2048}")
        a(f"s_add_u32 s41, s43, s59")
        a(f"buffer_load_dwordx4 v{VDW+1}, s[16:19], s41 offen lds")
    NX = AHEAD
    a(f"""
    s_cmp_lt_u32 s28, 4
    s_cbranch_scc1 {name}_C
    """)
    outst = []
    for p in range(AHEAD):
        dma_w(p); outst += [p] * 3
        if p == 0:
            a.c("code prefetch through an exact-size descriptor (2 KB per helper wave)")
            a(f"""
            s_and_b32 s37, s37, 0xffff
            s_mov_b32 s38, code_end-{name}_pc
            s_mov_b32 s39, 0x00020000
            s_lshl_b32 s33, s30, 2
            s_add_u32 s33, s33, s45
            s_and_b32 s33, s33, 15
            s_lshl_b32 s33, s33, 11
            buffer_load_dwordx4 v[20:23], v117, s[36:39], s33 offen
            buffer_load_dwordx4 v[20:23], v117, s[36:39], s33 offen offset:1024
            """)
            outst += ["x", "x"]
    srd(a, 24, 10, WS_BYTES)
    srd(a, 20, 8, 256)
    a(f"""
    v_lshlrev_b32 v4, 2, v{LANE}
    {"v_mov_b32 v4, 0" if INITM == "one" else ""}
    {"v_and_b32 v4, 127, v4" if DBG else ""}
    {"v_add_u32 v4, 64, v4" if DBG else ""}
    """)
    for p in range(8):
        idx = max(i for i, x in enumerate(outst) if x == p)
        a(f"s_waitcnt vmcnt({len(outst) - 1 - idx})")
        del outst[:idx + 1]
        a("s_barrier")
        if p == 0: stamp(a, 1)
        if p + AHEAD < 8:
            dma_w(p + AHEAD); dma_x(p + AHEAD); outst += [p + AHEAD] * 7
    stamp(a, 2)
    a(f"""
    s_barrier
    s_cmp_lg_u32 s28, 4
    s_cbranch_scc1 {name}_J
    s_mov_b32 s53, 0
    {name}_ipoll:
    buffer_load_dword v5, v4, s[20:23], 0 offen sc1
    s_add_u32 s53, s53, 1
    s_waitcnt vmcnt(0)
    {ICHK}
    s_cmp_gt_u32 s53, {SPIN}
    s_cbranch_scc1 {name}_J
    s_cbranch_vccnz {name}_ipoll
    s_branch {name}_J
    """)
    a.label(f"{name}_C")
    for p in range(NX):
        dma_x(p)
    a(f"""
    v_lshrrev_b32 v{HALF}, 5, v{LANE}
    v_bfe_u32 v5, v{LANE}, 2, 2
    v_bfe_u32 v6, v{LANE}, 4, 1
    v_lshlrev_b32 v7, 5, v6
    v_and_b32 v6, 3, v{LANE}
    v_lshl_add_u32 v7, v6, 3, v7
    v_lshl_add_u32 v4, v{HALF}, 10, v7
    v_lshl_add_u32 v4, v5, 7, v4
    v_bfe_u32 v6, v{LANE}, 3, 1
    v_lshl_add_u32 v4, v6, 6, v4
    v_lshl_add_u32 v7, v{HALF}, 9, v7
    v_lshl_add_u32 v7, v5, 6, v7
    v_add_u32 v46, 2048, v7
    v_and_b32 v116, 31, v{LANE}
    v_bfe_u32 v6, v{LANE}, 1, 3
    v_xor_b32 v6, v6, v{HALF}
    v_lshlrev_b32 v5, 7, v116
    v_add_u32 v5, s42, v5
    """)
    for j in range(4):
        a(f"""
        s_add_u32 s33, s45, {j}
        s_and_b32 s33, s33, 3
        s_mul_i32 s35, s33, 3072
        s_lshl_b32 s34, s33, 1
        v_add_u32 v{VL[j]}, s35, v4
        v_add_u32 v{VS[j]}, s35, v46
        v_xor_b32 v7, s34, v6
        v_lshl_add_u32 v{VXR[j]}, v7, 4, v5
        """)
    a(f"""
    v_mov_b32 v{ONES}, 0x3f803f80
    v_mov_b32 v{ONES+1}, 0x3f803f80
    """)
    srd(a, 24, 10, WS_BYTES)
    srd(a, 20, 8, 256)
    a.c("pre-fill this workgroup's share of the hand-off region with the 'not yet written' sentinel, then count it in d_debug")
    a(f"""
    v_mov_b32 v196, -1
    v_mov_b32 v197, -1
    v_mov_b32 v198, -1
    v_mov_b32 v199, -1
    s_mul_i32 s34, s2, {SENT_PER_WG}
    s_mul_i32 s35, s45, 3072
    s_add_u32 s34, s34, s35
    s_add_u32 s34, s34, {WS_SENT:#x}
    """)
    for i in range(3):
        a(f"buffer_store_dwordx4 v[196:199], v117, s[24:27], s34 offen offset:{i*1024} sc1")
    a.c("epilogue addresses")
    a(f"""
    s_lshl_b32 s33, s45, 9
    v_lshlrev_b32 v118, 4, v{HALF}
    v_add_u32 v118, {HI:#x}, v118
    v_add_u32 v118, s33, v118
    v_lshlrev_b32 v119, 2, v{LANE}
    v_add_u32 v119, {HI:#x}, v119
    v_add_u32 v119, s33, v119
    v_lshlrev_b32 v120, 5, v116
    v_lshl_add_u32 v120, v{HALF}, 4, v120
    s_lshl_b32 s34, s31, 12
    s_lshl_b32 s35, s45, 10
    s_add_u32 s34, s34, s35
    s_lshl_b32 s35, s45, 2
    s_add_u32 s44, s35, {HI:#x}
    """)
    for us, ty, dst, nr, sc in ((57, 60, 46, 48, 61), (58, 63, 64, 65, 66)):
        a(f"""
        s_lshr_b32 s{ty}, s{us}, 4
        s_lshl_b32 s{dst}, s{ty}, 21
        s_and_b32 s35, s{us}, 15
        s_lshl_b32 s35, s35, 17
        s_add_u32 s{dst}, s{dst}, s35
        s_add_u32 s{dst}, s{dst}, s34
        s_cmp_eq_u32 s{ty}, 0
        s_cselect_b32 s{sc}, {f32hex(QSCALE)}, 1.0
        """)
    a(f"""
    s_mul_i32 s33, s45, {3*2304}
    v_mul_u32_u24 v124, 72, v116
    v_lshl_add_u32 v124, v{HALF}, 3, v124
    v_add_u32 v124, s33, v124
    v_bfe_u32 v125, v{LANE}, 2, 2
    v_lshl_add_u32 v125, v{HALF}, 3, v125
    v_mul_u32_u24 v125, 72, v125
    v_bfe_u32 v6, v{LANE}, 4, 1
    v_lshl_add_u32 v125, v6, 5, v125
    v_and_b32 v5, 1, v{LANE}
    v_lshl_add_u32 v125, v5, 4, v125
    v_bfe_u32 v5, v{LANE}, 1, 1
    v_lshl_add_u32 v125, v5, 3, v125
    v_add_u32 v125, s33, v125
    v_and_b32 v126, 15, v{LANE}
    v_lshlrev_b32 v126, 4, v126
    v_lshl_add_u32 v126, v{HALF}, 8, v126
    v_lshl_add_u32 v126, v6, 16, v126
    v_add_u32 v121, s44, v117
    v_lshlrev_b32 v122, 4, v116
    v_add_u32 v123, {HI:#x}, v122
    v_add_u32 v122, s44, v122
    v_add_u32 v127, {HI:#x}, v117
    v_and_b32 v5, 3, v{LANE}
    v_cmp_eq_u32 s[50:51], 1, v5
    v_cmp_eq_u32 s[52:53], 2, v5
    v_cmp_eq_u32 s[54:55], 3, v5
    """)
    cur_base = [0]
    def rebase(p):
        so = (p % NSLOT) * SLOT
        want = (so // (2 * SLOT)) * 2 * SLOT
        ops = []
        if want != cur_base[0]:
            d = want - cur_base[0]
            ops = [f"v_add_u32 v{r}, {d & 0xffffffff:#x}, v{r}" for r in VL + VXR + VS]
            cur_base[0] = want
        return so - want, ops
    def reads(t):
        p, j = t >> 2, t & 3
        off, pre = rebase(p)
        wf = WF[t % (LA + 1)]
        return pre, [f"ds_read_b128 {vr(XF[t & 7],4)}, v{VXR[j]} offset:{off}",
                f"ds_read_b64_tr_b16 {vr(wf,2)}, v{VL[j]} offset:{off}",
                f"v_xor_b32 v7, 64, v{VL[j]}\nds_read_b64_tr_b16 {vr(wf+2,2)}, v{VL[j]} offset:{off+512}",
                f"ds_read_b64_tr_b16 {vr(wf+4,2)}, v7 offset:{off}",
                f"ds_read_b64_tr_b16 {vr(wf+6,2)}, v7 offset:{off+512}",
                f"ds_read_b64_tr_b16 {vr(wf+8,2)}, v{VS[j]} offset:{off}",
                f"ds_read_b64_tr_b16 {vr(wf+10,2)}, v{VS[j]} offset:{off+256}"]
    for t in range(32 + LA):
        p, j = t >> 2, t & 3
        rd = []
        if t < 32:
            if j == 0:
                if p < NX:
                    a(f"s_waitcnt vmcnt({4 * (NX - 1 - p) + 3})")
                if p == FILLP:
                    a("s_waitcnt vmcnt(0)")
                a("s_barrier")
                if p == 0: stamp(a, 1)
                if p == FILLP:
                    a.c("the compute waves drained their sentinel fills before this barrier: count this workgroup in d_debug")
                    a(f"""
                    s_cmp_lg_u32 s28, 0
                    s_cbranch_scc1 {name}_noinc
                    v_mov_b32 v4, 0
                    v_mov_b32 v5, 1
                    s_and_b32 s33, s2, {31 if DBG else 63}
                    s_lshl_b32 s33, s33, 2
                    s_add_u32 s33, s33, {64 if DBG else 0}
                    s_mov_b64 exec, 1
                    {INC}
                    s_mov_b64 exec, -1
                    {name}_noinc:
                    """)
            pre, rd = reads(t)
            for o in pre: a(o)
        if t < LA:
            for o in rd: a(o)
            continue
        u = t - LA
        up, uj = u >> 2, u & 3
        a(f"s_waitcnt lgkmcnt({7 * (min(t - 1, 31) - u)})")
        wf = WF[u % (LA + 1)]; xf = XF[u & 7]
        for i in range(3):
            c = "0" if u == 0 else vr(ACC[i], 16)
            a(f"v_mfma_f32_32x32x16_bf16 {vr(ACC[i],16)}, {vr(wf+4*i,4)}, {vr(xf,4)}, {c}")
            for o in rd[[0, 3, 5][i]:[3, 5, 7][i]]: a(o)
        if uj == 3:
            z = lambda cond, r: "0" if cond else vr(r, 4)
            for q in range(8):
                x2 = XF[(4 * up) & 7] + 2 * q
                zz = (up == 0 and q < 2)
                a(f"v_mfma_f32_4x4x4_16b_bf16 {vr(SX[q&1],4)}, {vr(ONES,2)}, {vr(x2,2)}, {z(zz, SX[q&1])}")
                a(f"v_mfma_f32_4x4x4_16b_bf16 {vr(SXX[q&1],4)}, {vr(x2,2)}, {vr(x2,2)}, {z(zz, SXX[q&1])}")
                if q < 6:
                    i, hh = q % 3, q // 3
                    a(f"v_mfma_f32_4x4x4_16b_bf16 {vr(CS[i],4)}, {vr(ONES,2)}, {vr(wf+4*i+2*hh,2)}, {z(up == 0 and hh == 0, CS[i])}")
    stamp(a, 2)
    a.c("publish colsum partials P[col][tile]; finish the row statistics (lane = token)")
    a(f"""
    s_nop 1
    v_mov_b32 v{CS[2]+1}, v{CS[2]}
    v_permlane32_swap_b32 v{CS[0]}, v{CS[1]}
    s_nop 0
    v_permlane32_swap_b32 v{CS[2]}, v{CS[2]+1}
    v_add_f32 v{CS[0]}, v{CS[0]}, v{CS[1]}
    v_add_f32 v{SX[0]}, v{SX[0]}, v{SX[1]}
    v_add_f32 v{CS[2]}, v{CS[2]}, v{CS[2]+1}
    ds_write_b32 v121, v{CS[0]} offset:{LDS_P-HI}
    ds_write_b32 v122, v{CS[2]} offset:{LDS_P-HI+1024}
    v_pk_add_f32 {vr(SXX[0],2)}, {vr(SXX[0],2)}, {vr(SXX[1],2)}
    v_pk_add_f32 {vr(SXX[0]+2,2)}, {vr(SXX[0]+2,2)}, {vr(SXX[1]+2,2)}
    v_cndmask_b32 v{SXX[0]}, v{SXX[0]}, v{SXX[0]+1}, s[50:51]
    v_cndmask_b32 v{SXX[0]}, v{SXX[0]}, v{SXX[0]+2}, s[52:53]
    v_cndmask_b32 v{SXX[0]}, v{SXX[0]}, v{SXX[0]+3}, s[54:55]
    s_waitcnt lgkmcnt(0)
    s_barrier
    ds_read_b128 v[4:7], v127 offset:{LDS_P-HI}
    ds_read_b128 v[8:11], v123 offset:{LDS_P-HI+1024}
    v_permlane32_swap_b32 v{SX[0]}, v{SXX[0]}
    v_mov_b64 v[40:41], 0
    v_add_f32 v{SX[0]}, v{SX[0]}, v{SXX[0]}
    v_mov_b32 v{SXX[0]}, v{SX[0]}
    v_mov_b64 v[42:43], 0
    v_mov_b64 v[44:45], 0
    v_permlane32_swap_b32 v{SX[0]}, v{SXX[0]}
    v_mov_b64 v[46:47], 0
    v_mul_f32 v{SX[0]}, {f32hex(1/512)}, v{SX[0]}
    v_mul_f32 v{SXX[0]}, {f32hex(1/512)}, v{SXX[0]}
    v_fma_f32 v{SXX[0]}, -v{SX[0]}, v{SX[0]}, v{SXX[0]}
    v_max_f32 v{SXX[0]}, 0, v{SXX[0]}
    v_add_f32 v{SXX[0]}, {f32hex(1e-5)}, v{SXX[0]}
    v_rsq_f32 v{SXX[0]}, v{SXX[0]}
    s_waitcnt lgkmcnt(0)
    v_pk_add_f32 v[4:5], v[4:5], v[6:7]
    v_pk_add_f32 v[8:9], v[8:9], v[10:11]
    v_add_f32 v4, v4, v5
    v_add_f32 v8, v8, v9
    ds_write_b32 v119, v4 offset:{LDS_CS-HI}
    ds_write_b32 v119, v8 offset:{LDS_CS-HI+256}
    v_mul_f32 v16, s61, v{SXX[0]}
    v_mul_f32 v18, s66, v{SXX[0]}
    v_mul_f32 v17, v{SX[0]}, v16
    v_mul_f32 v19, v{SX[0]}, v18
    v_sub_f32 v17, 0, v17
    v_sub_f32 v19, 0, v19
    v_mov_b64 v[48:49], 0
    v_mov_b64 v[50:51], 0
    s_waitcnt lgkmcnt(0)
    """)
    CSB = 128; PK = 176
    for n in range(3):
        for g in range(4):
            a(f"ds_read_b128 {vr(CSB+16*n+4*g,4)}, v118 offset:{LDS_CS-HI+128*n+32*g}")
    for n in range(3):
        ab = 16 if n < 2 else 18
        for i in range(0, 16, 2):
            a(f"v_pk_mul_f32 {vr(ACC[n]+i,2)}, {vr(ACC[n]+i,2)}, {vr(ab,2)} op_sel_hi:[1,0]")
    def finish(n):
        ab = 16 if n < 2 else 18
        for i in range(0, 16, 2):
            a(f"v_pk_fma_f32 {vr(ACC[n]+i,2)}, {vr(CSB+16*n+i,2)}, {vr(ab,2)}, {vr(ACC[n]+i,2)} op_sel:[0,1,0] op_sel_hi:[1,1,1]")
        for i in range(8):
            a(f"v_cvt_pk_bf16_f32 v{PK+8*n+i}, v{ACC[n]+2*i}, v{ACC[n]+2*i+1}")
    def norm(n):
        for i in range(0, 8, 2):
            a(f"v_pk_fma_f32 {vr(40+4*n,2)}, {vr(ACC[n]+i,2)}, {vr(ACC[n]+i,2)}, {vr(40+4*n,2)}")
            a(f"v_pk_fma_f32 {vr(42+4*n,2)}, {vr(ACC[n]+8+i,2)}, {vr(ACC[n]+8+i,2)}, {vr(42+4*n,2)}")
    def store(tiles, ty, dst, tag):
        a(f"""
        s_cmp_eq_u32 s{ty}, 2
        s_cbranch_scc1 {name}_v{tag}
        """)
        for k, n in enumerate(tiles):
            a(f"s_add_u32 s47, s{dst}, {k*0x20000:#x}")
            a(f"s_add_u32 s35, s{dst}, {k*0x20000+0x10000:#x}")
            a(f"buffer_store_dwordx4 {vr(PK+8*n,4)}, v120, s[24:27], s47 offen {QKV_SC}")
            a(f"buffer_store_dwordx4 {vr(PK+8*n+4,4)}, v120, s[24:27], s35 offen {QKV_SC}")
        for n in tiles: norm(n)
        a(f"s_branch {name}_n{tag}")
        a.label(f"{name}_v{tag}")
        a.c("V tiles: transpose through LDS (wave-private scratch) into [head][tile][c][h][m][8 keys]")
        for n in tiles:
            for g in range(4):
                a(f"ds_write_b64 v124, {vr(PK+8*n+2*g,2)} offset:{n*2304+16*g}")
        norm(tiles[0])
        a("s_waitcnt lgkmcnt(0)")
        for n in tiles:
            for c in range(2):
                a(f"ds_read_b64_tr_b16 {vr(CSB+16*n+4*c,2)}, v125 offset:{n*2304+c*16*72}")
                a(f"ds_read_b64_tr_b16 {vr(CSB+16*n+4*c+2,2)}, v125 offset:{n*2304+c*16*72+4*72}")
        for n in tiles[1:]: norm(n)
        for k, n in enumerate(tiles):
            a(f"s_add_u32 s47, s{dst}, {k*0x20000:#x}")
            a(f"s_waitcnt lgkmcnt({4*(len(tiles)-1-k)})")
            a(f"buffer_store_dwordx4 {vr(CSB+16*n,4)}, v126, s[24:27], s47 offen {QKV_SC}")
            a(f"buffer_store_dwordx4 {vr(CSB+16*n+4,4)}, v126, s[24:27], s47 offen offset:512 {QKV_SC}")
        a.label(f"{name}_n{tag}")
    a("s_waitcnt lgkmcnt(4)")
    finish(0); finish(1)
    a("s_waitcnt lgkmcnt(0)")
    finish(2)
    store([0, 1], 60, 46, "p")
    store([2], 63, 64, "s")
    a.c("max squared norm over tokens and both heads of each sub-tile")
    for n in range(3):
        a(f"v_add_f32 v{40+4*n}, v{40+4*n}, v{41+4*n}")
        a(f"v_add_f32 v{42+4*n}, v{42+4*n}, v{43+4*n}")
    a("s_mov_b32 s34, 0")
    for n in range(3):
        a(f"v_permlane32_swap_b32 v{40+4*n}, v{42+4*n}")
    a("v_mov_b32 v4, 0")
    for n in range(3):
        a(f"v_add_f32 v{40+4*n}, v{40+4*n}, v{42+4*n}")
    a("s_mov_b32 s35, 0x80000000")
    for dpp in DPP_MAX:
        for n in range(3):
            a(f"v_max_u32_dpp v{40+4*n}, v{40+4*n}, v{40+4*n} {dpp}")
    a(f"""
    v_mov_b32 v4, s44
    s_mov_b64 exec, s[34:35]
    ds_write_b32 v4, v40 offset:{LDS_NR-HI}
    ds_write_b32 v4, v44 offset:{LDS_NR-HI+16}
    ds_write_b32 v4, v48 offset:{LDS_NR-HI+32}
    s_mov_b64 exec, -1
    s_waitcnt vmcnt(0) lgkmcnt(0)
    {name}_J:
    s_barrier
    """)
    stamp(a, 3)
    a.c("wave 4 publishes the norms of this workgroup's three sub-tiles (they double as 'written' flags)")
    a(f"""
    s_cmp_lg_u32 s28, 4
    s_cbranch_scc1 {name}_nopub
    v_lshlrev_b32 v4, 4, v{LANE}
    v_add_u32 v4, {LDS_NR:#x}, v4
    s_mov_b64 exec, 7
    ds_read_b128 v[8:11], v4
    s_add_u32 s33, s57, 1
    v_mov_b32 v5, s57
    v_writelane_b32 v5, s33, 1
    v_writelane_b32 v5, s58, 2
    s_lshl_b32 s33, s31, 7
    s_add_u32 s33, s33, {WS_NRM:#x}
    v_lshlrev_b32 v5, 11, v5
    s_waitcnt lgkmcnt(0)
    v_min_u32 v8, 0x7fffffff, v8
    buffer_store_dwordx4 v[8:11], v5, s[24:27], s33 offen sc1
    s_mov_b64 exec, -1
    {name}_nopub:
    """)
```

```python
from asmlib import *
from layout import *
import os

SLOT = 24576
NSLOT = 5
LDS_WQ = SLOT * NSLOT
LDS_P = LDS_WQ + 32768
LDS_CS = LDS_P + 1536
LDS_NR = LDS_CS + 2048
K1_LDS = LDS_NR + 128
LDS_Q = 40960
HI = 0x20000
AHEAD = 3
LA = 2
SPIN = 200000
FILLP = 3
JSTEP = int(os.environ.get("JSTEP", "20"))
DBG = bool(os.environ.get("DBGSTAMP"))

def gen_k1(a, name):
    LANE = 2; HALF = 3
    VL = [8, 9, 10, 11]
    VXR = [12, 13, 14, 15]
    VDX = 16; VDW = 20
    ONES = 18
    XF = [128 + 4 * i for i in range(32)]
    WF = [52 + 8 * i for i in range(LA + 1)]
    ACC = [76, 92]
    CS = [40, 44]; SX = [24, 28]; SXX = [32, 36]
    kernel_head(a, name)
    a(f"""
    s_cmp_ge_u32 s2, 256
    s_cbranch_scc1 {name}_end
    s_load_dwordx4 s[4:7], s[0:1], 0
    s_load_dwordx4 s[8:11], s[0:1], 72
    s_getpc_b64 s[36:37]
    {name}_pc:
    """)
    stamp(a, 0)
    a(f"""
    v_lshrrev_b32 v1, 6, v0
    v_and_b32 v{LANE}, 63, v0
    s_and_b32 s29, s2, 7
    v_readfirstlane_b32 s28, v1
    s_lshr_b32 s30, s2, 3
    s_lshr_b32 s56, s29, 1
    s_lshl_b32 s56, s56, 2
    s_and_b32 s33, s30, 3
    s_add_u32 s56, s56, s33
    s_lshl_b32 s49, s33, 1
    s_and_b32 s57, s29, 1
    s_lshl_b32 s57, s57, 3
    s_lshr_b32 s33, s30, 2
    s_add_u32 s57, s57, s33
    s_add_u32 s49, s49, s33
    s_and_b32 s45, s28, 3
    s_mov_b32 s14, {2048*512*2:#x}
    s_mov_b32 s15, 0x00020000
    s_mov_b32 s18, {512*1536*2:#x}
    s_mov_b32 s19, 0x00020000
    """)
    a.c("s28=wave s45=token tile / k-step s56=mb s57=head pair s49=phase rotation")
    a.c("x staging: lane -> row l>>3 of an 8-row group, LDS chunk q=l&7 holds global chunk q^((row>>1)&7); W staging: 16 rows x 64 B")
    a(f"""
    v_lshrrev_b32 v4, 3, v{LANE}
    v_and_b32 v6, 7, v{LANE}
    v_lshrrev_b32 v5, 4, v{LANE}
    v_xor_b32 v5, v5, v6
    v_lshlrev_b32 v{VDX}, 10, v4
    v_lshl_add_u32 v{VDX}, v5, 4, v{VDX}
    v_xor_b32 v{VDX+1}, 64, v{VDX}
    s_lshl_b32 s40, s56, 17
    s_lshl_b32 s33, s45, 15
    s_add_u32 s40, s40, s33
    s_lshl_b32 s42, s45, 12
    s_add_u32 s42, s42, 8192
    v_lshrrev_b32 v{VDW}, 2, v{LANE}
    v_mul_u32_u24 v{VDW}, 3072, v{VDW}
    v_and_b32 v6, 3, v{LANE}
    v_lshl_add_u32 v{VDW}, v6, 4, v{VDW}
    v_bfe_u32 v5, v{LANE}, 4, 1
    v_lshlrev_b32 v5, 2, v5
    v_and_b32 v6, 7, v{LANE}
    v_xor_b32 v5, v5, v6
    v_mul_u32_u24 v{VDW+1}, 3072, v4
    v_lshl_add_u32 v{VDW+1}, v5, 4, v{VDW+1}
    s_mul_i32 s50, s45, 49152
    s_lshl_b32 s33, s57, 7
    s_add_u32 s51, s50, s33
    s_add_u32 s51, s51, 1024
    s_lshl_b32 s33, s57, 6
    s_add_u32 s50, s50, s33
    s_lshl_b32 s52, s45, 11
    v_lshlrev_b32 v117, 4, v{LANE}
    s_waitcnt lgkmcnt(0)
    s_mov_b32 s12, s4
    s_and_b32 s13, s5, 0xffff
    s_mov_b32 s16, s6
    s_and_b32 s17, s7, 0xffff
    """)
    def dma_x(p):
        so = (p % NSLOT) * SLOT
        a(f"s_add_u32 s43, s49, {p}")
        a(f"s_and_b32 s43, s43, 7")
        a(f"s_lshl_b32 s43, s43, 7")
        a(f"s_add_u32 s43, s43, s40")
        for g in range(4):
            a(f"s_add_u32 m0, s42, {so + g * 1024}")
            a(f"s_add_u32 s41, s43, {g * 8192}")
            a(f"buffer_load_dwordx4 v{VDX + (g & 1)}, s[12:15], s41 offen lds")
    def dma_w(p):
        so = (p % NSLOT) * SLOT
        a(f"s_add_u32 s43, s49, {p}")
        a(f"s_and_b32 s43, s43, 7")
        a(f"s_mul_i32 s43, s43, {4*49152}")
        a(f"s_add_u32 m0, s52, {so}")
        a(f"s_add_u32 s41, s43, s51")
        a(f"buffer_load_dwordx4 v{VDW+1}, s[16:19], s41 offen lds")
        a(f"s_add_u32 m0, s52, {so + 1024}")
        a(f"s_add_u32 s41, s41, {8*3072}")
        a(f"buffer_load_dwordx4 v{VDW+1}, s[16:19], s41 offen lds")
    def dma_q(p):
        a(f"s_add_u32 s43, s49, {p}")
        a(f"s_and_b32 s43, s43, 7")
        a(f"s_mul_i32 s43, s43, {4*49152}")
        a(f"s_add_u32 m0, s53, {LDS_WQ + p * 4096}")
        a(f"s_add_u32 s41, s43, s50")
        a(f"buffer_load_dwordx4 v{VDW}, s[16:19], s41 offen lds")
    def tr_base(dst):
        a(f"""
        v_lshrrev_b32 v{HALF}, 5, v{LANE}
        v_bfe_u32 v5, v{LANE}, 2, 2
        v_bfe_u32 v6, v{LANE}, 4, 1
        v_lshlrev_b32 v{dst}, 5, v6
        v_and_b32 v6, 3, v{LANE}
        v_lshl_add_u32 v{dst}, v6, 3, v{dst}
        v_lshl_add_u32 v{dst}, v{HALF}, 9, v{dst}
        v_lshl_add_u32 v{dst}, v5, 6, v{dst}
        v_and_b32 v116, 31, v{LANE}
        v_mov_b32 v{ONES}, 0x3f803f80
        v_mov_b32 v{ONES+1}, 0x3f803f80
        s_lshl_b32 s35, s45, 2
        s_add_u32 s44, s35, {HI:#x}
        """)
    NX = AHEAD
    a(f"""
    s_cmp_lt_u32 s28, 4
    s_cbranch_scc1 {name}_C
    """)
    outst = []
    for p in range(AHEAD):
        dma_w(p); outst += [p] * 2
        if p == 0:
            a.c("code prefetch through an exact-size descriptor (2 KB per helper wave)")
            a(f"""
            s_and_b32 s37, s37, 0xffff
            s_mov_b32 s38, code_end-{name}_pc
            s_mov_b32 s39, 0x00020000
            s_lshl_b32 s33, s30, 2
            s_add_u32 s33, s33, s45
            s_and_b32 s33, s33, 15
            s_lshl_b32 s33, s33, 11
            buffer_load_dwordx4 v[24:27], v117, s[36:39], s33 offen
            buffer_load_dwordx4 v[24:27], v117, s[36:39], s33 offen offset:1024
            """)
            outst += ["x", "x"]
    srd(a, 24, 10, WS_BYTES)
    srd(a, 20, 8, 256)
    tr_base(8)
    a(f"""
    s_lshl_b32 s53, s45, 10
    v_add_u32 v8, s53, v8
    v_add_u32 v8, {LDS_WQ}, v8
    v_lshlrev_b32 v9, 4, v116
    v_add_u32 v9, s44, v9
    v_lshlrev_b32 v4, 2, v{LANE}
    {"v_and_b32 v4, 127, v4" if DBG else ""}
    {"v_add_u32 v4, 64, v4" if DBG else ""}
    """)
    for p in range(8):
        idx = max(i for i, x in enumerate(outst) if x == p)
        a(f"s_waitcnt vmcnt({len(outst) - 1 - idx})")
        del outst[:idx + 1]
        a("s_barrier")
        if p == 0: stamp(a, 1)
        if p + AHEAD < 8:
            dma_w(p + AHEAD); dma_x(p + AHEAD); outst += [p + AHEAD] * 6
        if p in (4, 5):
            for q in range(4):
                dma_q((p - 4) * 4 + q); outst.append("q")
    stamp(a, 2)
    a.c("Wq landed (own k-steps): barrier E1 publishes it; then column sums of Wq over this wave's 8 k-steps")
    a("s_waitcnt vmcnt(0)")
    for p in range(8):
        a(f"ds_read_b64_tr_b16 {vr(32+4*p,2)}, v8 offset:{p*4096}")
        a(f"ds_read_b64_tr_b16 {vr(32+4*p+2,2)}, v8 offset:{p*4096+256}")
    a("s_barrier")
    a("s_waitcnt lgkmcnt(0)")
    for i in range(16):
        acc = 64 + 4 * (i % 4)
        a(f"v_mfma_f32_4x4x4_16b_bf16 {vr(acc,4)}, {vr(ONES,2)}, {vr(32+2*i,2)}, {'0' if i < 4 else vr(acc,4)}")
    a(f"""
    s_nop 4
    v_add_f32 v64, v64, v68
    v_add_f32 v72, v72, v76
    v_add_f32 v64, v64, v72
    v_mov_b32 v65, v64
    s_nop 1
    v_permlane32_swap_b32 v64, v65
    s_nop 0
    v_add_f32 v64, v64, v65
    ds_write_b32 v9, v64 offset:{LDS_P-HI+1024}
    s_cmp_lg_u32 s28, 4
    s_cbranch_scc1 {name}_hJ
    s_mov_b32 s53, 0
    {name}_ipoll:
    buffer_load_dword v5, v4, s[20:23], 0 offen sc1
    s_add_u32 s53, s53, 1
    s_waitcnt vmcnt(0)
    v_cmp_gt_u32 vcc, {8 if DBG else 4}, v5
    s_cmp_gt_u32 s53, {SPIN}
    s_cbranch_scc1 {name}_hJ
    s_cbranch_vccnz {name}_ipoll
    {name}_hJ:
    s_waitcnt lgkmcnt(0)
    s_barrier
    """)
    stamp(a, 3)
    a.c("wave 4 publishes the K/V norms of this workgroup (the record doubles as 'tiles written' flag)")
    a(f"""
    s_cmp_lg_u32 s28, 4
    s_cbranch_scc1 {name}_P2
    v_add_u32 v4, {LDS_NR:#x}, v117
    s_mov_b64 exec, 3
    ds_read_b128 v[8:11], v4
    s_lshl_b32 s33, s57, 11
    s_lshl_b32 s34, s56, 7
    s_add_u32 s33, s33, s34
    s_add_u32 s33, s33, {WS_NRM:#x}
    s_waitcnt lgkmcnt(0)
    v_min_u32 v8, 0x7fffffff, v8
    buffer_store_dwordx4 v[8:11], v117, s[24:27], s33 offen sc1
    s_mov_b64 exec, -1
    s_branch {name}_P2
    """)
    a.label(f"{name}_C")
    for p in range(NX):
        dma_x(p)
    tr_base(4)
    a(f"""
    v_and_b32 v113, 63, v4
    v_lshl_add_u32 v113, v{HALF}, 10, v113
    v_lshl_add_u32 v113, v5, 7, v113
    v_bfe_u32 v6, v{LANE}, 3, 1
    v_lshl_add_u32 v113, v6, 6, v113
    v_bfe_u32 v6, v{LANE}, 1, 3
    v_xor_b32 v6, v6, v{HALF}
    v_lshlrev_b32 v5, 7, v116
    v_add_u32 v5, s42, v5
    """)
    for j in range(4):
        a(f"""
        s_add_u32 s33, s45, {j}
        s_and_b32 s33, s33, 3
        s_lshl_b32 s35, s33, 11
        s_lshl_b32 s34, s33, 1
        v_add_u32 v{VL[j]}, s35, v113
        s_lshl_b32 s35, s33, 10
        s_add_u32 s35, s35, {LDS_WQ}
        v_add_u32 v{108+j}, s35, v4
        v_xor_b32 v7, s34, v6
        v_lshl_add_u32 v{VXR[j]}, v7, 4, v5
        """)
    srd(a, 24, 10, WS_BYTES)
    srd(a, 20, 8, 256)
    a.c("pre-fill this workgroup's share of the hand-off region with the 'not yet written' sentinel")
    a(f"""
    v_mov_b32 v48, -1
    v_mov_b32 v49, -1
    v_mov_b32 v50, -1
    v_mov_b32 v51, -1
    s_mul_i32 s34, s2, {SENT_PER_WG}
    s_mul_i32 s35, s45, 3072
    s_add_u32 s34, s34, s35
    s_add_u32 s34, s34, {WS_SENT:#x}
    """)
    for i in range(3):
        a(f"buffer_store_dwordx4 v[48:51], v117, s[24:27], s34 offen offset:{i*1024} sc1")
    a.c("epilogue addresses")
    a(f"""
    s_lshl_b32 s33, s45, 9
    v_lshlrev_b32 v118, 4, v{HALF}
    v_add_u32 v118, {HI:#x}, v118
    v_add_u32 v118, s33, v118
    v_lshlrev_b32 v119, 2, v{LANE}
    v_add_u32 v119, {HI:#x}, v119
    v_add_u32 v119, s33, v119
    v_lshlrev_b32 v120, 5, v116
    v_lshl_add_u32 v120, v{HALF}, 4, v120
    s_lshl_b32 s46, s57, 18
    s_lshl_b32 s34, s56, 12
    s_add_u32 s46, s46, s34
    s_lshl_b32 s35, s45, 10
    s_add_u32 s46, s46, s35
    s_add_u32 s46, s46, {WS_K:#x}
    s_add_u32 s47, s46, 0x10000
    s_add_u32 s48, s46, 0x20000
    s_add_u32 s62, s46, 0x30000
    v_add_u32 v112, s35, v117
    s_mul_i32 s33, s45, 4608
    v_mul_u32_u24 v124, 72, v116
    v_lshl_add_u32 v124, v{HALF}, 3, v124
    v_add_u32 v124, s33, v124
    v_bfe_u32 v125, v{LANE}, 2, 2
    v_lshl_add_u32 v125, v{HALF}, 3, v125
    v_mul_u32_u24 v125, 72, v125
    v_bfe_u32 v6, v{LANE}, 4, 1
    v_lshl_add_u32 v125, v6, 5, v125
    v_and_b32 v5, 1, v{LANE}
    v_lshl_add_u32 v125, v5, 4, v125
    v_bfe_u32 v5, v{LANE}, 1, 1
    v_lshl_add_u32 v125, v5, 3, v125
    v_add_u32 v125, s33, v125
    v_and_b32 v126, 15, v{LANE}
    v_lshlrev_b32 v126, 4, v126
    v_lshl_add_u32 v126, v{HALF}, 8, v126
    v_lshl_add_u32 v126, v6, 16, v126
    v_add_u32 v121, s44, v117
    v_lshlrev_b32 v123, 4, v116
    v_add_u32 v123, {HI:#x}, v123
    v_add_u32 v127, {HI:#x}, v117
    v_mov_b32 v122, s44
    v_and_b32 v5, 3, v{LANE}
    v_cmp_eq_u32 s[50:51], 1, v5
    v_cmp_eq_u32 s[52:53], 2, v5
    v_cmp_eq_u32 s[54:55], 3, v5
    s_mov_b32 s60, 0
    s_mov_b32 s61, 0x80000000
    """)
    cur_base = [0]
    def rebase(p):
        so = (p % NSLOT) * SLOT
        want = (so // (2 * SLOT)) * 2 * SLOT
        ops = []
        if want != cur_base[0]:
            d = want - cur_base[0]
            ops = [f"v_add_u32 v{r}, {d & 0xffffffff:#x}, v{r}" for r in VL + VXR]
            cur_base[0] = want
        return so - want, ops
    def reads(t):
        p, j = t >> 2, t & 3
        off, pre = rebase(p)
        wf = WF[t % (LA + 1)]
        return pre, [f"ds_read_b128 {vr(XF[t],4)}, v{VXR[j]} offset:{off}",
                f"ds_read_b64_tr_b16 {vr(wf,2)}, v{VL[j]} offset:{off}",
                f"v_xor_b32 v7, 64, v{VL[j]}\nds_read_b64_tr_b16 {vr(wf+2,2)}, v{VL[j]} offset:{off+512}",
                f"ds_read_b64_tr_b16 {vr(wf+4,2)}, v7 offset:{off}",
                f"ds_read_b64_tr_b16 {vr(wf+6,2)}, v7 offset:{off+512}"]
    for t in range(32 + LA):
        p, j = t >> 2, t & 3
        rd = []
        if t < 32:
            if j == 0:
                if p < NX:
                    a(f"s_waitcnt vmcnt({4 * (NX - 1 - p) + 3})")
                if p == FILLP:
                    a("s_waitcnt vmcnt(0)")
                a("s_barrier")
                if p == 0: stamp(a, 1)
                if p == FILLP:
                    a.c("the compute waves drained their sentinel fills before this barrier: count this workgroup in d_debug")
                    a(f"""
                    s_cmp_lg_u32 s28, 0
                    s_cbranch_scc1 {name}_noinc
                    v_mov_b32 v4, 0
                    v_mov_b32 v5, 1
                    s_and_b32 s33, s2, {31 if DBG else 63}
                    s_lshl_b32 s33, s33, 2
                    {"s_add_u32 s33, s33, 64" if DBG else ""}
                    s_mov_b64 exec, 1
                    buffer_atomic_add v5, v4, s[20:23], s33 offen sc1
                    s_mov_b64 exec, -1
                    {name}_noinc:
                    """)
            pre, rd = reads(t)
            for o in pre: a(o)
        if t < LA:
            for o in rd: a(o)
            continue
        u = t - LA
        up, uj = u >> 2, u & 3
        a(f"s_waitcnt lgkmcnt({5 * (min(t - 1, 31) - u)})")
        wf = WF[u % (LA + 1)]; xf = XF[u]
        for i in range(2):
            c = "0" if u == 0 else vr(ACC[i], 16)
            a(f"v_mfma_f32_32x32x16_bf16 {vr(ACC[i],16)}, {vr(wf+4*i,4)}, {vr(xf,4)}, {c}")
            for o in rd[[0, 3][i]:[3, 5][i]]: a(o)
        if uj == 3:
            z = lambda cond, r: "0" if cond else vr(r, 4)
            for q in range(8):
                x2 = XF[4 * up] + 2 * q
                zz = (up == 0 and q < 2)
                a(f"v_mfma_f32_4x4x4_16b_bf16 {vr(SX[q&1],4)}, {vr(ONES,2)}, {vr(x2,2)}, {z(zz, SX[q&1])}")
                a(f"v_mfma_f32_4x4x4_16b_bf16 {vr(SXX[q&1],4)}, {vr(x2,2)}, {vr(x2,2)}, {z(zz, SXX[q&1])}")
                if q < 4:
                    i, hh = q % 2, q // 2
                    a(f"v_mfma_f32_4x4x4_16b_bf16 {vr(CS[i],4)}, {vr(ONES,2)}, {vr(wf+4*i+2*hh,2)}, {z(up == 0 and hh == 0, CS[i])}")
    stamp(a, 2)
    a.c("publish K/V colsum partials P[col][tile]; finish the row statistics (lane = token)")
    a(f"""
    v_permlane32_swap_b32 v{CS[0]}, v{CS[1]}
    s_nop 3
    v_add_f32 v{CS[0]}, v{CS[0]}, v{CS[1]}
    v_add_f32 v{SX[0]}, v{SX[0]}, v{SX[1]}
    ds_write_b32 v121, v{CS[0]} offset:{LDS_P-HI}
    v_pk_add_f32 {vr(SXX[0],2)}, {vr(SXX[0],2)}, {vr(SXX[1],2)}
    v_pk_add_f32 {vr(SXX[0]+2,2)}, {vr(SXX[0]+2,2)}, {vr(SXX[1]+2,2)}
    v_cndmask_b32 v{SXX[0]}, v{SXX[0]}, v{SXX[0]+1}, s[50:51]
    v_cndmask_b32 v{SXX[0]}, v{SXX[0]}, v{SXX[0]+2}, s[52:53]
    v_cndmask_b32 v{SXX[0]}, v{SXX[0]}, v{SXX[0]+3}, s[54:55]
    s_waitcnt lgkmcnt(0)
    s_barrier
    ds_read_b128 v[4:7], v127 offset:{LDS_P-HI}
    v_permlane32_swap_b32 v{SX[0]}, v{SXX[0]}
    v_mov_b64 v[8:9], 0
    v_add_f32 v{SX[0]}, v{SX[0]}, v{SXX[0]}
    v_mov_b32 v{SXX[0]}, v{SX[0]}
    v_mov_b64 v[10:11], 0
    v_mov_b64 v[12:13], 0
    v_permlane32_swap_b32 v{SX[0]}, v{SXX[0]}
    v_mov_b64 v[14:15], 0
    v_mul_f32 v{SX[0]}, {f32hex(1/512)}, v{SX[0]}
    v_mul_f32 v{SXX[0]}, {f32hex(1/512)}, v{SXX[0]}
    v_fma_f32 v{SXX[0]}, -v{SX[0]}, v{SX[0]}, v{SXX[0]}
    v_max_f32 v{SXX[0]}, 0, v{SXX[0]}
    v_add_f32 v{SXX[0]}, {f32hex(1e-5)}, v{SXX[0]}
    v_rsq_f32 v16, v{SXX[0]}
    s_waitcnt lgkmcnt(0)
    v_pk_add_f32 v[4:5], v[4:5], v[6:7]
    v_mul_f32 v17, v{SX[0]}, v16
    v_add_f32 v4, v4, v5
    v_sub_f32 v17, 0, v17
    ds_write_b32 v119, v4 offset:{LDS_CS-HI}
    """)
    CSB = 24; PK = 56
    for i in range(0, 16, 2):
        a(f"v_pk_mul_f32 {vr(ACC[1]+i,2)}, {vr(ACC[1]+i,2)}, v[16:17] op_sel_hi:[1,0]")
    a("s_waitcnt lgkmcnt(0)")
    for n in (1, 0):
        for g in range(4):
            a(f"ds_read_b128 {vr(CSB+16*n+4*g,4)}, v118 offset:{LDS_CS-HI+128*n+32*g}")
    for i in range(0, 16, 2):
        a(f"v_pk_mul_f32 {vr(ACC[0]+i,2)}, {vr(ACC[0]+i,2)}, v[16:17] op_sel_hi:[1,0]")
    def finish(acc, csb, ab, pk):
        for i in range(0, 16, 2):
            a(f"v_pk_fma_f32 {vr(acc+i,2)}, {vr(csb+i,2)}, {vr(ab,2)}, {vr(acc+i,2)} op_sel:[0,1,0] op_sel_hi:[1,1,1]")
        for i in range(8):
            a(f"v_cvt_pk_bf16_f32 v{pk+i}, v{acc+2*i}, v{acc+2*i+1}")
    def norm(acc, n):
        for i in range(0, 8, 2):
            a(f"v_pk_fma_f32 {vr(n,2)}, {vr(acc+i,2)}, {vr(acc+i,2)}, {vr(n,2)}")
            a(f"v_pk_fma_f32 {vr(n+2,2)}, {vr(acc+8+i,2)}, {vr(acc+8+i,2)}, {vr(n+2,2)}")
    a(f"""
    s_cmp_ge_u32 s57, 8
    s_cbranch_scc1 {name}_vt
    s_waitcnt lgkmcnt(4)
    """)
    finish(ACC[1], CSB + 16, 16, PK + 8)
    a(f"buffer_store_dwordx4 {vr(PK+8,4)}, v120, s[24:27], s48 offen sc1")
    a(f"buffer_store_dwordx4 {vr(PK+12,4)}, v120, s[24:27], s62 offen sc1")
    a("s_waitcnt lgkmcnt(0)")
    finish(ACC[0], CSB, 16, PK)
    a(f"buffer_store_dwordx4 {vr(PK,4)}, v120, s[24:27], s46 offen sc1")
    a(f"buffer_store_dwordx4 {vr(PK+4,4)}, v120, s[24:27], s47 offen sc1")
    norm(ACC[0], 8)
    a(f"s_branch {name}_q")
    a.label(f"{name}_vt")
    a.c("V tiles: transpose through LDS (wave-private scratch) into [head][tile][c][h][m][8 keys]")
    a("s_waitcnt lgkmcnt(4)")
    finish(ACC[1], CSB + 16, 16, PK + 8)
    for g in range(4):
        a(f"ds_write_b64 v124, {vr(PK+8+2*g,2)} offset:{2304+16*g}")
    a("s_waitcnt lgkmcnt(4)")
    for i in range(0, 16, 2):
        a(f"v_pk_fma_f32 {vr(ACC[0]+i,2)}, {vr(CSB+i,2)}, v[16:17], {vr(ACC[0]+i,2)} op_sel:[0,1,0] op_sel_hi:[1,1,1]")
    for c in range(2):
        a(f"ds_read_b64_tr_b16 {vr(CSB+16+4*c,2)}, v125 offset:{2304+c*16*72}")
        a(f"ds_read_b64_tr_b16 {vr(CSB+16+4*c+2,2)}, v125 offset:{2304+c*16*72+4*72}")
    for i in range(8):
        a(f"v_cvt_pk_bf16_f32 v{PK+i}, v{ACC[0]+2*i}, v{ACC[0]+2*i+1}")
    for g in range(4):
        a(f"ds_write_b64 v124, {vr(PK+2*g,2)} offset:{16*g}")
    for c in range(2):
        a(f"ds_read_b64_tr_b16 {vr(CSB+24+4*c,2)}, v125 offset:{c*16*72}")
        a(f"ds_read_b64_tr_b16 {vr(CSB+24+4*c+2,2)}, v125 offset:{c*16*72+4*72}")
    a("s_waitcnt lgkmcnt(8)")
    a(f"buffer_store_dwordx4 {vr(CSB+16,4)}, v126, s[24:27], s48 offen sc1")
    a(f"buffer_store_dwordx4 {vr(CSB+20,4)}, v126, s[24:27], s48 offen offset:512 sc1")
    norm(ACC[0], 8)
    a("s_waitcnt lgkmcnt(0)")
    a(f"buffer_store_dwordx4 {vr(CSB+24,4)}, v126, s[24:27], s46 offen sc1")
    a(f"buffer_store_dwordx4 {vr(CSB+28,4)}, v126, s[24:27], s46 offen offset:512 sc1")
    a.label(f"{name}_q")
    QF = [24, 28, 32, 36]
    AQ = ACC[0]
    def qread(t):
        p, j = t >> 2, t & 3
        a(f"ds_read_b64_tr_b16 {vr(QF[t&3],2)}, v{108+j} offset:{p*4096}")
        a(f"ds_read_b64_tr_b16 {vr(QF[t&3]+2,2)}, v{108+j} offset:{p*4096+256}")
    for t in range(3): qread(t)
    fill = []
    for i in range(0, 8, 2):
        fill.append(f"v_pk_fma_f32 v[12:13], {vr(ACC[1]+i,2)}, {vr(ACC[1]+i,2)}, v[12:13]")
        fill.append(f"v_pk_fma_f32 v[14:15], {vr(ACC[1]+8+i,2)}, {vr(ACC[1]+8+i,2)}, v[14:15]")
    fill += ["v_add_f32 v8, v8, v9", "v_add_f32 v10, v10, v11", "v_add_f32 v12, v12, v13", "v_add_f32 v14, v14, v15", "s_nop 0", "s_nop 0",
             "v_permlane32_swap_b32 v8, v10", "v_permlane32_swap_b32 v12, v14", "s_nop 0", "v_add_f32 v8, v8, v10", "v_add_f32 v12, v12, v14", "s_nop 0"]
    for dpp in DPP_MAX:
        fill += [f"v_max_u32_dpp v8, v8, v8 {dpp}", f"v_max_u32_dpp v12, v12, v12 {dpp}", "s_nop 0"]
    extra = 0
    for t in range(32):
        if t + 3 < 32: qread(t + 3)
        a(f"s_waitcnt lgkmcnt({2 * (min(t + 3, 31) - t) + extra})")
        extra = 0
        a(f"v_mfma_f32_32x32x16_bf16 {vr(AQ,16)}, {vr(QF[t&3],4)}, {vr(XF[t],4)}, {'0' if t == 0 else vr(AQ,16)}")
        for _ in range(3):
            if fill: a(fill.pop(0))
        if t == JSTEP - 2:
            assert not fill
            a(f"""
            s_mov_b64 exec, s[60:61]
            ds_write_b32 v122, v8 offset:{LDS_NR-HI}
            ds_write_b32 v122, v12 offset:{LDS_NR-HI+16}
            s_mov_b64 exec, -1
            """)
        if t == JSTEP:
            a.c("barrier J: K/V stores drained, norms in LDS -> wave 4 publishes")
            a("s_waitcnt vmcnt(0) lgkmcnt(0)")
            a("s_barrier")
            stamp(a, 3)
            a(f"ds_read_b128 v[4:7], v123 offset:{LDS_P-HI+1024}")
        if t == JSTEP + 3:
            a(f"""
            v_pk_add_f32 v[4:5], v[4:5], v[6:7]
            v_mul_f32 v16, {f32hex(QSCALE)}, v16
            v_add_f32 v4, v4, v5
            v_mul_f32 v17, {f32hex(QSCALE)}, v17
            ds_write_b32 v119, v4 offset:{LDS_CS-HI}
            v_mov_b64 v[8:9], 0
            v_mov_b64 v[10:11], 0
            """)
        if t == JSTEP + 8:
            for g in range(4):
                a(f"ds_read_b128 {vr(ACC[1]+4*g,4)}, v118 offset:{LDS_CS-HI+32*g}")
    a("s_nop 11")
    a("s_waitcnt lgkmcnt(0)")
    for i in range(0, 16, 2):
        a(f"v_pk_mul_f32 {vr(AQ+i,2)}, {vr(AQ+i,2)}, v[16:17] op_sel_hi:[1,0]")
    finish(AQ, ACC[1], 16, PK)
    a(f"ds_write_b128 v112, {vr(PK,4)} offset:{LDS_Q}")
    a(f"ds_write_b128 v112, {vr(PK+4,4)} offset:{LDS_Q+4096}")
    norm(AQ, 8)
    a(f"""
    v_add_f32 v8, v8, v9
    v_add_f32 v10, v10, v11
    s_nop 1
    v_permlane32_swap_b32 v8, v10
    s_nop 0
    v_add_f32 v8, v8, v10
    s_nop 1
    """)
    for dpp in DPP_MAX:
        a(f"v_max_u32_dpp v8, v8, v8 {dpp}")
        a("s_nop 1")
    a(f"""
    s_mov_b64 exec, s[60:61]
    ds_write_b32 v122, v8 offset:{LDS_NR-HI+32}
    s_mov_b64 exec, -1
    {name}_P2:
    """)
```

```python
from asmlib import *
from layout import *
from k1 import LDS_NR as K1_NR, LDS_Q

LDS_WO = 65536
LDS_ST = LDS_WO + 65536
LDS_FF = LDS_ST + 4096
LDS_WD = LDS_FF + 1024
LDS_GU = LDS_WD + 8192
KB_LDS = LDS_GU + 16384
LOG2E = 1.4426950408889634
SPIN = 200000
import os
EXP = os.environ.get('EXP', '')
OD = int(os.environ.get('OD', '0'))
AD = int(os.environ.get('AD', '10'))
BD = int(os.environ.get('BD', '22'))
CD = int(os.environ.get('CD', '8'))
ND = int(os.environ.get('ND', '0'))
PSC = os.environ.get('PSC', 'sc1')
BL = int(os.environ.get('BL', '2'))
GUS = int(os.environ.get('GUS', '1'))
GUK = eval(os.environ.get('GUK', '(4, 14)'))

def rnd_bf16(a, d, s):
    a(f"v_cvt_pk_bf16_f32 v{d}, v{s}, v{s}")
    a(f"v_and_b32 v{d}, 0xffff0000, v{d}")

def gen_kb(a, name):
    S = [16, 32, 48, 64]
    O = [80, 96, 112, 128]
    Q = [144, 148, 152, 156]
    KB = [160, 164, 168, 172]
    VB = [176, 184, 192, 200]
    IDX = 208
    MX = [209, 210, 211, 212]
    XR = 216; WR = 220; GW = 224; UW = 228; WD = 232; WRF = 240
    VWO = 213; VXO = 214; VGU = 215; VT2 = 244; VCG = 245
    VKQ = 4; VV = 5; LANE = 2; L31 = 3; HALF = 6; L16 = 7
    a(f"""
    s_load_dwordx2 s[4:5], s[0:1], 0
    s_load_dwordx2 s[6:7], s[0:1], 16
    s_load_dwordx4 s[8:11], s[0:1], 32
    s_load_dwordx4 s[12:15], s[0:1], 48
    s_load_dwordx2 s[16:17], s[0:1], 64
    s_setprio 3
    s_lshl_b32 s31, s29, 2
    s_lshr_b32 s33, s30, 3
    s_add_u32 s31, s31, s33
    s_and_b32 s32, s30, 7
    v_and_b32 v{L31}, 31, v{LANE}
    v_lshrrev_b32 v{HALF}, 5, v{LANE}
    v_lshlrev_b32 v{VKQ}, 5, v{L31}
    v_lshl_add_u32 v{VKQ}, v{HALF}, 4, v{VKQ}
    v_and_b32 v{VV}, 15, v{LANE}
    v_lshlrev_b32 v{VV}, 4, v{VV}
    v_lshl_add_u32 v{VV}, v{HALF}, 8, v{VV}
    v_lshlrev_b32 v{L16}, 4, v{LANE}
    s_and_b32 s34, s28, 1
    s_lshr_b32 s35, s28, 1
    """)
    a.c("s28=wave s56=mb s57=head pair s34=head sel (later token tile) s35=kq ; s31=row block s32=column block of the projection phase")
    a(f"""
    s_lshl_b32 s40, s57, 1
    s_add_u32 s40, s40, s34
    s_lshl_b32 s40, s40, 16
    s_lshl_b32 s33, s56, 12
    s_add_u32 s41, s40, s33
    s_lshl_b32 s33, s35, 14
    s_add_u32 s42, s40, s33
    s_add_u32 s43, s42, {WS_V:#x}
    s_add_u32 s42, s42, {WS_K:#x}
    s_lshl_b32 s45, s56, 10
    s_lshr_b32 s44, s57, 1
    s_lshl_b32 s44, s44, 11
    s_and_b32 s33, s57, 1
    s_lshl_b32 s33, s33, 4
    s_add_u32 s44, s44, s33
    s_add_u32 s44, s44, {WS_NRM:#x}
    s_mov_b32 s46, 0x0000ffff
    s_mov_b32 s47, 0x0000ffff
    s_mov_b32 s23, 0x00020000
    v_and_b32 v8, 27, v{LANE}
    v_mov_b32 v9, 0x3f803f80
    v_cmp_eq_u32 vcc, 16, v8
    v_mov_b32 v{IDX}, 0xdddddddd
    s_nop 0
    v_cndmask_b32 v8, 0, v9, vcc
    v_cndmask_b32 v9, 0, v9, vcc
    """)
    for b in range(4):
        for r in range(0, 8, 2):
            a(f"v_mov_b64 {vr(VB[b]+r,2)}, v[8:9]")
    outst = []
    def vm(tag): outst.append(tag)
    def wait_for(tag):
        idx = max(i for i, t in enumerate(outst) if t == tag)
        n = len(outst) - 1 - idx
        a(f"s_waitcnt vmcnt({n})")
        del outst[:idx + 1]
    def kv_load(b, tag=None, mid=()):
        a("s_add_u32 s48, s42, s45")
        a("s_add_u32 s49, s43, s45")
        a(f"buffer_load_dwordx4 {vr(KB[b],4)}, v{VKQ}, s[24:27], s48 offen sc1")
        if tag is not None: vm("k" + tag)
        for (ins, tg) in mid:
            a(ins); vm(tg)
        a("s_mov_b64 exec, s[46:47]")
        a(f"buffer_load_dwordx4 {vr(VB[b],4)}, v{VV}, s[24:27], s49 offen sc1")
        a(f"buffer_load_dwordx4 {vr(VB[b]+4,4)}, v{VV}, s[24:27], s49 offen offset:512 sc1")
        a("s_mov_b64 exec, -1")
        a("s_add_u32 s45, s45, 1024")
        a("s_and_b32 s45, s45, 0x3fff")
        if tag is not None:
            for _ in range(2): vm(tag)
    for qt in range(4):
        for r in range(0, 16, 2):
            a(f"v_mov_b64 {vr(O[qt]+r,2)}, 0")
    a.c("addresses for the side loads (operands of the later phases, fetched under the attention loop)")
    a(f"""
    v_lshrrev_b32 v12, 3, v{LANE}
    v_lshlrev_b32 v{VWO}, 10, v12
    v_and_b32 v12, 7, v{LANE}
    v_bfe_u32 v13, v{LANE}, 4, 1
    v_lshlrev_b32 v13, 2, v13
    v_xor_b32 v12, v12, v13
    v_lshl_add_u32 v{VWO}, v12, 4, v{VWO}
    v_and_b32 v12, 7, v{LANE}
    v_lshlrev_b32 v{VXO}, 10, v12
    v_lshrrev_b32 v12, 3, v{LANE}
    v_lshlrev_b32 v{VCG}, 4, v12
    v_add_u32 v{VXO}, v{VCG}, v{VXO}
    v_lshlrev_b32 v{VT2}, 1, v0
    v_mul_u32_u24 v{VGU}, 3584, v0
    s_mul_i32 s60, s29, 28
    s_add_u32 s60, s60, s30
    s_lshl_b32 s61, s28, 16
    s_lshl_b32 s33, s32, 7
    s_add_u32 s61, s61, s33
    s_lshl_b32 s62, s28, 13
    s_add_u32 s62, s62, {LDS_WO}
    s_lshl_b32 s63, s32, 7
    s_lshl_b32 s64, s31, 16
    s_lshl_b32 s33, s34, 15
    s_add_u32 s64, s64, s33
    s_lshl_b32 s33, s35, 13
    s_add_u32 s64, s64, s33
    s_add_u32 s64, s64, s63
    s_cmp_lt_u32 s30, 28
    s_cselect_b32 s65, {512*1792*2:#x}, 0
    """)
    a.c("s60=ffn slice j, s61=Wo global off, s62=Wo lds off, s63=col byte off of this wave's 8-col piece, s64=x/out off, s65=ffn weight bytes (0: none)")
    def side_ops():
        ops = []
        def tsrd(p, nbytes):
            return f"s_mov_b32 s20, s{p}\ns_and_b32 s21, s{p+1}, 0xffff\ns_mov_b32 s22, {nbytes}\n"
        for i in range(8):
            ops.append(tsrd(6, hex(512*512*2)) + f"s_add_u32 m0, s62, {i*1024}\ns_add_u32 s33, s61, {i*8192}\nbuffer_load_dwordx4 v{VWO}, s[20:23], s33 offen lds")
        ops.append(tsrd(4, hex(2048*512*2)) + f"buffer_load_dwordx4 {vr(XR,4)}, v{VXO}, s[20:23], s64 offen")
        ops.append(tsrd(8, 1024) + f"buffer_load_dwordx4 {vr(WR,4)}, v{VCG}, s[20:23], s63 offen")
        ops.append(tsrd(8, 1024) + f"buffer_load_dwordx4 {vr(WRF,4)}, v{L16}, s[20:23], 0 offen")
        ops.append(tsrd(14, "s65") + f"s_lshl_b32 s33, s28, 10\ns_add_u32 m0, s33, {LDS_WD}\ns_lshl_b32 s50, s60, 13\ns_add_u32 s33, s33, s50\nbuffer_load_dwordx4 v{L16}, s[20:23], s33 offen lds")
        return ops
    def gu_op(m):
        return (f"s_mov_b32 s20, s{10+2*m}\ns_and_b32 s21, s{11+2*m}, 0xffff\ns_mov_b32 s22, s65\n"
                f"s_lshl_b32 s33, s28, 10\ns_add_u32 m0, s33, {LDS_GU + m*8192}\ns_lshl_b32 s33, s60, 4\nbuffer_load_dwordx4 v{VGU}, s[20:23], s33 offen lds")
    a.c("wave 4 waits for the 16 producer records of this head pair (K/V written) and leaves max|k|^2, max|v|^2 in LDS")
    a(f"""
    s_cmp_lg_u32 s28, 4
    s_cbranch_scc1 {name}_K
    v_bfe_u32 v8, v{LANE}, 4, 1
    v_lshlrev_b32 v8, 14, v8
    v_and_b32 v9, 15, v{LANE}
    v_lshl_add_u32 v12, v9, 7, v8
    s_mov_b32 s53, 0
    {('s_sleep %d' % ND) if ND else ''}
    {name}_npoll:
    buffer_load_dwordx4 v[8:11], v12, s[24:27], s44 offen sc1
    s_add_u32 s53, s53, 1
    s_waitcnt vmcnt(0)
    v_cmp_eq_u32 vcc, -1, v8
    s_cmp_gt_u32 s53, {SPIN}
    s_cbranch_scc1 {name}_ndone
    s_cbranch_vccnz {name}_npoll
    {name}_ndone:
    v_max_u32 v8, v8, v9
    v_max3_u32 v8, v8, v10, v11
    v_lshrrev_b32 v9, 4, v{LANE}
    v_lshlrev_b32 v9, 2, v9
    """)
    for ror in (8, 4, 2, 1):
        a(f"v_max_u32_dpp v8, v8, v8 row_ror:{ror} row_mask:0xf bank_mask:0xf")
        a("s_nop 1")
    a(f"""
    v_add_u32 v9, {K1_NR+48:#x}, v9
    ds_write_b32 v9, v8
    {name}_K:
    s_lshl_b32 s33, s34, 12
    v_add_u32 v12, s33, v{L16}
    v_mov_b32 v13, {K1_NR+32:#x}
    s_waitcnt lgkmcnt(0)
    s_barrier
    """)
    stamp(a, 4)
    kv_load(0, "kv0")
    a(f"ds_read_b128 v[8:11], v13")
    a(f"ds_read_b64 v[14:15], v13 offset:16")
    for qt in range(4):
        a(f"ds_read_b128 {vr(Q[qt],4)}, v12 offset:{LDS_Q+qt*1024}")
    for b in range(1, 3):
        kv_load(b, f"kv{b}")
    a.c("softmax path: zero stand-in iff max|q|^2*max|k|^2 <= 50^2 and max|v|^2 <= 2^120, else the true-max path")
    a(f"""
    s_waitcnt lgkmcnt(0)
    v_max_u32 v8, v8, v9
    v_max3_u32 v8, v8, v10, v11
    v_mul_f32 v8, v8, v14
    v_readfirstlane_b32 s51, v15
    v_readfirstlane_b32 s50, v8
    s_nop 3
    s_cmp_gt_u32 s50, {f32hex(2500.0)}
    s_cbranch_scc1 {name}_slow
    s_cmp_gt_u32 s51, {f32hex(2.0**120)}
    s_cbranch_scc1 {name}_slow
    """)
    wait_for("kkv0")
    a(f"v_mfma_f32_32x32x16_bf16 {vr(S[0],16)}, {vr(KB[0],4)}, {vr(Q[0],4)}, 0")
    stamp(a, 5)
    a("s_setprio 2")
    a("s_nop 10")
    sides = side_ops()
    if "sidefirst" in EXP: pass
    late_all = []
    if "sidelast" in EXP:
        late_all = sides; sides = []
    for kt in range(16):
        kb = kt & 3
        if "noprio" not in EXP:
            if kt == 5: a("s_setprio 1")
            if kt == 11: a("s_setprio 0")
        for qt in range(4):
            t = kt * 4 + qt
            nq = (qt + 1) & 3; nkt = kt if qt < 3 else kt + 1
            pq = (qt - 1) & 3; pkt = kt if qt > 0 else kt - 1
            if t < 63:
                if qt == 3:
                    wait_for(f"kv{nkt}")
                if t == 1:
                    wait_for("kv0")
                a(f"v_mfma_f32_32x32x16_bf16 {vr(S[nq],16)}, {vr(KB[nkt&3],4)}, {vr(Q[nq],4)}, 0")
            for i in range(16):
                if t > 0 and i == 5:
                    a(f"v_smfmac_f32_32x32x32_bf16 {vr(O[pq],16)}, {vr(VB[pkt&3],4)}, {vr(S[pq],8)}, v{IDX}")
                if t > 0 and i == 10:
                    a(f"v_smfmac_f32_32x32x32_bf16 {vr(O[pq],16)}, {vr(VB[pkt&3]+4,4)}, {vr(S[pq]+8,8)}, v{IDX}")
                a(f"v_exp_f32 v{S[qt]+i}, v{S[qt]+i}")
            if qt == 0 and kt + 3 < 16:
                kv_load((kt + 3) & 3, f"kv{kt+3}")
            if qt in (1, 2) and kt >= 1 and sides:
                a(sides.pop(0)); vm("side")
            G0, U0 = GUK
            for m, base in ((0, G0), (1, U0)):
                slot = 2 * kt + (qt >> 1) - base
                if qt in (0, 2) and slot % GUS == 0 and 0 <= slot // GUS < 8:
                    w = slot // GUS
                    w = (w >> 1) + 4 * (w & 1)
                    a(f"s_cmp_lg_u32 s28, {w}\ns_cbranch_scc1 {name}_gu{m}_{w}")
                    a(gu_op(m))
                    a.label(f"{name}_gu{m}_{w}")
    assert not sides
    a(f"""
    s_nop 1
    v_smfmac_f32_32x32x32_bf16 {vr(O[3],16)}, {vr(VB[3],4)}, {vr(S[3],8)}, v{IDX}
    v_smfmac_f32_32x32x32_bf16 {vr(O[3],16)}, {vr(VB[3]+4,4)}, {vr(S[3]+8,8)}, v{IDX}
    """)
    a.label(f"{name}_combine")
    a.c("combine the 4 key-quarter partials through LDS; wave (qg,kq) finalises q-tile kq")
    a(f"""
    s_mul_i32 s53, s34, {4*3*2304}
    v_lshlrev_b32 v8, 2, v{LANE}
    s_nop 7
    """)
    for d in range(4):
        a(f"""
        s_cmp_eq_u32 s35, {d}
        s_cbranch_scc1 {name}_w{d}
        s_cmp_gt_u32 s35, {d}
        s_cselect_b32 s54, 1, 0
        s_sub_u32 s54, s35, s54
        s_mul_i32 s54, s54, 2304
        s_add_u32 s54, s54, s53
        v_add_u32 v9, s54, v{L16}
        v_add_u32 v10, s54, v8
        ds_write_b128 v9, {vr(O[d],4)} offset:{d*3*2304}
        ds_write_b128 v9, {vr(O[d]+4,4)} offset:{d*3*2304+1024}
        ds_write_b32 v10, v{O[d]+8} offset:{d*3*2304+2048}
        s_branch {name}_x{d}
        {name}_w{d}:
        """)
        for r in range(0, 8, 2):
            a(f"v_mov_b64 {vr(S[0]+r,2)}, {vr(O[d]+r,2)}")
        a(f"v_mov_b32 v{S[0]+8}, v{O[d]+8}")
        a.label(f"{name}_x{d}")
    a(f"""
    s_mul_i32 s54, s35, {3*2304}
    s_add_u32 s54, s54, s53
    v_add_u32 v9, s54, v{L16}
    v_add_u32 v10, s54, v8
    s_waitcnt vmcnt(0) lgkmcnt(0)
    s_barrier
    """)
    for si in range(3):
        b = 32 + 12 * si
        a(f"ds_read_b128 {vr(b,4)}, v9 offset:{si*2304}")
        a(f"ds_read_b128 {vr(b+4,4)}, v9 offset:{si*2304+1024}")
        a(f"ds_read_b32 v{b+8}, v10 offset:{si*2304+2048}")
    a(f"""
    s_lshl_b32 s33, s35, 10
    s_add_u32 s41, s41, s33
    s_add_u32 s41, s41, {WS_O:#x}
    """)
    for si in range(3):
        b = 32 + 12 * si
        a(f"s_waitcnt lgkmcnt({6-3*si})")
        for r in range(0, 8, 2):
            a(f"v_pk_add_f32 {vr(S[0]+r,2)}, {vr(S[0]+r,2)}, {vr(b+r,2)}")
        a(f"v_add_f32 v{S[0]+8}, v{S[0]+8}, v{b+8}")
    a(f"v_rcp_f32 v{S[0]+8}, v{S[0]+8}")
    a("s_nop 0")
    for r in range(0, 8, 2):
        a(f"v_pk_mul_f32 {vr(S[0]+r,2)}, {vr(S[0]+r,2)}, {vr(S[0]+8,2)} op_sel_hi:[1,0]")
    for r in range(4):
        a(f"v_cvt_pk_bf16_f32 v{12+r}, v{S[0]+2*r}, v{S[0]+2*r+1}")
    a(f"buffer_store_dwordx4 v[12:15], v{VKQ}, s[24:27], s41 offen sc1")
    stamp(a, 6)
    BF = 16
    AF = 96
    AC = [48, 64]
    a.c("==== out projection: wave (tt,kq): tokens 32tt.., heads 8kq..8kq+7, 64 columns")
    a(f"""
    s_lshl_b32 s40, s35, 19
    s_lshl_b32 s33, s31, 11
    s_add_u32 s40, s40, s33
    s_lshl_b32 s33, s34, 10
    s_add_u32 s40, s40, s33
    s_add_u32 s40, s40, {WS_O:#x}
    s_mov_b32 s52, 0xff
    s_mov_b32 s53, 0
    s_barrier
    """)
    def o_issue():
        for f in range(8):
            a(f"""
            s_bitcmp1_b32 s52, {f}
            s_cbranch_scc0 {name}_oi{f}_{o_issue.n}
            s_add_u32 s33, s40, {f*65536}
            buffer_load_dwordx4 {vr(BF+4*f,4)}, v{VKQ}, s[24:27], s33 offen sc1
            {name}_oi{f}_{o_issue.n}:
            """)
        o_issue.n += 1
    o_issue.n = 0
    def o_first():
        if OD: a(f"s_sleep {OD}")
        for f in range(8):
            a(f"s_add_u32 s33, s40, {f*65536}")
            a(f"buffer_load_dwordx4 {vr(BF+4*f,4)}, v{VKQ}, s[24:27], s33 offen sc1")
    if "oearly" in EXP: o_first()
    a.c("Wo fragments from LDS (transposing reads, 4-column chunks permuted so a lane ends with 16 consecutive columns)")
    a(f"""
    v_bfe_u32 v8, v{LANE}, 2, 2
    v_lshlrev_b32 v9, 10, v{HALF}
    v_lshl_add_u32 v9, v8, 7, v9
    v_bfe_u32 v8, v{LANE}, 3, 1
    v_lshl_add_u32 v9, v8, 6, v9
    v_and_b32 v8, 1, v{LANE}
    v_lshl_add_u32 v9, v8, 5, v9
    v_bfe_u32 v8, v{LANE}, 4, 1
    v_lshl_add_u32 v9, v8, 4, v9
    v_bfe_u32 v8, v{LANE}, 1, 1
    v_lshl_add_u32 v9, v8, 3, v9
    s_lshl_b32 s33, s35, 14
    s_add_u32 s33, s33, {LDS_WO}
    v_add_u32 v9, s33, v9
    v_xor_b32 v10, 64, v9
    """)
    for ks in range(8):
        for ct in range(2):
            r = AF + 4 * (ks * 2 + ct)
            a(f"ds_read_b64_tr_b16 {vr(r,2)}, v{9+ct} offset:{ks*2048}")
            a(f"ds_read_b64_tr_b16 {vr(r+2,2)}, v{9+ct} offset:{ks*2048+512}")
    a.c("sum of w_r, unpack x and w_down while waiting")
    a(f"""
    v_mov_b32 v14, 0x3f803f80
    s_mov_b32 s66, 0xffff0000
    v_dot2_f32_bf16 v15, v{WRF}, v14, 0
    v_dot2_f32_bf16 v15, v{WRF+1}, v14, v15
    v_dot2_f32_bf16 v15, v{WRF+2}, v14, v15
    v_dot2_f32_bf16 v15, v{WRF+3}, v14, v15
    """)
    XU = 160
    for i in range(4):
        a(f"v_lshlrev_b32 v{XU+2*i}, 16, v{XR+i}")
        a(f"v_and_b32 v{XU+2*i+1}, s66, v{XR+i}")
    a(f"v_add_u32 v8, {LDS_WD}, v{VT2}")
    a(f"v_lshlrev_b32 v11, 4, v0")
    a(f"v_add_u32 v11, {LDS_GU}, v11")
    for n, ror in enumerate((8, 4, 2, 1)):
        a(f"v_add_f32_dpp v15, v15, v15 row_ror:{ror} row_mask:0xf bank_mask:0xf")
        a(f"ds_read_u16 v{WD+2*n}, v8 offset:{2*n*1024}")
        a(f"ds_read_u16 v{WD+2*n+1}, v8 offset:{(2*n+1)*1024}")
    a(f"ds_read_b128 {vr(GW,4)}, v11")
    a(f"ds_read_b128 {vr(UW,4)}, v11 offset:8192")
    a(f"""
    v_readlane_b32 s50, v15, 0
    v_readlane_b32 s51, v15, 16
    v_readlane_b32 s54, v15, 32
    v_readlane_b32 s55, v15, 48
    v_mov_b32 v15, s50
    v_add_f32 v15, s51, v15
    v_add_f32 v15, s54, v15
    v_add_f32 v15, s55, v15
""")
    for ct in range(2):
        for r in range(0, 16, 2):
            a(f"v_mov_b64 {vr(AC[ct]+r,2)}, 0")
    a("s_waitcnt lgkmcnt(0)")
    for f in range(8):
        a(f"v_lshlrev_b32 v{WD+f}, 16, v{WD+f}")
    if "oearly" not in EXP: o_first()
    a(f"""
    {name}_opoll:
    s_waitcnt vmcnt(0)
    """)
    for f in range(8):
        a(f"""
        s_bitcmp1_b32 s52, {f}
        s_cbranch_scc0 {name}_oc{f}
        v_cmp_eq_u32 vcc, -1, v{BF+4*f}
        s_cbranch_vccnz {name}_or{f}
        {name}_om{f}:
        s_bitset0_b32 s52, {f}
        v_mfma_f32_32x32x16_bf16 {vr(AC[0],16)}, {vr(AF+8*f,4)}, {vr(BF+4*f,4)}, {vr(AC[0],16)}
        v_mfma_f32_32x32x16_bf16 {vr(AC[1],16)}, {vr(AF+8*f+4,4)}, {vr(BF+4*f,4)}, {vr(AC[1],16)}
        s_branch {name}_oc{f}
        {name}_or{f}:
        s_cmp_gt_u32 s53, {SPIN}
        s_cbranch_scc1 {name}_om{f}
        s_add_u32 s33, s40, {f*65536}
        buffer_load_dwordx4 {vr(BF+4*f,4)}, v{VKQ}, s[24:27], s33 offen sc1
        {name}_oc{f}:
        """)
    a(f"""
    s_add_u32 s53, s53, 1
    s_cmp_lg_u32 s52, 0
    s_cbranch_scc1 {name}_opoll
    """)
    stamp(a, 7)
    a.c("split-K reduction: every wave stores its 32x64 partial; wave kq then owns tokens 8kq..8kq+7, lane -> (token l&7, 8-column group l>>3)")
    a(f"""
    s_lshl_b32 s53, s28, 13
    v_add_u32 v9, s53, v{L16}
    v_and_b32 v10, 7, v{LANE}
    s_lshl_b32 s33, s35, 3
    v_add_u32 v10, s33, v10
    v_bfe_u32 v11, v{LANE}, 4, 1
    v_lshl_add_u32 v10, v11, 5, v10
    v_lshlrev_b32 v10, 4, v10
    v_bfe_u32 v11, v{LANE}, 3, 1
    v_lshl_add_u32 v10, v11, 11, v10
    v_lshl_add_u32 v10, v{HALF}, 12, v10
    s_lshl_b32 s33, s34, 13
    v_add_u32 v10, s33, v10
    """)
    for g in range(8):
        a(f"ds_write_b128 v9, {vr(AC[0]+4*g,4)} offset:{g*1024}")
    a(f"""
    s_lshl_b32 s40, s31, 13
    s_add_u32 s40, s40, {WS_PST:#x}
    s_lshl_b32 s33, s34, 9
    s_add_u32 s40, s40, s33
    s_lshl_b32 s33, s35, 7
    s_add_u32 s40, s40, s33
    s_lshl_b32 s33, s32, 10
    s_add_u32 s41, s40, s33
    s_waitcnt lgkmcnt(0)
    s_barrier
    """)
    for si in range(4):
        a(f"ds_read_b128 {vr(16+8*si,4)}, v10 offset:{si*16384}")
        a(f"ds_read_b128 {vr(20+8*si,4)}, v10 offset:{si*16384+1024}")
    R = XU
    for si in range(4):
        a(f"s_waitcnt lgkmcnt({6-2*si})")
        for r in range(0, 8, 2):
            a(f"v_pk_add_f32 {vr(R+r,2)}, {vr(R+r,2)}, {vr(16+8*si+r,2)}")
    H = 48
    for i in range(4):
        a(f"v_cvt_pk_bf16_f32 v{H+i}, v{R+2*i}, v{R+2*i+1}")
    for i in range(4):
        z = lambda r: "0" if i == 0 else f"v{r}"
        a(f"v_dot2_f32_bf16 v52, v{H+i}, v14, {z(52)}")
        a(f"v_dot2_f32_bf16 v53, v{H+i}, v{H+i}, {z(53)}")
        a(f"v_dot2_f32_bf16 v54, v{H+i}, v{WR+i}, {z(54)}")
    HU = 56
    def red3(x, y, z, fill):
        t = [80, 81, 82]
        f = lambda: a(fill.pop(0)) if fill else a("s_nop 0")
        for r in (x, y, z):
            a(f"v_add_f32_dpp v{r}, v{r}, v{r} row_ror:8 row_mask:0xf bank_mask:0xf")
        for op in ("v_permlane16_swap_b32", "v_permlane32_swap_b32"):
            for r, tt in zip((x, y, z), t):
                a(f"v_mov_b32 v{tt}, v{r}")
            for r, tt in zip((x, y, z), t):
                a(f"{op} v{r}, v{tt}")
            for r, tt in zip((x, y, z), t):
                a(f"v_add_f32 v{r}, v{r}, v{tt}")
    for i in range(2):
        a(f"v_lshlrev_b32 v{HU+2*i}, 16, v{H+i}")
        a(f"v_and_b32 v{HU+2*i+1}, s66, v{H+i}")
    a("v_mov_b32 v55, 0")
    red3(52, 53, 54, [])
    a(f"""
    s_mov_b64 exec, 0xff
    buffer_store_dwordx4 v[52:55], v{L16}, s[24:27], s41 offen sc1
    s_mov_b64 exec, -1
    """)
    stamp(a, 8)
    for i in range(2, 4):
        a(f"v_lshlrev_b32 v{HU+2*i}, 16, v{H+i}")
        a(f"v_and_b32 v{HU+2*i+1}, s66, v{H+i}")
    a.c("==== hop A: lane (token l&7, column block l>>3) gathers one partial record")
    a(f"""
    v_and_b32 v9, 7, v{LANE}
    v_lshlrev_b32 v11, 4, v9
    v_lshl_add_u32 v11, v{VCG}, 6, v11
    s_mov_b32 s53, 0
    s_mov_b32 s48, {f32hex(1/512)}
    s_mov_b32 s49, {f32hex(1e-5)}
    s_lshl_b32 s33, s31, 6
    s_lshl_b32 s54, s34, 5
    s_add_u32 s33, s33, s54
    s_lshl_b32 s54, s35, 3
    s_add_u32 s33, s33, s54
    s_sub_u32 s33, 2047, s33
    v_sub_u32 v28, s33, v9
    s_mov_b32 s56, s16
    s_and_b32 s57, s17, 0xffff
    s_mov_b32 s58, {2048*512*2:#x}
    s_mov_b32 s59, 0x00020000
    {('s_sleep %d' % AD) if AD else ''}
    {name}_apoll:
    buffer_load_dwordx4 v[24:27], v11, s[24:27], s40 offen {PSC}
    s_add_u32 s53, s53, 1
    s_waitcnt vmcnt(0)
    v_cmp_ne_u32 vcc, 0, v27
    s_cmp_gt_u32 s53, {SPIN}
    s_cbranch_scc1 {name}_adone
    s_cbranch_vccnz {name}_apoll
    {name}_adone:
    """)
    red3(24, 25, 26, [])
    a(f"""
    v_mul_f32 v24, s48, v24
    v_mul_f32 v25, s48, v25
    v_fma_f32 v25, -v24, v24, v25
    v_fma_f32 v26, -v24, v15, v26
    v_max_f32 v25, 0, v25
    v_add_f32 v25, s49, v25
    v_rsq_f32 v25, v25
    s_lshl_b32 s33, s28, 2
    s_add_u32 s33, s33, {LDS_ST}
    v_mul_f32 v26, v26, v25
    """)
    stamp(a, 9)
    a.c("v24=mean v25=rstd v26=r ; key = ordered(r) top 21 bits | (2047-row)")
    a(f"""
    v_ashrrev_i32 v27, 31, v26
    v_cmp_o_f32 vcc, v26, v26
    v_or_b32 v27, 0x80000000, v27
    v_xor_b32 v27, v27, v26
    v_and_b32 v27, 0xfffff800, v27
    v_cndmask_b32 v27, 0, v27, vcc
    v_or_b32 v27, v27, v28
    v_mov_b32 v28, v27
    v_mul_f32 v30, v24, v25
    v_add_f32 v31, 1.0, v25
    v_max_u32_dpp v28, v28, v28 row_ror:4 row_mask:0xf bank_mask:0xf
    v_mov_b32 v9, s33
    v_mov_b32 v10, {LDS_ST}
    v_max_u32_dpp v28, v28, v28 row_ror:2 row_mask:0xf bank_mask:0xf
    v_fma_f32 v64, v{HU}, v31, -v30
    v_fma_f32 v65, v{HU+1}, v31, -v30
    v_max_u32_dpp v28, v28, v28 row_ror:1 row_mask:0xf bank_mask:0xf
    v_fma_f32 v66, v{HU+2}, v31, -v30
    ds_write_b32 v9, v28
    """)
    for i in range(3, 8):
        a(f"v_fma_f32 v{64+i}, v{HU+i}, v31, -v30")
    a(f"""
    s_waitcnt lgkmcnt(0)
    s_barrier
    ds_read_b128 v[32:35], v10
    ds_read_b128 v[36:39], v10 offset:16
    """)
    for i in range(4):
        a(f"v_cvt_pk_bf16_f32 v{72+i}, v{64+2*i}, v{64+2*i+1}")
    a(f"""
    s_lshl_b32 s33, s31, 10
    s_add_u32 s33, s33, s63
    s_add_u32 s33, s33, {WS_CROW:#x}
    s_lshl_b32 s54, s31, 7
    s_add_u32 s54, s54, {WS_CKEY:#x}
    v_mov_b32 v9, 0
    v_mov_b32 v20, v27
    v_mov_b32 v21, v24
    v_mov_b32 v22, v25
    v_mov_b32 v23, v26
    s_waitcnt lgkmcnt(0)
    v_max3_u32 v32, v32, v33, v34
    v_max3_u32 v36, v36, v37, v38
    v_max3_u32 v32, v32, v35, v39
    v_max_u32 v32, v32, v36
    v_cmp_eq_u32 vcc, v32, v27
    s_mov_b64 s[36:37], vcc
    s_cbranch_vccz {name}_nokey
    """)
    a.c("the candidate row's lanes publish key record (column block 0) and h piece; the others write their output rows")
    a(f"""
    s_mov_b64 exec, s[36:37]
    s_cmp_lg_u32 s32, 0
    s_cbranch_scc1 {name}_nokey2
    buffer_store_dwordx4 v[20:23], v9, s[24:27], s54 offen sc1
    {name}_nokey2:
    buffer_store_dwordx4 {vr(H,4)}, v{VCG}, s[24:27], s33 offen sc1
    {name}_nokey:
    s_not_b64 exec, s[36:37]
    buffer_store_dwordx4 v[72:75], v{VXO}, s[56:59], s64 offen
    s_mov_b64 exec, -1
    """)
    a.c("==== hop B: wave 0 gathers the 32 candidates and the winner's row, then broadcasts through LDS")
    a(f"""
    s_cmp_lg_u32 s28, 0
    s_cbranch_scc1 {name}_bwait
    v_lshlrev_b32 v9, 7, v{L31}
    s_mov_b32 s40, {WS_CKEY:#x}
    s_mov_b32 s53, 0
    {('s_sleep %d' % BD) if BD else ''}
    {name}_bpoll:
    buffer_load_dwordx4 v[24:27], v9, s[24:27], s40 offen {PSC}
    s_add_u32 s53, s53, 1
    s_waitcnt vmcnt(0)
    v_cmp_eq_u32 vcc, -1, v24
    s_cmp_gt_u32 s53, {SPIN}
    s_cbranch_scc1 {name}_bdone
    s_cbranch_vccz {name}_bdone
    {('s_sleep %d' % BL) if BL else ''}
    s_branch {name}_bpoll
    {name}_bdone:
    v_mov_b32 v28, v24
    s_nop 1
    """)
    for dpp in DPP_MAX[:5]:
        a(f"v_max_u32_dpp v28, v28, v28 {dpp}")
        a("s_nop 1")
    a(f"""
    v_readlane_b32 s69, v28, 31
    s_nop 3
    s_and_b32 s50, s69, 0x7ff
    s_sub_u32 s50, 2047, s50
    s_lshr_b32 s51, s50, 6
    s_lshl_b32 s40, s51, 10
    s_add_u32 s40, s40, {WS_CROW:#x}
    s_mov_b32 s53, 0
    v_cmp_eq_u32 s[38:39], s69, v24
    v_mov_b32 v10, {LDS_ST+64}
    v_add_u32 v11, {LDS_ST+1024}, v{L16}
    {name}_rpoll:
    buffer_load_dwordx4 v[32:35], v{L16}, s[24:27], s40 offen {PSC}
    s_add_u32 s53, s53, 1
    s_waitcnt vmcnt(0)
    v_cmp_eq_u32 vcc, -1, v32
    s_cmp_gt_u32 s53, {SPIN}
    s_cbranch_scc1 {name}_rdone
    s_cbranch_vccnz {name}_rpoll
    {name}_rdone:
    ds_write_b128 v11, v[32:35]
    s_mov_b64 exec, s[38:39]
    ds_write_b128 v10, v[24:27]
    s_mov_b64 exec, -1
    s_waitcnt lgkmcnt(0)
    {name}_bwait:
    s_barrier
    v_mov_b32 v10, {LDS_ST+64}
    v_add_u32 v11, {LDS_ST+1024}, v{VT2}
    ds_read_b128 v[24:27], v10
    ds_read_u16 v29, v11
    s_waitcnt lgkmcnt(0)
    v_readfirstlane_b32 s69, v24
    v_lshlrev_b32 v29, 16, v29
    v_sub_f32 v30, v29, v25
    v_mul_f32 v30, v30, v26
    v_cvt_pk_bf16_f32 v31, v30, v30
    s_and_b32 s50, s69, 0x7ff
    s_sub_u32 s50, 2047, s50
    s_lshr_b32 s51, s50, 6
    v_and_b32 v32, 0xffff, v31
    v_and_b32 v33, s66, v31
    v_mov_b32 v19, v27
    s_cmp_eq_u32 s51, s31
    s_cbranch_scc1 {name}_winner
    s_cmp_eq_u64 s[36:37], 0
    s_cbranch_scc1 {name}_winner
    s_mov_b64 exec, s[36:37]
    buffer_store_dwordx4 v[72:75], v{VXO}, s[56:59], s64 offen
    s_mov_b64 exec, -1
    {name}_winner:
    """)
    stamp(a, 10)
    a(f"""
    s_cmp_eq_u32 s65, 0
    s_cbranch_scc1 {name}_fin
    """)
    ACC = 96
    for m, W in enumerate((GW, UW)):
        for p in range(4):
            a(f"v_dot2_f32_bf16 v{ACC+8*m+2*p}, v{W+p}, v32, 0")
            a(f"v_dot2_f32_bf16 v{ACC+8*m+2*p+1}, v{W+p}, v33, 0")
    a(f"""
    v_lshrrev_b32 v20, 4, v{LANE}
    v_lshlrev_b32 v20, 7, v20
    s_lshl_b32 s33, s28, 2
    s_add_u32 s33, s33, {LDS_FF}
    """)
    for i in range(8):
        a(f"v_permlane32_swap_b32 v{ACC+i}, v{ACC+8+i}")
    for i in range(0, 8, 2):
        a(f"v_pk_add_f32 {vr(ACC+i,2)}, {vr(ACC+i,2)}, {vr(ACC+8+i,2)}")
    a(f"""
    v_add_u32 v20, s33, v20
    v_and_b32 v21, 7, v{LANE}
    """)
    for i in range(4):
        a(f"v_permlane16_swap_b32 v{ACC+i}, v{ACC+4+i}")
    a(f"v_lshlrev_b32 v21, 5, v21")
    for i in range(0, 4, 2):
        a(f"v_pk_add_f32 {vr(ACC+i,2)}, {vr(ACC+i,2)}, {vr(ACC+4+i,2)}")
    a(f"v_add_u32 v21, {LDS_FF}, v21")
    a("s_nop 0")
    for ror in (8, 4, 2, 1):
        for i in range(4):
            a(f"v_add_f32_dpp v{ACC+i}, v{ACC+i}, v{ACC+i} row_ror:{ror} row_mask:0xf bank_mask:0xf")
    a.c("row g holds value 4g+i in reg i ; LDS [value][wave]")
    a(f"""
    ds_write_b32 v20, v{ACC}
    ds_write_b32 v20, v{ACC+1} offset:32
    ds_write_b32 v20, v{ACC+2} offset:64
    ds_write_b32 v20, v{ACC+3} offset:96
    s_waitcnt lgkmcnt(0)
    s_barrier
    ds_read_b128 v[24:27], v21
    ds_read_b128 v[32:35], v21 offset:16
    ds_read_b128 v[36:39], v21 offset:256
    ds_read_b128 v[40:43], v21 offset:272
    v_lshrrev_b32 v20, 5, v0
    v_mul_u32_u24 v20, {224*128}, v20
    v_lshl_add_u32 v20, v{L31}, 2, v20
    s_lshl_b32 s33, s60, 7
    s_add_u32 s33, s33, {WS_YP:#x}
    s_mov_b32 s12, 0x11111111
    s_mov_b32 s13, 0x11111111
    s_waitcnt lgkmcnt(0)
    v_pk_add_f32 v[24:25], v[24:25], v[26:27]
    v_pk_add_f32 v[32:33], v[32:33], v[34:35]
    v_pk_add_f32 v[36:37], v[36:37], v[38:39]
    v_pk_add_f32 v[40:41], v[40:41], v[42:43]
    v_pk_add_f32 v[24:25], v[24:25], v[32:33]
    v_pk_add_f32 v[36:37], v[36:37], v[40:41]
    v_add_f32 v24, v24, v25
    v_add_f32 v36, v36, v37
    """)
    rnd_bf16(a, 24, 24)
    rnd_bf16(a, 36, 36)
    a(f"""
    v_mul_f32 v25, {f32hex(-LOG2E)}, v24
    v_exp_f32 v25, v25
    s_nop 0
    v_add_f32 v25, 1.0, v25
    v_rcp_f32 v25, v25
    s_nop 0
    v_mul_f32 v24, v24, v25
    """)
    rnd_bf16(a, 24, 24)
    a("v_mul_f32 v24, v24, v36")
    rnd_bf16(a, 24, 24)
    a("s_nop 0")
    for f in range(8):
        a(f"v_readlane_b32 s{4+f}, v24, {f}")
    a(f"v_mul_f32 v24, s4, v{WD}")
    for f in range(1, 8):
        a(f"v_fmac_f32 v24, s{4+f}, v{WD+f}")
    a.c("the partial must never equal the sentinel; gather 4 columns per lane for full-line stores")
    a(f"""
    v_cmp_ne_u32 vcc, -1, v24
    v_mov_b32 v27, 0x7fc00000
    s_nop 0
    v_cndmask_b32 v24, v27, v24, vcc
    s_nop 1
    v_mov_b32_dpp v25, v24 quad_perm:[1,1,1,1] row_mask:0xf bank_mask:0xf
    v_mov_b32_dpp v26, v24 quad_perm:[2,2,2,2] row_mask:0xf bank_mask:0xf
    v_mov_b32_dpp v27, v24 quad_perm:[3,3,3,3] row_mask:0xf bank_mask:0xf
    s_mov_b64 exec, s[12:13]
    buffer_store_dwordx4 v[24:27], v20, s[24:27], s33 offen sc1
    s_mov_b64 exec, -1
    """)
    stamp(a, 11)
    a.c("==== hop C: workgroups 0..15 reduce 32 output columns each")
    a(f"""
    s_cmp_ge_u32 s2, 16
    s_cbranch_scc1 {name}_fin
    v_lshlrev_b32 v9, 4, v0
    v_mov_b32 v10, 0x7fffffff
    v_cmp_gt_u32 vcc, 256, v0
    s_mul_i32 s40, s2, {224*128}
    s_add_u32 s40, s40, {WS_YP:#x}
    v_cndmask_b32 v10, v10, v9, vcc
    s_add_u32 s41, s40, 8192
    s_add_u32 s42, s40, 16384
    s_add_u32 s43, s40, 24576
    s_mov_b32 s53, 0
    """)
    rnd_bf16(a, 19, 19)
    a(f"""
    v_mul_f32 v19, {f32hex(-LOG2E)}, v19
    v_exp_f32 v19, v19
    v_and_b32 v31, s66, v31
    v_add_f32 v19, 1.0, v19
    v_rcp_f32 v19, v19
    s_nop 0
    """)
    rnd_bf16(a, 19, 19)
    a(f"""
    {('s_sleep %d' % CD) if CD else ''}
    {name}_cpoll:
    buffer_load_dwordx4 v[32:35], v9, s[24:27], s40 offen {PSC}
    buffer_load_dwordx4 v[36:39], v9, s[24:27], s41 offen {PSC}
    buffer_load_dwordx4 v[40:43], v9, s[24:27], s42 offen {PSC}
    buffer_load_dwordx4 v[44:47], v10, s[24:27], s43 offen {PSC}
    s_add_u32 s53, s53, 1
    s_waitcnt vmcnt(0)
    v_max3_u32 v24, v32, v36, v40
    v_max_u32 v24, v24, v44
    v_cmp_eq_u32 vcc, -1, v24
    s_cmp_gt_u32 s53, {SPIN}
    s_cbranch_scc1 {name}_cdone
    s_cbranch_vccnz {name}_cpoll
    {name}_cdone:
    v_pk_add_f32 v[32:33], v[32:33], v[36:37]
    v_pk_add_f32 v[34:35], v[34:35], v[38:39]
    v_pk_add_f32 v[40:41], v[40:41], v[44:45]
    v_pk_add_f32 v[42:43], v[42:43], v[46:47]
    v_pk_add_f32 v[24:25], v[32:33], v[40:41]
    v_pk_add_f32 v[26:27], v[34:35], v[42:43]
    s_lshl_b32 s33, s28, 2
    s_add_u32 s33, s33, {LDS_ST+2048}
    v_permlane32_swap_b32 v24, v26
    v_permlane32_swap_b32 v25, v27
    v_lshrrev_b32 v20, 4, v{LANE}
    v_pk_add_f32 v[24:25], v[24:25], v[26:27]
    v_and_b32 v21, 7, v{LANE}
    v_lshlrev_b32 v20, 5, v20
    v_permlane16_swap_b32 v24, v25
    v_lshl_add_u32 v20, v21, 7, v20
    v_add_u32 v20, s33, v20
    v_add_f32 v24, v24, v25
    v_lshlrev_b32 v22, 5, v{L31}
    v_add_u32 v22, {LDS_ST+2048}, v22
    v_add_f32_dpp v24, v24, v24 row_ror:8 row_mask:0xf bank_mask:0xf
    s_lshr_b32 s33, s2, 1
    s_nop 0
    ds_write_b32 v20, v24
    s_waitcnt lgkmcnt(0)
    s_barrier
    s_cmp_lg_u32 s28, s33
    s_cbranch_scc1 {name}_fin
    ds_read_b128 v[24:27], v22
    ds_read_b128 v[32:35], v22 offset:16
    s_and_b32 s33, s2, 1
    s_lshl_b32 s33, s33, 5
    s_waitcnt lgkmcnt(0)
    v_pk_add_f32 v[24:25], v[24:25], v[26:27]
    v_pk_add_f32 v[32:33], v[32:33], v[34:35]
    v_pk_add_f32 v[24:25], v[24:25], v[32:33]
    v_add_f32 v24, v24, v25
    """)
    rnd_bf16(a, 24, 24)
    a("v_mul_f32 v24, v24, v19")
    rnd_bf16(a, 24, 24)
    a("v_add_f32 v24, v24, v31")
    rnd_bf16(a, 24, 24)
    a(f"""
    v_add_f32 v24, v24, v29
    v_cvt_pk_bf16_f32 v24, v24, v24
    s_lshl_b32 s40, s50, 10
    s_mov_b32 s4, -1
    s_mov_b32 s5, 0
    s_lshl_b64 exec, s[4:5], s33
    buffer_store_short v24, v{VT2}, s[56:59], s40 offen
    {name}_fin:
    """)
    stamp_flush(a, 0, 12)
    a(f"""
    {name}_end:
    s_endpgm
    """)
    a.label(f"{name}_slow")
    a.c("true-max path: side loads first, then pass 1: row maxima over this wave's keys")
    for op in side_ops() + [gu_op(0), gu_op(1)]:
        a(op)
    a(f"""
    s_waitcnt vmcnt(0)
    s_mov_b32 s55, s42
    s_mov_b32 s52, 16
    """)
    for qt in range(4):
        a(f"v_mov_b32 v{MX[qt]}, 0xff800000")
    a.label(f"{name}_s1")
    a(f"buffer_load_dwordx4 {vr(KB[0],4)}, v{VKQ}, s[24:27], s55 offen sc1")
    a("s_add_u32 s55, s55, 1024")
    a("s_waitcnt vmcnt(0)")
    for qt in range(4):
        a(f"v_mfma_f32_32x32x16_bf16 {vr(S[qt],16)}, {vr(KB[0],4)}, {vr(Q[qt],4)}, 0")
    a("s_nop 15")
    for qt in range(4):
        for i in range(0, 16, 2):
            a(f"v_max3_f32 v{MX[qt]}, v{S[qt]+i}, v{S[qt]+i+1}, v{MX[qt]}")
    a(f"""
    s_sub_u32 s52, s52, 1
    s_cmp_lg_u32 s52, 0
    s_cbranch_scc1 {name}_s1
    s_lshl_b32 s53, s28, 10
    v_lshlrev_b32 v8, 2, v{LANE}
    v_add_u32 v9, s53, v8
    """)
    for qt in range(4):
        a(f"ds_write_b32 v9, v{MX[qt]} offset:{qt*256}")
    a(f"""
    s_lshl_b32 s53, s34, 10
    v_lshlrev_b32 v8, 2, v{L31}
    v_add_u32 v9, s53, v8
    s_waitcnt lgkmcnt(0)
    s_barrier
    """)
    for qt in range(4):
        for kq in range(4):
            a(f"ds_read_b32 v{S[0]+2*kq}, v9 offset:{kq*2048+qt*256}\nds_read_b32 v{S[0]+2*kq+1}, v9 offset:{kq*2048+qt*256+128}")
        a("s_waitcnt lgkmcnt(0)")
        a(f"v_max3_f32 v{MX[qt]}, v{S[0]}, v{S[0]+1}, v{S[0]+2}")
        a(f"v_max3_f32 v{MX[qt]}, v{S[0]+3}, v{S[0]+4}, v{MX[qt]}")
        a(f"v_max3_f32 v{MX[qt]}, v{S[0]+5}, v{S[0]+6}, v{MX[qt]}")
        a(f"v_max_f32 v{MX[qt]}, v{S[0]+7}, v{MX[qt]}")
    a(f"""
    s_barrier
    s_mov_b32 s52, 16
    """)
    a.label(f"{name}_s2")
    kv_load(0)
    a("s_waitcnt vmcnt(0)")
    for qt in range(4):
        a(f"v_mfma_f32_32x32x16_bf16 {vr(S[qt],16)}, {vr(KB[0],4)}, {vr(Q[qt],4)}, 0")
    a("s_nop 15")
    for qt in range(4):
        for i in range(16):
            a(f"v_sub_f32 v{S[qt]+i}, v{S[qt]+i}, v{MX[qt]}")
        for i in range(16):
            a(f"v_exp_f32 v{S[qt]+i}, v{S[qt]+i}")
        a("s_nop 1")
        a(f"v_smfmac_f32_32x32x32_bf16 {vr(O[qt],16)}, {vr(VB[0],4)}, {vr(S[qt],8)}, v{IDX}")
        a(f"v_smfmac_f32_32x32x32_bf16 {vr(O[qt],16)}, {vr(VB[0]+4,4)}, {vr(S[qt]+8,8)}, v{IDX}")
    a(f"""
    s_nop 7
    s_sub_u32 s52, s52, 1
    s_cmp_lg_u32 s52, 0
    s_cbranch_scc1 {name}_s2
    s_branch {name}_combine
    """)
    return descriptor(name, 256)
```

```python
from asmlib import *
from layout import *
from k1 import LDS_NR as K1_NR, LDS_Q

LDS_WO = 65536
LDS_ST = LDS_WO + 65536
LDS_FF = LDS_ST + 4096
LDS_WD = LDS_FF + 1024
LDS_GU = LDS_WD + 8192
KB_LDS = LDS_GU + 16384
LOG2E = 1.4426950408889634
SPIN = 200000
import os
EXP = os.environ.get('EXP', '')
OD = int(os.environ.get('OD', '0'))
AD = int(os.environ.get('AD', '10'))
BD = int(os.environ.get('BD', '22'))
CD = int(os.environ.get('CD', '8'))
ND = int(os.environ.get('ND', '0'))
PSC = os.environ.get('PSC', 'sc1')
BL = int(os.environ.get('BL', '2'))
OSC = os.environ.get('OSC', '')
GUS = int(os.environ.get('GUS', '1'))
GUK = eval(os.environ.get('GUK', '(4, 14)'))

def rnd_bf16(a, d, s):
    a(f"v_cvt_pk_bf16_f32 v{d}, v{s}, v{s}")
    a(f"v_and_b32 v{d}, 0xffff0000, v{d}")

def gen_kb(a, name):
    S = [16, 32, 48, 64]
    O = [80, 96, 112, 128]
    Q = [144, 148, 152, 156]
    KB = [160, 164, 168, 172]
    VB = [176, 184, 192, 200]
    IDX = 208
    MX = [209, 210, 211, 212]
    XR = 216; WR = 220; GW = 224; UW = 228; WD = 232; WRF = 240
    VWO = 213; VXO = 214; VGU = 215; VT2 = 244; VCG = 245
    VKQ = 4; VV = 5; LANE = 2; L31 = 3; HALF = 6; L16 = 7
    a(f"""
    s_load_dwordx2 s[4:5], s[0:1], 0
    s_load_dwordx2 s[6:7], s[0:1], 16
    s_load_dwordx4 s[8:11], s[0:1], 32
    s_load_dwordx4 s[12:15], s[0:1], 48
    s_load_dwordx2 s[16:17], s[0:1], 64
    s_setprio 3
    s_lshl_b32 s31, s29, 2
    s_lshr_b32 s33, s30, 3
    s_add_u32 s31, s31, s33
    s_and_b32 s32, s30, 7
    v_and_b32 v{L31}, 31, v{LANE}
    v_lshrrev_b32 v{HALF}, 5, v{LANE}
    v_lshlrev_b32 v{VKQ}, 5, v{L31}
    v_lshl_add_u32 v{VKQ}, v{HALF}, 4, v{VKQ}
    v_and_b32 v{VV}, 15, v{LANE}
    v_lshlrev_b32 v{VV}, 4, v{VV}
    v_lshl_add_u32 v{VV}, v{HALF}, 8, v{VV}
    v_lshlrev_b32 v{L16}, 4, v{LANE}
    s_and_b32 s34, s28, 1
    s_lshr_b32 s35, s28, 1
    """)
    a.c("s28=wave s56=mb s57=head pair s34=head sel (later token tile) s35=kq ; s31=row block s32=column block of the projection phase")
    a(f"""
    s_lshl_b32 s40, s57, 1
    s_add_u32 s40, s40, s34
    s_lshl_b32 s40, s40, 16
    s_lshl_b32 s33, s56, 12
    s_add_u32 s41, s40, s33
    s_lshl_b32 s33, s35, 14
    s_add_u32 s42, s40, s33
    s_add_u32 s43, s42, {WS_V:#x}
    s_add_u32 s42, s42, {WS_K:#x}
    s_lshl_b32 s45, s56, 10
    s_lshr_b32 s44, s57, 1
    s_lshl_b32 s44, s44, 11
    s_and_b32 s33, s57, 1
    s_lshl_b32 s33, s33, 4
    s_add_u32 s44, s44, s33
    s_add_u32 s44, s44, {WS_NRM:#x}
    s_mov_b32 s46, 0x0000ffff
    s_mov_b32 s47, 0x0000ffff
    s_mov_b32 s23, 0x00020000
    v_and_b32 v8, 27, v{LANE}
    v_mov_b32 v9, 0x3f803f80
    v_cmp_eq_u32 vcc, 16, v8
    v_mov_b32 v{IDX}, 0xdddddddd
    s_nop 0
    v_cndmask_b32 v8, 0, v9, vcc
    v_cndmask_b32 v9, 0, v9, vcc
    """)
    for b in range(4):
        for r in range(0, 8, 2):
            a(f"v_mov_b64 {vr(VB[b]+r,2)}, v[8:9]")
    outst = []
    def vm(tag): outst.append(tag)
    def wait_for(tag):
        idx = max(i for i, t in enumerate(outst) if t == tag)
        n = len(outst) - 1 - idx
        a(f"s_waitcnt vmcnt({n})")
        del outst[:idx + 1]
    def kv_load(b, tag=None, mid=()):
        a("s_add_u32 s48, s42, s45")
        a("s_add_u32 s49, s43, s45")
        a(f"buffer_load_dwordx4 {vr(KB[b],4)}, v{VKQ}, s[24:27], s48 offen sc1")
        if tag is not None: vm("k" + tag)
        for (ins, tg) in mid:
            a(ins); vm(tg)
        a("s_mov_b64 exec, s[46:47]")
        a(f"buffer_load_dwordx4 {vr(VB[b],4)}, v{VV}, s[24:27], s49 offen sc1")
        a(f"buffer_load_dwordx4 {vr(VB[b]+4,4)}, v{VV}, s[24:27], s49 offen offset:512 sc1")
        a("s_mov_b64 exec, -1")
        a("s_add_u32 s45, s45, 1024")
        a("s_and_b32 s45, s45, 0x3fff")
        if tag is not None:
            for _ in range(2): vm(tag)
    for qt in range(4):
        for r in range(0, 16, 2):
            a(f"v_mov_b64 {vr(O[qt]+r,2)}, 0")
    a.c("addresses for the side loads (operands of the later phases, fetched under the attention loop)")
    a(f"""
    v_lshrrev_b32 v12, 3, v{LANE}
    v_lshlrev_b32 v{VWO}, 10, v12
    v_and_b32 v12, 7, v{LANE}
    v_bfe_u32 v13, v{LANE}, 4, 1
    v_lshlrev_b32 v13, 2, v13
    v_xor_b32 v12, v12, v13
    v_lshl_add_u32 v{VWO}, v12, 4, v{VWO}
    v_and_b32 v12, 7, v{LANE}
    v_lshlrev_b32 v{VXO}, 10, v12
    v_lshrrev_b32 v12, 3, v{LANE}
    v_lshlrev_b32 v{VCG}, 4, v12
    v_add_u32 v{VXO}, v{VCG}, v{VXO}
    v_lshlrev_b32 v{VT2}, 1, v0
    v_mul_u32_u24 v{VGU}, 3584, v0
    s_mul_i32 s60, s29, 28
    s_add_u32 s60, s60, s30
    s_lshl_b32 s61, s28, 16
    s_lshl_b32 s33, s32, 7
    s_add_u32 s61, s61, s33
    s_lshl_b32 s62, s28, 13
    s_add_u32 s62, s62, {LDS_WO}
    s_lshl_b32 s63, s32, 7
    s_lshl_b32 s64, s31, 16
    s_lshl_b32 s33, s34, 15
    s_add_u32 s64, s64, s33
    s_lshl_b32 s33, s35, 13
    s_add_u32 s64, s64, s33
    s_add_u32 s64, s64, s63
    s_cmp_lt_u32 s30, 28
    s_cselect_b32 s65, {512*1792*2:#x}, 0
    """)
    a.c("s60=ffn slice j, s61=Wo global off, s62=Wo lds off, s63=col byte off of this wave's 8-col piece, s64=x/out off, s65=ffn weight bytes (0: none)")
    def side_ops():
        ops = []
        def tsrd(p, nbytes):
            return f"s_mov_b32 s20, s{p}\ns_and_b32 s21, s{p+1}, 0xffff\ns_mov_b32 s22, {nbytes}\n"
        for i in range(8):
            ops.append(tsrd(6, hex(512*512*2)) + f"s_add_u32 m0, s62, {i*1024}\ns_add_u32 s33, s61, {i*8192}\nbuffer_load_dwordx4 v{VWO}, s[20:23], s33 offen lds")
        ops.append(tsrd(4, hex(2048*512*2)) + f"buffer_load_dwordx4 {vr(XR,4)}, v{VXO}, s[20:23], s64 offen")
        ops.append(tsrd(8, 1024) + f"buffer_load_dwordx4 {vr(WR,4)}, v{VCG}, s[20:23], s63 offen")
        ops.append(tsrd(8, 1024) + f"buffer_load_dwordx4 {vr(WRF,4)}, v{L16}, s[20:23], 0 offen")
        ops.append(tsrd(14, "s65") + f"s_lshl_b32 s33, s28, 10\ns_add_u32 m0, s33, {LDS_WD}\ns_lshl_b32 s50, s60, 13\ns_add_u32 s33, s33, s50\nbuffer_load_dwordx4 v{L16}, s[20:23], s33 offen lds")
        return ops
    def gu_op(m):
        return (f"s_mov_b32 s20, s{10+2*m}\ns_and_b32 s21, s{11+2*m}, 0xffff\ns_mov_b32 s22, s65\n"
                f"s_lshl_b32 s33, s28, 10\ns_add_u32 m0, s33, {LDS_GU + m*8192}\ns_lshl_b32 s33, s60, 4\nbuffer_load_dwordx4 v{VGU}, s[20:23], s33 offen lds")
    a.c("wave 4 waits for the 16 producer records of this head pair (K/V written) and leaves max|k|^2, max|v|^2 in LDS")
    a(f"""
    s_cmp_lg_u32 s28, 4
    s_cbranch_scc1 {name}_K
    v_bfe_u32 v8, v{LANE}, 4, 1
    v_lshlrev_b32 v8, 14, v8
    v_and_b32 v9, 15, v{LANE}
    v_lshl_add_u32 v12, v9, 7, v8
    s_mov_b32 s53, 0
    {('s_sleep %d' % ND) if ND else ''}
    {name}_npoll:
    buffer_load_dwordx4 v[8:11], v12, s[24:27], s44 offen sc1
    s_add_u32 s53, s53, 1
    s_waitcnt vmcnt(0)
    v_cmp_eq_u32 vcc, -1, v8
    s_cmp_gt_u32 s53, {SPIN}
    s_cbranch_scc1 {name}_ndone
    s_cbranch_vccnz {name}_npoll
    {name}_ndone:
    v_max_u32 v8, v8, v9
    v_max3_u32 v8, v8, v10, v11
    v_lshrrev_b32 v9, 4, v{LANE}
    v_lshlrev_b32 v9, 2, v9
    """)
    for ror in (8, 4, 2, 1):
        a(f"v_max_u32_dpp v8, v8, v8 row_ror:{ror} row_mask:0xf bank_mask:0xf")
        a("s_nop 1")
    a(f"""
    v_add_u32 v9, {K1_NR+48:#x}, v9
    ds_write_b32 v9, v8
    {name}_K:
    s_lshl_b32 s33, s34, 12
    v_add_u32 v12, s33, v{L16}
    v_mov_b32 v13, {K1_NR+32:#x}
    s_waitcnt lgkmcnt(0)
    s_barrier
    """)
    stamp(a, 4)
    kv_load(0, "kv0")
    a(f"ds_read_b128 v[8:11], v13")
    a(f"ds_read_b64 v[14:15], v13 offset:16")
    for qt in range(4):
        a(f"ds_read_b128 {vr(Q[qt],4)}, v12 offset:{LDS_Q+qt*1024}")
    for b in range(1, 3):
        kv_load(b, f"kv{b}")
    a.c("softmax path: zero stand-in iff max|q|^2*max|k|^2 <= 50^2 and max|v|^2 <= 2^120, else the true-max path")
    a(f"""
    s_waitcnt lgkmcnt(0)
    v_max_u32 v8, v8, v9
    v_max3_u32 v8, v8, v10, v11
    v_mul_f32 v8, v8, v14
    v_readfirstlane_b32 s51, v15
    v_readfirstlane_b32 s50, v8
    s_nop 3
    s_cmp_gt_u32 s50, {f32hex(2500.0)}
    s_cbranch_scc1 {name}_slow
    s_cmp_gt_u32 s51, {f32hex(2.0**120)}
    s_cbranch_scc1 {name}_slow
    """)
    wait_for("kkv0")
    a(f"v_mfma_f32_32x32x16_bf16 {vr(S[0],16)}, {vr(KB[0],4)}, {vr(Q[0],4)}, 0")
    stamp(a, 5)
    a("s_setprio 2")
    a("s_nop 10")
    sides = side_ops()
    if "sidefirst" in EXP: pass
    late_all = []
    if "sidelast" in EXP:
        late_all = sides; sides = []
    for kt in range(16):
        kb = kt & 3
        if "noprio" not in EXP:
            if kt == 5: a("s_setprio 1")
            if kt == 11: a("s_setprio 0")
        for qt in range(4):
            t = kt * 4 + qt
            nq = (qt + 1) & 3; nkt = kt if qt < 3 else kt + 1
            pq = (qt - 1) & 3; pkt = kt if qt > 0 else kt - 1
            if t < 63:
                if qt == 3:
                    wait_for(f"kv{nkt}")
                if t == 1:
                    wait_for("kv0")
                a(f"v_mfma_f32_32x32x16_bf16 {vr(S[nq],16)}, {vr(KB[nkt&3],4)}, {vr(Q[nq],4)}, 0")
            for i in range(16):
                if t > 0 and i == 5:
                    a(f"v_smfmac_f32_32x32x32_bf16 {vr(O[pq],16)}, {vr(VB[pkt&3],4)}, {vr(S[pq],8)}, v{IDX}")
                if t > 0 and i == 10:
                    a(f"v_smfmac_f32_32x32x32_bf16 {vr(O[pq],16)}, {vr(VB[pkt&3]+4,4)}, {vr(S[pq]+8,8)}, v{IDX}")
                a(f"v_exp_f32 v{S[qt]+i}, v{S[qt]+i}")
            if qt == 0 and kt + 3 < 16:
                kv_load((kt + 3) & 3, f"kv{kt+3}")
            if qt in (1, 2) and kt >= 1 and sides:
                a(sides.pop(0)); vm("side")
            G0, U0 = GUK
            for m, base in ((0, G0), (1, U0)):
                slot = 2 * kt + (qt >> 1) - base
                if qt in (0, 2) and slot % GUS == 0 and 0 <= slot // GUS < 8:
                    w = slot // GUS
                    w = (w >> 1) + 4 * (w & 1)
                    a(f"s_cmp_lg_u32 s28, {w}\ns_cbranch_scc1 {name}_gu{m}_{w}")
                    a(gu_op(m))
                    a.label(f"{name}_gu{m}_{w}")
    assert not sides
    a(f"""
    s_nop 1
    v_smfmac_f32_32x32x32_bf16 {vr(O[3],16)}, {vr(VB[3],4)}, {vr(S[3],8)}, v{IDX}
    v_smfmac_f32_32x32x32_bf16 {vr(O[3],16)}, {vr(VB[3]+4,4)}, {vr(S[3]+8,8)}, v{IDX}
    """)
    a.label(f"{name}_combine")
    a.c("combine the 4 key-quarter partials through LDS; wave (qg,kq) finalises q-tile kq")
    a(f"""
    s_mul_i32 s53, s34, {4*3*2304}
    v_lshlrev_b32 v8, 2, v{LANE}
    s_nop 7
    """)
    for d in range(4):
        a(f"""
        s_cmp_eq_u32 s35, {d}
        s_cbranch_scc1 {name}_w{d}
        s_cmp_gt_u32 s35, {d}
        s_cselect_b32 s54, 1, 0
        s_sub_u32 s54, s35, s54
        s_mul_i32 s54, s54, 2304
        s_add_u32 s54, s54, s53
        v_add_u32 v9, s54, v{L16}
        v_add_u32 v10, s54, v8
        ds_write_b128 v9, {vr(O[d],4)} offset:{d*3*2304}
        ds_write_b128 v9, {vr(O[d]+4,4)} offset:{d*3*2304+1024}
        ds_write_b32 v10, v{O[d]+8} offset:{d*3*2304+2048}
        s_branch {name}_x{d}
        {name}_w{d}:
        """)
        for r in range(0, 8, 2):
            a(f"v_mov_b64 {vr(S[0]+r,2)}, {vr(O[d]+r,2)}")
        a(f"v_mov_b32 v{S[0]+8}, v{O[d]+8}")
        a.label(f"{name}_x{d}")
    a(f"""
    s_mul_i32 s54, s35, {3*2304}
    s_add_u32 s54, s54, s53
    v_add_u32 v9, s54, v{L16}
    v_add_u32 v10, s54, v8
    s_waitcnt vmcnt(0) lgkmcnt(0)
    s_barrier
    """)
    for si in range(3):
        b = 32 + 12 * si
        a(f"ds_read_b128 {vr(b,4)}, v9 offset:{si*2304}")
        a(f"ds_read_b128 {vr(b+4,4)}, v9 offset:{si*2304+1024}")
        a(f"ds_read_b32 v{b+8}, v10 offset:{si*2304+2048}")
    a(f"""
    s_lshl_b32 s33, s35, 10
    s_add_u32 s41, s41, s33
    s_add_u32 s41, s41, {WS_O:#x}
    """)
    for si in range(3):
        b = 32 + 12 * si
        a(f"s_waitcnt lgkmcnt({6-3*si})")
        for r in range(0, 8, 2):
            a(f"v_pk_add_f32 {vr(S[0]+r,2)}, {vr(S[0]+r,2)}, {vr(b+r,2)}")
        a(f"v_add_f32 v{S[0]+8}, v{S[0]+8}, v{b+8}")
    a(f"v_rcp_f32 v{S[0]+8}, v{S[0]+8}")
    a("s_nop 0")
    for r in range(0, 8, 2):
        a(f"v_pk_mul_f32 {vr(S[0]+r,2)}, {vr(S[0]+r,2)}, {vr(S[0]+8,2)} op_sel_hi:[1,0]")
    for r in range(4):
        a(f"v_cvt_pk_bf16_f32 v{12+r}, v{S[0]+2*r}, v{S[0]+2*r+1}")
    a(f"buffer_store_dwordx4 v[12:15], v{VKQ}, s[24:27], s41 offen sc1")
    stamp(a, 6)
    BF = 16
    AF = 96
    AC = [48, 64]
    a.c("==== out projection: wave (tt,kq): tokens 32tt.., heads 8kq..8kq+7, 64 columns")
    a(f"""
    s_lshl_b32 s40, s35, 19
    s_lshl_b32 s33, s31, 11
    s_add_u32 s40, s40, s33
    s_lshl_b32 s33, s34, 10
    s_add_u32 s40, s40, s33
    s_add_u32 s40, s40, {WS_O:#x}
    s_mov_b32 s52, 0xff
    s_mov_b32 s53, 0
    s_barrier
    """)
    def o_issue():
        for f in range(8):
            a(f"""
            s_bitcmp1_b32 s52, {f}
            s_cbranch_scc0 {name}_oi{f}_{o_issue.n}
            s_add_u32 s33, s40, {f*65536}
            buffer_load_dwordx4 {vr(BF+4*f,4)}, v{VKQ}, s[24:27], s33 offen sc1
            {name}_oi{f}_{o_issue.n}:
            """)
        o_issue.n += 1
    o_issue.n = 0
    def o_first():
        if OD: a(f"s_sleep {OD}")
        for f in range(8):
            a(f"s_add_u32 s33, s40, {f*65536}")
            a(f"buffer_load_dwordx4 {vr(BF+4*f,4)}, v{VKQ}, s[24:27], s33 offen sc1")
    if "oearly" in EXP: o_first()
    a.c("Wo fragments from LDS (transposing reads, 4-column chunks permuted so a lane ends with 16 consecutive columns)")
    a(f"""
    v_bfe_u32 v8, v{LANE}, 2, 2
    v_lshlrev_b32 v9, 10, v{HALF}
    v_lshl_add_u32 v9, v8, 7, v9
    v_bfe_u32 v8, v{LANE}, 3, 1
    v_lshl_add_u32 v9, v8, 6, v9
    v_and_b32 v8, 1, v{LANE}
    v_lshl_add_u32 v9, v8, 5, v9
    v_bfe_u32 v8, v{LANE}, 4, 1
    v_lshl_add_u32 v9, v8, 4, v9
    v_bfe_u32 v8, v{LANE}, 1, 1
    v_lshl_add_u32 v9, v8, 3, v9
    s_lshl_b32 s33, s35, 14
    s_add_u32 s33, s33, {LDS_WO}
    v_add_u32 v9, s33, v9
    v_xor_b32 v10, 64, v9
    """)
    for ks in range(8):
        for ct in range(2):
            r = AF + 4 * (ks * 2 + ct)
            a(f"ds_read_b64_tr_b16 {vr(r,2)}, v{9+ct} offset:{ks*2048}")
            a(f"ds_read_b64_tr_b16 {vr(r+2,2)}, v{9+ct} offset:{ks*2048+512}")
    a.c("sum of w_r, unpack x and w_down while waiting")
    a(f"""
    v_mov_b32 v14, 0x3f803f80
    s_mov_b32 s66, 0xffff0000
    v_dot2_f32_bf16 v15, v{WRF}, v14, 0
    v_dot2_f32_bf16 v15, v{WRF+1}, v14, v15
    v_dot2_f32_bf16 v15, v{WRF+2}, v14, v15
    v_dot2_f32_bf16 v15, v{WRF+3}, v14, v15
    """)
    XU = 160
    for i in range(4):
        a(f"v_lshlrev_b32 v{XU+2*i}, 16, v{XR+i}")
        a(f"v_and_b32 v{XU+2*i+1}, s66, v{XR+i}")
    a(f"v_add_u32 v8, {LDS_WD}, v{VT2}")
    a(f"v_lshlrev_b32 v11, 4, v0")
    a(f"v_add_u32 v11, {LDS_GU}, v11")
    for n, ror in enumerate((8, 4, 2, 1)):
        a(f"v_add_f32_dpp v15, v15, v15 row_ror:{ror} row_mask:0xf bank_mask:0xf")
        a(f"ds_read_u16 v{WD+2*n}, v8 offset:{2*n*1024}")
        a(f"ds_read_u16 v{WD+2*n+1}, v8 offset:{(2*n+1)*1024}")
    a(f"ds_read_b128 {vr(GW,4)}, v11")
    a(f"ds_read_b128 {vr(UW,4)}, v11 offset:8192")
    a(f"""
    v_readlane_b32 s50, v15, 0
    v_readlane_b32 s51, v15, 16
    v_readlane_b32 s54, v15, 32
    v_readlane_b32 s55, v15, 48
    v_mov_b32 v15, s50
    v_add_f32 v15, s51, v15
    v_add_f32 v15, s54, v15
    v_add_f32 v15, s55, v15
""")
    for ct in range(2):
        for r in range(0, 16, 2):
            a(f"v_mov_b64 {vr(AC[ct]+r,2)}, 0")
    a("s_waitcnt lgkmcnt(0)")
    for f in range(8):
        a(f"v_lshlrev_b32 v{WD+f}, 16, v{WD+f}")
    if "oearly" not in EXP: o_first()
    a(f"""
    {name}_opoll:
    s_waitcnt vmcnt(0)
    """)
    for f in range(8):
        a(f"""
        s_bitcmp1_b32 s52, {f}
        s_cbranch_scc0 {name}_oc{f}
        v_cmp_eq_u32 vcc, -1, v{BF+4*f}
        s_cbranch_vccnz {name}_or{f}
        {name}_om{f}:
        s_bitset0_b32 s52, {f}
        v_mfma_f32_32x32x16_bf16 {vr(AC[0],16)}, {vr(AF+8*f,4)}, {vr(BF+4*f,4)}, {vr(AC[0],16)}
        v_mfma_f32_32x32x16_bf16 {vr(AC[1],16)}, {vr(AF+8*f+4,4)}, {vr(BF+4*f,4)}, {vr(AC[1],16)}
        s_branch {name}_oc{f}
        {name}_or{f}:
        s_cmp_gt_u32 s53, {SPIN}
        s_cbranch_scc1 {name}_om{f}
        s_add_u32 s33, s40, {f*65536}
        buffer_load_dwordx4 {vr(BF+4*f,4)}, v{VKQ}, s[24:27], s33 offen sc1
        {name}_oc{f}:
        """)
    a(f"""
    s_add_u32 s53, s53, 1
    s_cmp_lg_u32 s52, 0
    s_cbranch_scc1 {name}_opoll
    """)
    stamp(a, 7)
    a.c("split-K reduction: every wave stores its 32x64 partial; wave kq then owns tokens 8kq..8kq+7, lane -> (token l&7, 8-column group l>>3)")
    a(f"""
    s_lshl_b32 s53, s28, 13
    v_add_u32 v9, s53, v{L16}
    v_and_b32 v10, 7, v{LANE}
    s_lshl_b32 s33, s35, 3
    v_add_u32 v10, s33, v10
    v_bfe_u32 v11, v{LANE}, 4, 1
    v_lshl_add_u32 v10, v11, 5, v10
    v_lshlrev_b32 v10, 4, v10
    v_bfe_u32 v11, v{LANE}, 3, 1
    v_lshl_add_u32 v10, v11, 11, v10
    v_lshl_add_u32 v10, v{HALF}, 12, v10
    s_lshl_b32 s33, s34, 13
    v_add_u32 v10, s33, v10
    """)
    for g in range(8):
        a(f"ds_write_b128 v9, {vr(AC[0]+4*g,4)} offset:{g*1024}")
    a(f"""
    s_lshl_b32 s40, s31, 13
    s_add_u32 s40, s40, {WS_PST:#x}
    s_lshl_b32 s33, s34, 9
    s_add_u32 s40, s40, s33
    s_lshl_b32 s33, s35, 7
    s_add_u32 s40, s40, s33
    s_lshl_b32 s33, s32, 10
    s_add_u32 s41, s40, s33
    s_waitcnt lgkmcnt(0)
    s_barrier
    """)
    for si in range(4):
        a(f"ds_read_b128 {vr(16+8*si,4)}, v10 offset:{si*16384}")
        a(f"ds_read_b128 {vr(20+8*si,4)}, v10 offset:{si*16384+1024}")
    R = XU
    for si in range(4):
        a(f"s_waitcnt lgkmcnt({6-2*si})")
        for r in range(0, 8, 2):
            a(f"v_pk_add_f32 {vr(R+r,2)}, {vr(R+r,2)}, {vr(16+8*si+r,2)}")
    H = 48
    for i in range(4):
        a(f"v_cvt_pk_bf16_f32 v{H+i}, v{R+2*i}, v{R+2*i+1}")
    for i in range(4):
        z = lambda r: "0" if i == 0 else f"v{r}"
        a(f"v_dot2_f32_bf16 v52, v{H+i}, v14, {z(52)}")
        a(f"v_dot2_f32_bf16 v53, v{H+i}, v{H+i}, {z(53)}")
        a(f"v_dot2_f32_bf16 v54, v{H+i}, v{WR+i}, {z(54)}")
    HU = 56
    def red3(x, y, z, fill):
        t = [80, 81, 82]
        f = lambda: a(fill.pop(0)) if fill else a("s_nop 0")
        for r in (x, y, z):
            a(f"v_add_f32_dpp v{r}, v{r}, v{r} row_ror:8 row_mask:0xf bank_mask:0xf")
        for op in ("v_permlane16_swap_b32", "v_permlane32_swap_b32"):
            for r, tt in zip((x, y, z), t):
                a(f"v_mov_b32 v{tt}, v{r}")
            for r, tt in zip((x, y, z), t):
                a(f"{op} v{r}, v{tt}")
            for r, tt in zip((x, y, z), t):
                a(f"v_add_f32 v{r}, v{r}, v{tt}")
    for i in range(2):
        a(f"v_lshlrev_b32 v{HU+2*i}, 16, v{H+i}")
        a(f"v_and_b32 v{HU+2*i+1}, s66, v{H+i}")
    a("v_mov_b32 v55, 0")
    red3(52, 53, 54, [])
    a(f"""
    s_mov_b64 exec, 0xff
    buffer_store_dwordx4 v[52:55], v{L16}, s[24:27], s41 offen sc1
    s_mov_b64 exec, -1
    """)
    stamp(a, 8)
    for i in range(2, 4):
        a(f"v_lshlrev_b32 v{HU+2*i}, 16, v{H+i}")
        a(f"v_and_b32 v{HU+2*i+1}, s66, v{H+i}")
    a.c("==== hop A: lane (token l&7, column block l>>3) gathers one partial record")
    a(f"""
    v_and_b32 v9, 7, v{LANE}
    v_lshlrev_b32 v11, 4, v9
    v_lshl_add_u32 v11, v{VCG}, 6, v11
    s_mov_b32 s53, 0
    s_mov_b32 s48, {f32hex(1/512)}
    s_mov_b32 s49, {f32hex(1e-5)}
    s_lshl_b32 s33, s31, 6
    s_lshl_b32 s54, s34, 5
    s_add_u32 s33, s33, s54
    s_lshl_b32 s54, s35, 3
    s_add_u32 s33, s33, s54
    s_sub_u32 s33, 2047, s33
    v_sub_u32 v28, s33, v9
    s_mov_b32 s56, s16
    s_and_b32 s57, s17, 0xffff
    s_mov_b32 s58, {2048*512*2:#x}
    s_mov_b32 s59, 0x00020000
    {('s_sleep %d' % AD) if AD else ''}
    {name}_apoll:
    buffer_load_dwordx4 v[24:27], v11, s[24:27], s40 offen {PSC}
    s_add_u32 s53, s53, 1
    s_waitcnt vmcnt(0)
    v_cmp_ne_u32 vcc, 0, v27
    s_cmp_gt_u32 s53, {SPIN}
    s_cbranch_scc1 {name}_adone
    s_cbranch_vccnz {name}_apoll
    {name}_adone:
    """)
    red3(24, 25, 26, [])
    a(f"""
    v_mul_f32 v24, s48, v24
    v_mul_f32 v25, s48, v25
    v_fma_f32 v25, -v24, v24, v25
    v_fma_f32 v26, -v24, v15, v26
    v_max_f32 v25, 0, v25
    v_add_f32 v25, s49, v25
    v_rsq_f32 v25, v25
    s_lshl_b32 s33, s28, 2
    s_add_u32 s33, s33, {LDS_ST}
    v_mul_f32 v26, v26, v25
    """)
    stamp(a, 9)
    a.c("v24=mean v25=rstd v26=r ; key = ordered(r) top 21 bits | (2047-row)")
    a(f"""
    v_ashrrev_i32 v27, 31, v26
    v_cmp_o_f32 vcc, v26, v26
    v_or_b32 v27, 0x80000000, v27
    v_xor_b32 v27, v27, v26
    v_and_b32 v27, 0xfffff800, v27
    v_cndmask_b32 v27, 0, v27, vcc
    v_or_b32 v27, v27, v28
    v_mov_b32 v28, v27
    v_mul_f32 v30, v24, v25
    v_add_f32 v31, 1.0, v25
    v_max_u32_dpp v28, v28, v28 row_ror:4 row_mask:0xf bank_mask:0xf
    v_mov_b32 v9, s33
    v_mov_b32 v10, {LDS_ST}
    v_max_u32_dpp v28, v28, v28 row_ror:2 row_mask:0xf bank_mask:0xf
    v_fma_f32 v64, v{HU}, v31, -v30
    v_fma_f32 v65, v{HU+1}, v31, -v30
    v_max_u32_dpp v28, v28, v28 row_ror:1 row_mask:0xf bank_mask:0xf
    v_fma_f32 v66, v{HU+2}, v31, -v30
    ds_write_b32 v9, v28
    """)
    for i in range(3, 8):
        a(f"v_fma_f32 v{64+i}, v{HU+i}, v31, -v30")
    a(f"""
    s_waitcnt lgkmcnt(0)
    s_barrier
    ds_read_b128 v[32:35], v10
    ds_read_b128 v[36:39], v10 offset:16
    """)
    for i in range(4):
        a(f"v_cvt_pk_bf16_f32 v{72+i}, v{64+2*i}, v{64+2*i+1}")
    a(f"""
    s_lshl_b32 s33, s31, 10
    s_add_u32 s33, s33, s63
    s_add_u32 s33, s33, {WS_CROW:#x}
    s_lshl_b32 s54, s31, 7
    s_add_u32 s54, s54, {WS_CKEY:#x}
    v_mov_b32 v9, 0
    v_mov_b32 v20, v27
    v_mov_b32 v21, v24
    v_mov_b32 v22, v25
    v_mov_b32 v23, v26
    s_waitcnt lgkmcnt(0)
    v_max3_u32 v32, v32, v33, v34
    v_max3_u32 v36, v36, v37, v38
    v_max3_u32 v32, v32, v35, v39
    v_max_u32 v32, v32, v36
    v_cmp_eq_u32 vcc, v32, v27
    s_mov_b64 s[36:37], vcc
    s_cbranch_vccz {name}_nokey
    """)
    a.c("the candidate row's lanes publish key record (column block 0) and h piece; the others write their output rows")
    a(f"""
    s_mov_b64 exec, s[36:37]
    s_cmp_lg_u32 s32, 0
    s_cbranch_scc1 {name}_nokey2
    buffer_store_dwordx4 v[20:23], v9, s[24:27], s54 offen sc1
    {name}_nokey2:
    buffer_store_dwordx4 {vr(H,4)}, v{VCG}, s[24:27], s33 offen sc1
    {name}_nokey:
    s_not_b64 exec, s[36:37]
    buffer_store_dwordx4 v[72:75], v{VXO}, s[56:59], s64 offen {OSC}
    s_mov_b64 exec, -1
    """)
    a.c("==== hop B: wave 0 gathers the 32 candidates and the winner's row, then broadcasts through LDS")
    a(f"""
    s_cmp_lg_u32 s28, 0
    s_cbranch_scc1 {name}_bwait
    v_lshlrev_b32 v9, 7, v{L31}
    s_mov_b32 s40, {WS_CKEY:#x}
    s_mov_b32 s53, 0
    {('s_sleep %d' % BD) if BD else ''}
    {name}_bpoll:
    buffer_load_dwordx4 v[24:27], v9, s[24:27], s40 offen {PSC}
    s_add_u32 s53, s53, 1
    s_waitcnt vmcnt(0)
    v_cmp_eq_u32 vcc, -1, v24
    s_cmp_gt_u32 s53, {SPIN}
    s_cbranch_scc1 {name}_bdone
    s_cbranch_vccz {name}_bdone
    {('s_sleep %d' % BL) if BL else ''}
    s_branch {name}_bpoll
    {name}_bdone:
    v_mov_b32 v28, v24
    s_nop 1
    """)
    for dpp in DPP_MAX[:5]:
        a(f"v_max_u32_dpp v28, v28, v28 {dpp}")
        a("s_nop 1")
    a(f"""
    v_readlane_b32 s69, v28, 31
    s_nop 3
    s_and_b32 s50, s69, 0x7ff
    s_sub_u32 s50, 2047, s50
    s_lshr_b32 s51, s50, 6
    s_lshl_b32 s40, s51, 10
    s_add_u32 s40, s40, {WS_CROW:#x}
    s_mov_b32 s53, 0
    v_cmp_eq_u32 s[38:39], s69, v24
    v_mov_b32 v10, {LDS_ST+64}
    v_add_u32 v11, {LDS_ST+1024}, v{L16}
    {name}_rpoll:
    buffer_load_dwordx4 v[32:35], v{L16}, s[24:27], s40 offen {PSC}
    s_add_u32 s53, s53, 1
    s_waitcnt vmcnt(0)
    v_cmp_eq_u32 vcc, -1, v32
    s_cmp_gt_u32 s53, {SPIN}
    s_cbranch_scc1 {name}_rdone
    s_cbranch_vccnz {name}_rpoll
    {name}_rdone:
    ds_write_b128 v11, v[32:35]
    s_mov_b64 exec, s[38:39]
    ds_write_b128 v10, v[24:27]
    s_mov_b64 exec, -1
    s_waitcnt lgkmcnt(0)
    {name}_bwait:
    s_barrier
    v_mov_b32 v10, {LDS_ST+64}
    v_add_u32 v11, {LDS_ST+1024}, v{VT2}
    ds_read_b128 v[24:27], v10
    ds_read_u16 v29, v11
    s_waitcnt lgkmcnt(0)
    v_readfirstlane_b32 s69, v24
    v_lshlrev_b32 v29, 16, v29
    v_sub_f32 v30, v29, v25
    v_mul_f32 v30, v30, v26
    v_cvt_pk_bf16_f32 v31, v30, v30
    s_and_b32 s50, s69, 0x7ff
    s_sub_u32 s50, 2047, s50
    s_lshr_b32 s51, s50, 6
    v_and_b32 v32, 0xffff, v31
    v_and_b32 v33, s66, v31
    v_mov_b32 v19, v27
    s_cmp_eq_u32 s51, s31
    s_cbranch_scc1 {name}_winner
    s_cmp_eq_u64 s[36:37], 0
    s_cbranch_scc1 {name}_winner
    s_mov_b64 exec, s[36:37]
    buffer_store_dwordx4 v[72:75], v{VXO}, s[56:59], s64 offen {OSC}
    s_mov_b64 exec, -1
    {name}_winner:
    """)
    stamp(a, 10)
    a(f"""
    s_cmp_eq_u32 s65, 0
    s_cbranch_scc1 {name}_fin
    """)
    ACC = 96
    for m, W in enumerate((GW, UW)):
        for p in range(4):
            a(f"v_dot2_f32_bf16 v{ACC+8*m+2*p}, v{W+p}, v32, 0")
            a(f"v_dot2_f32_bf16 v{ACC+8*m+2*p+1}, v{W+p}, v33, 0")
    a(f"""
    v_lshrrev_b32 v20, 4, v{LANE}
    v_lshlrev_b32 v20, 7, v20
    s_lshl_b32 s33, s28, 2
    s_add_u32 s33, s33, {LDS_FF}
    """)
    for i in range(8):
        a(f"v_permlane32_swap_b32 v{ACC+i}, v{ACC+8+i}")
    for i in range(0, 8, 2):
        a(f"v_pk_add_f32 {vr(ACC+i,2)}, {vr(ACC+i,2)}, {vr(ACC+8+i,2)}")
    a(f"""
    v_add_u32 v20, s33, v20
    v_and_b32 v21, 7, v{LANE}
    """)
    for i in range(4):
        a(f"v_permlane16_swap_b32 v{ACC+i}, v{ACC+4+i}")
    a(f"v_lshlrev_b32 v21, 5, v21")
    for i in range(0, 4, 2):
        a(f"v_pk_add_f32 {vr(ACC+i,2)}, {vr(ACC+i,2)}, {vr(ACC+4+i,2)}")
    a(f"v_add_u32 v21, {LDS_FF}, v21")
    a("s_nop 0")
    for ror in (8, 4, 2, 1):
        for i in range(4):
            a(f"v_add_f32_dpp v{ACC+i}, v{ACC+i}, v{ACC+i} row_ror:{ror} row_mask:0xf bank_mask:0xf")
    a.c("row g holds value 4g+i in reg i ; LDS [value][wave]")
    a(f"""
    ds_write_b32 v20, v{ACC}
    ds_write_b32 v20, v{ACC+1} offset:32
    ds_write_b32 v20, v{ACC+2} offset:64
    ds_write_b32 v20, v{ACC+3} offset:96
    s_waitcnt lgkmcnt(0)
    s_barrier
    ds_read_b128 v[24:27], v21
    ds_read_b128 v[32:35], v21 offset:16
    ds_read_b128 v[36:39], v21 offset:256
    ds_read_b128 v[40:43], v21 offset:272
    v_lshrrev_b32 v20, 5, v0
    v_mul_u32_u24 v20, {224*128}, v20
    v_lshl_add_u32 v20, v{L31}, 2, v20
    s_lshl_b32 s33, s60, 7
    s_add_u32 s33, s33, {WS_YP:#x}
    s_mov_b32 s12, 0x11111111
    s_mov_b32 s13, 0x11111111
    s_waitcnt lgkmcnt(0)
    v_pk_add_f32 v[24:25], v[24:25], v[26:27]
    v_pk_add_f32 v[32:33], v[32:33], v[34:35]
    v_pk_add_f32 v[36:37], v[36:37], v[38:39]
    v_pk_add_f32 v[40:41], v[40:41], v[42:43]
    v_pk_add_f32 v[24:25], v[24:25], v[32:33]
    v_pk_add_f32 v[36:37], v[36:37], v[40:41]
    v_add_f32 v24, v24, v25
    v_add_f32 v36, v36, v37
    """)
    rnd_bf16(a, 24, 24)
    rnd_bf16(a, 36, 36)
    a(f"""
    v_mul_f32 v25, {f32hex(-LOG2E)}, v24
    v_exp_f32 v25, v25
    s_nop 0
    v_add_f32 v25, 1.0, v25
    v_rcp_f32 v25, v25
    s_nop 0
    v_mul_f32 v24, v24, v25
    """)
    rnd_bf16(a, 24, 24)
    a("v_mul_f32 v24, v24, v36")
    rnd_bf16(a, 24, 24)
    a("s_nop 0")
    for f in range(8):
        a(f"v_readlane_b32 s{4+f}, v24, {f}")
    a(f"v_mul_f32 v24, s4, v{WD}")
    for f in range(1, 8):
        a(f"v_fmac_f32 v24, s{4+f}, v{WD+f}")
    a.c("the partial must never equal the sentinel; gather 4 columns per lane for full-line stores")
    a(f"""
    v_cmp_ne_u32 vcc, -1, v24
    v_mov_b32 v27, 0x7fc00000
    s_nop 0
    v_cndmask_b32 v24, v27, v24, vcc
    s_nop 1
    v_mov_b32_dpp v25, v24 quad_perm:[1,1,1,1] row_mask:0xf bank_mask:0xf
    v_mov_b32_dpp v26, v24 quad_perm:[2,2,2,2] row_mask:0xf bank_mask:0xf
    v_mov_b32_dpp v27, v24 quad_perm:[3,3,3,3] row_mask:0xf bank_mask:0xf
    s_mov_b64 exec, s[12:13]
    buffer_store_dwordx4 v[24:27], v20, s[24:27], s33 offen sc1
    s_mov_b64 exec, -1
    """)
    stamp(a, 11)
    a.c("==== hop C: workgroups 0..15 reduce 32 output columns each")
    a(f"""
    s_cmp_ge_u32 s2, 16
    s_cbranch_scc1 {name}_fin
    v_lshlrev_b32 v9, 4, v0
    v_mov_b32 v10, 0x7fffffff
    v_cmp_gt_u32 vcc, 256, v0
    s_mul_i32 s40, s2, {224*128}
    s_add_u32 s40, s40, {WS_YP:#x}
    v_cndmask_b32 v10, v10, v9, vcc
    s_add_u32 s41, s40, 8192
    s_add_u32 s42, s40, 16384
    s_add_u32 s43, s40, 24576
    s_mov_b32 s53, 0
    """)
    rnd_bf16(a, 19, 19)
    a(f"""
    v_mul_f32 v19, {f32hex(-LOG2E)}, v19
    v_exp_f32 v19, v19
    v_and_b32 v31, s66, v31
    v_add_f32 v19, 1.0, v19
    v_rcp_f32 v19, v19
    s_nop 0
    """)
    rnd_bf16(a, 19, 19)
    a(f"""
    {('s_sleep %d' % CD) if CD else ''}
    {name}_cpoll:
    buffer_load_dwordx4 v[32:35], v9, s[24:27], s40 offen {PSC}
    buffer_load_dwordx4 v[36:39], v9, s[24:27], s41 offen {PSC}
    buffer_load_dwordx4 v[40:43], v9, s[24:27], s42 offen {PSC}
    buffer_load_dwordx4 v[44:47], v10, s[24:27], s43 offen {PSC}
    s_add_u32 s53, s53, 1
    s_waitcnt vmcnt(0)
    v_max3_u32 v24, v32, v36, v40
    v_max_u32 v24, v24, v44
    v_cmp_eq_u32 vcc, -1, v24
    s_cmp_gt_u32 s53, {SPIN}
    s_cbranch_scc1 {name}_cdone
    s_cbranch_vccnz {name}_cpoll
    {name}_cdone:
    v_pk_add_f32 v[32:33], v[32:33], v[36:37]
    v_pk_add_f32 v[34:35], v[34:35], v[38:39]
    v_pk_add_f32 v[40:41], v[40:41], v[44:45]
    v_pk_add_f32 v[42:43], v[42:43], v[46:47]
    v_pk_add_f32 v[24:25], v[32:33], v[40:41]
    v_pk_add_f32 v[26:27], v[34:35], v[42:43]
    s_lshl_b32 s33, s28, 2
    s_add_u32 s33, s33, {LDS_ST+2048}
    v_permlane32_swap_b32 v24, v26
    v_permlane32_swap_b32 v25, v27
    v_lshrrev_b32 v20, 4, v{LANE}
    v_pk_add_f32 v[24:25], v[24:25], v[26:27]
    v_and_b32 v21, 7, v{LANE}
    v_lshlrev_b32 v20, 5, v20
    v_permlane16_swap_b32 v24, v25
    v_lshl_add_u32 v20, v21, 7, v20
    v_add_u32 v20, s33, v20
    v_add_f32 v24, v24, v25
    v_lshlrev_b32 v22, 5, v{L31}
    v_add_u32 v22, {LDS_ST+2048}, v22
    v_add_f32_dpp v24, v24, v24 row_ror:8 row_mask:0xf bank_mask:0xf
    s_lshr_b32 s33, s2, 1
    s_nop 0
    ds_write_b32 v20, v24
    s_waitcnt lgkmcnt(0)
    s_barrier
    s_cmp_lg_u32 s28, s33
    s_cbranch_scc1 {name}_fin
    ds_read_b128 v[24:27], v22
    ds_read_b128 v[32:35], v22 offset:16
    s_and_b32 s33, s2, 1
    s_lshl_b32 s33, s33, 5
    s_waitcnt lgkmcnt(0)
    v_pk_add_f32 v[24:25], v[24:25], v[26:27]
    v_pk_add_f32 v[32:33], v[32:33], v[34:35]
    v_pk_add_f32 v[24:25], v[24:25], v[32:33]
    v_add_f32 v24, v24, v25
    """)
    rnd_bf16(a, 24, 24)
    a("v_mul_f32 v24, v24, v19")
    rnd_bf16(a, 24, 24)
    a("v_add_f32 v24, v24, v31")
    rnd_bf16(a, 24, 24)
    a(f"""
    v_add_f32 v24, v24, v29
    v_cvt_pk_bf16_f32 v24, v24, v24
    s_lshl_b32 s40, s50, 10
    s_mov_b32 s4, -1
    s_mov_b32 s5, 0
    s_lshl_b64 exec, s[4:5], s33
    buffer_store_short v24, v{VT2}, s[56:59], s40 offen {OSC}
    {name}_fin:
    """)
    stamp_flush(a, 0, 12)
    a(f"""
    {name}_end:
    s_endpgm
    """)
    a.label(f"{name}_slow")
    a.c("true-max path: side loads first, then pass 1: row maxima over this wave's keys")
    for op in side_ops() + [gu_op(0), gu_op(1)]:
        a(op)
    a(f"""
    s_waitcnt vmcnt(0)
    s_mov_b32 s55, s42
    s_mov_b32 s52, 16
    """)
    for qt in range(4):
        a(f"v_mov_b32 v{MX[qt]}, 0xff800000")
    a.label(f"{name}_s1")
    a(f"buffer_load_dwordx4 {vr(KB[0],4)}, v{VKQ}, s[24:27], s55 offen sc1")
    a("s_add_u32 s55, s55, 1024")
    a("s_waitcnt vmcnt(0)")
    for qt in range(4):
        a(f"v_mfma_f32_32x32x16_bf16 {vr(S[qt],16)}, {vr(KB[0],4)}, {vr(Q[qt],4)}, 0")
    a("s_nop 15")
    for qt in range(4):
        for i in range(0, 16, 2):
            a(f"v_max3_f32 v{MX[qt]}, v{S[qt]+i}, v{S[qt]+i+1}, v{MX[qt]}")
    a(f"""
    s_sub_u32 s52, s52, 1
    s_cmp_lg_u32 s52, 0
    s_cbranch_scc1 {name}_s1
    s_lshl_b32 s53, s28, 10
    v_lshlrev_b32 v8, 2, v{LANE}
    v_add_u32 v9, s53, v8
    """)
    for qt in range(4):
        a(f"ds_write_b32 v9, v{MX[qt]} offset:{qt*256}")
    a(f"""
    s_lshl_b32 s53, s34, 10
    v_lshlrev_b32 v8, 2, v{L31}
    v_add_u32 v9, s53, v8
    s_waitcnt lgkmcnt(0)
    s_barrier
    """)
    for qt in range(4):
        for kq in range(4):
            a(f"ds_read_b32 v{S[0]+2*kq}, v9 offset:{kq*2048+qt*256}\nds_read_b32 v{S[0]+2*kq+1}, v9 offset:{kq*2048+qt*256+128}")
        a("s_waitcnt lgkmcnt(0)")
        a(f"v_max3_f32 v{MX[qt]}, v{S[0]}, v{S[0]+1}, v{S[0]+2}")
        a(f"v_max3_f32 v{MX[qt]}, v{S[0]+3}, v{S[0]+4}, v{MX[qt]}")
        a(f"v_max3_f32 v{MX[qt]}, v{S[0]+5}, v{S[0]+6}, v{MX[qt]}")
        a(f"v_max_f32 v{MX[qt]}, v{S[0]+7}, v{MX[qt]}")
    a(f"""
    s_barrier
    s_mov_b32 s52, 16
    """)
    a.label(f"{name}_s2")
    kv_load(0)
    a("s_waitcnt vmcnt(0)")
    for qt in range(4):
        a(f"v_mfma_f32_32x32x16_bf16 {vr(S[qt],16)}, {vr(KB[0],4)}, {vr(Q[qt],4)}, 0")
    a("s_nop 15")
    for qt in range(4):
        for i in range(16):
            a(f"v_sub_f32 v{S[qt]+i}, v{S[qt]+i}, v{MX[qt]}")
        for i in range(16):
            a(f"v_exp_f32 v{S[qt]+i}, v{S[qt]+i}")
        a("s_nop 1")
        a(f"v_smfmac_f32_32x32x32_bf16 {vr(O[qt],16)}, {vr(VB[0],4)}, {vr(S[qt],8)}, v{IDX}")
        a(f"v_smfmac_f32_32x32x32_bf16 {vr(O[qt],16)}, {vr(VB[0]+4,4)}, {vr(S[qt]+8,8)}, v{IDX}")
    a(f"""
    s_nop 7
    s_sub_u32 s52, s52, 1
    s_cmp_lg_u32 s52, 0
    s_cbranch_scc1 {name}_s2
    s_branch {name}_combine
    """)
    return descriptor(name, 256)
```

```python
from asmlib import *
from layout import *
import os

SLOT = 24576
NSLOT = 5
LDS_WQ = SLOT * NSLOT
LDS_P = LDS_WQ + 32768
LDS_CS = LDS_P + 1536
LDS_NR = LDS_CS + 2048
K1_LDS = LDS_NR + 128
LDS_Q = 40960
HI = 0x20000
AHEAD = 3
LA = 2
SPIN = 200000
FILLP = 3
JSTEP = int(os.environ.get("JSTEP", "20"))
DBG = bool(os.environ.get("DBGSTAMP"))

def gen_k1(a, name):
    LANE = 2; HALF = 3
    VL = [8, 9, 10, 11]
    VXR = [12, 13, 14, 15]
    VDX = 16; VDW = 20
    ONES = 18
    XF = [128 + 4 * i for i in range(32)]
    WF = [52 + 8 * i for i in range(LA + 1)]
    ACC = [76, 92]
    CS = [40, 44]; SX = [24, 28]; SXX = [32, 36]
    kernel_head(a, name)
    a(f"""
    s_cmp_ge_u32 s2, 256
    s_cbranch_scc1 {name}_end
    s_load_dwordx4 s[4:7], s[0:1], 0
    s_load_dwordx4 s[8:11], s[0:1], 72
    s_getpc_b64 s[36:37]
    {name}_pc:
    """)
    stamp(a, 0)
    a(f"""
    v_lshrrev_b32 v1, 6, v0
    v_and_b32 v{LANE}, 63, v0
    s_and_b32 s29, s2, 7
    v_readfirstlane_b32 s28, v1
    s_lshr_b32 s30, s2, 3
    s_lshr_b32 s56, s29, 1
    s_lshl_b32 s56, s56, 2
    s_and_b32 s33, s30, 3
    s_add_u32 s56, s56, s33
    s_lshl_b32 s49, s33, 1
    s_and_b32 s57, s29, 1
    s_lshl_b32 s57, s57, 3
    s_lshr_b32 s33, s30, 2
    s_add_u32 s57, s57, s33
    s_add_u32 s49, s49, s33
    s_and_b32 s45, s28, 3
    """)
    a.c("s28=wave s45=token tile / k-step s56=mb s57=head pair s49=phase rotation")
    def setup_x():
        a.c("x staging: lane -> row l>>3 of an 8-row group, LDS chunk q=l&7 holds global chunk q^((row>>1)&7)")
        a(f"""
        v_lshrrev_b32 v4, 3, v{LANE}
        v_and_b32 v6, 7, v{LANE}
        v_lshrrev_b32 v5, 4, v{LANE}
        v_xor_b32 v5, v5, v6
        v_lshlrev_b32 v{VDX}, 10, v4
        v_lshl_add_u32 v{VDX}, v5, 4, v{VDX}
        v_xor_b32 v{VDX+1}, 64, v{VDX}
        s_lshl_b32 s40, s56, 17
        s_lshl_b32 s33, s45, 15
        s_add_u32 s40, s40, s33
        s_lshl_b32 s42, s45, 12
        s_add_u32 s42, s42, 8192
        s_mov_b32 s14, {2048*512*2:#x}
        s_mov_b32 s15, 0x00020000
        s_waitcnt lgkmcnt(0)
        s_mov_b32 s12, s4
        s_and_b32 s13, s5, 0xffff
        """)
    def setup_w():
        a(f"""
        v_lshrrev_b32 v4, 3, v{LANE}
        v_bfe_u32 v5, v{LANE}, 4, 1
        v_lshlrev_b32 v5, 2, v5
        v_and_b32 v6, 7, v{LANE}
        v_xor_b32 v5, v5, v6
        v_mul_u32_u24 v{VDW+1}, 3072, v4
        v_lshl_add_u32 v{VDW+1}, v5, 4, v{VDW+1}
        s_mul_i32 s50, s45, 49152
        s_lshl_b32 s33, s57, 7
        s_add_u32 s51, s50, s33
        s_add_u32 s51, s51, 1024
        s_lshl_b32 s52, s45, 11
        s_mov_b32 s18, {512*1536*2:#x}
        s_mov_b32 s19, 0x00020000
        s_waitcnt lgkmcnt(0)
        s_mov_b32 s16, s6
        s_and_b32 s17, s7, 0xffff
        """)
    def setup_q():
        a(f"""
        v_lshrrev_b32 v{VDW}, 2, v{LANE}
        v_mul_u32_u24 v{VDW}, 3072, v{VDW}
        v_and_b32 v6, 3, v{LANE}
        v_lshl_add_u32 v{VDW}, v6, 4, v{VDW}
        s_lshl_b32 s33, s57, 6
        s_add_u32 s50, s50, s33
        """)
    def dma_x(p):
        so = (p % NSLOT) * SLOT
        a(f"s_add_u32 s43, s49, {p}")
        a(f"s_and_b32 s43, s43, 7")
        a(f"s_lshl_b32 s43, s43, 7")
        a(f"s_add_u32 s43, s43, s40")
        for g in range(4):
            a(f"s_add_u32 m0, s42, {so + g * 1024}")
            a(f"s_add_u32 s41, s43, {g * 8192}")
            a(f"buffer_load_dwordx4 v{VDX + (g & 1)}, s[12:15], s41 offen lds")
    def dma_w(p):
        so = (p % NSLOT) * SLOT
        a(f"s_add_u32 s43, s49, {p}")
        a(f"s_and_b32 s43, s43, 7")
        a(f"s_mul_i32 s43, s43, {4*49152}")
        a(f"s_add_u32 m0, s52, {so}")
        a(f"s_add_u32 s41, s43, s51")
        a(f"buffer_load_dwordx4 v{VDW+1}, s[16:19], s41 offen lds")
        a(f"s_add_u32 m0, s52, {so + 1024}")
        a(f"s_add_u32 s41, s41, {8*3072}")
        a(f"buffer_load_dwordx4 v{VDW+1}, s[16:19], s41 offen lds")
    def dma_q(p):
        a(f"s_add_u32 s43, s49, {p}")
        a(f"s_and_b32 s43, s43, 7")
        a(f"s_mul_i32 s43, s43, {4*49152}")
        a(f"s_add_u32 m0, s53, {LDS_WQ + p * 4096}")
        a(f"s_add_u32 s41, s43, s50")
        a(f"buffer_load_dwordx4 v{VDW}, s[16:19], s41 offen lds")
    def tr_base(dst):
        a(f"""
        v_lshrrev_b32 v{HALF}, 5, v{LANE}
        v_bfe_u32 v5, v{LANE}, 2, 2
        v_bfe_u32 v6, v{LANE}, 4, 1
        v_lshlrev_b32 v{dst}, 5, v6
        v_and_b32 v6, 3, v{LANE}
        v_lshl_add_u32 v{dst}, v6, 3, v{dst}
        v_lshl_add_u32 v{dst}, v{HALF}, 9, v{dst}
        v_lshl_add_u32 v{dst}, v5, 6, v{dst}
        v_and_b32 v116, 31, v{LANE}
        v_mov_b32 v{ONES}, 0x3f803f80
        v_mov_b32 v{ONES+1}, 0x3f803f80
        s_lshl_b32 s35, s45, 2
        s_add_u32 s44, s35, {HI:#x}
        """)
    NX = AHEAD
    a(f"""
    s_cmp_ge_u32 s28, 4
    s_cbranch_scc1 {name}_H
    """)
    setup_x()
    dma_x(0)
    a(f"s_branch {name}_C")
    a.label(f"{name}_H")
    setup_w()
    outst = []
    for p in range(AHEAD):
        dma_w(p); outst += [p] * 2
        if p == 0:
            a.c("code prefetch through an exact-size descriptor (2 KB per helper wave)")
            a(f"""
            v_lshlrev_b32 v117, 4, v{LANE}
            s_and_b32 s37, s37, 0xffff
            s_mov_b32 s38, code_end-{name}_pc
            s_mov_b32 s39, 0x00020000
            s_lshl_b32 s33, s30, 2
            s_add_u32 s33, s33, s45
            s_and_b32 s33, s33, 15
            s_lshl_b32 s33, s33, 11
            buffer_load_dwordx4 v[24:27], v117, s[36:39], s33 offen
            buffer_load_dwordx4 v[24:27], v117, s[36:39], s33 offen offset:1024
            """)
            outst += ["x", "x"]
    setup_x()
    setup_q()
    srd(a, 24, 10, WS_BYTES)
    srd(a, 20, 8, 256)
    tr_base(8)
    a(f"""
    s_lshl_b32 s53, s45, 10
    v_add_u32 v8, s53, v8
    v_add_u32 v8, {LDS_WQ}, v8
    v_lshlrev_b32 v9, 4, v116
    v_add_u32 v9, s44, v9
    v_lshlrev_b32 v4, 2, v{LANE}
    {"v_and_b32 v4, 127, v4" if DBG else ""}
    {"v_add_u32 v4, 64, v4" if DBG else ""}
    """)
    for p in range(8):
        idx = max(i for i, x in enumerate(outst) if x == p)
        a(f"s_waitcnt vmcnt({len(outst) - 1 - idx})")
        del outst[:idx + 1]
        a("s_barrier")
        if p == 0: stamp(a, 1)
        if p + AHEAD < 8:
            dma_w(p + AHEAD); dma_x(p + AHEAD); outst += [p + AHEAD] * 6
        if p in (4, 5):
            for q in range(4):
                dma_q((p - 4) * 4 + q); outst.append("q")
    stamp(a, 2)
    a.c("Wq landed (own k-steps): barrier E1 publishes it; then column sums of Wq over this wave's 8 k-steps")
    a("s_waitcnt vmcnt(0)")
    for p in range(8):
        a(f"ds_read_b64_tr_b16 {vr(32+4*p,2)}, v8 offset:{p*4096}")
        a(f"ds_read_b64_tr_b16 {vr(32+4*p+2,2)}, v8 offset:{p*4096+256}")
    a("s_barrier")
    a("s_waitcnt lgkmcnt(0)")
    for i in range(16):
        acc = 64 + 4 * (i % 4)
        a(f"v_mfma_f32_4x4x4_16b_bf16 {vr(acc,4)}, {vr(ONES,2)}, {vr(32+2*i,2)}, {'0' if i < 4 else vr(acc,4)}")
    a(f"""
    s_nop 4
    v_add_f32 v64, v64, v68
    v_add_f32 v72, v72, v76
    v_add_f32 v64, v64, v72
    v_mov_b32 v65, v64
    s_nop 1
    v_permlane32_swap_b32 v64, v65
    s_nop 0
    v_add_f32 v64, v64, v65
    ds_write_b32 v9, v64 offset:{LDS_P-HI+1024}
    s_cmp_lg_u32 s28, 4
    s_cbranch_scc1 {name}_hJ
    s_mov_b32 s53, 0
    {name}_ipoll:
    buffer_load_dword v5, v4, s[20:23], 0 offen sc1
    s_add_u32 s53, s53, 1
    s_waitcnt vmcnt(0)
    v_cmp_gt_u32 vcc, {8 if DBG else 4}, v5
    s_cmp_gt_u32 s53, {SPIN}
    s_cbranch_scc1 {name}_hJ
    s_cbranch_vccnz {name}_ipoll
    {name}_hJ:
    s_waitcnt lgkmcnt(0)
    s_barrier
    """)
    stamp(a, 3)
    a.c("wave 4 publishes the K/V norms of this workgroup (the record doubles as 'tiles written' flag)")
    a(f"""
    s_cmp_lg_u32 s28, 4
    s_cbranch_scc1 {name}_P2
    v_add_u32 v4, {LDS_NR:#x}, v117
    s_mov_b64 exec, 3
    ds_read_b128 v[8:11], v4
    s_lshl_b32 s33, s57, 11
    s_lshl_b32 s34, s56, 7
    s_add_u32 s33, s33, s34
    s_add_u32 s33, s33, {WS_NRM:#x}
    s_waitcnt lgkmcnt(0)
    v_min_u32 v8, 0x7fffffff, v8
    buffer_store_dwordx4 v[8:11], v117, s[24:27], s33 offen sc1
    s_mov_b64 exec, -1
    s_branch {name}_P2
    """)
    a.label(f"{name}_C")
    for p in range(1, NX):
        dma_x(p)
    a(f"v_lshlrev_b32 v117, 4, v{LANE}")
    tr_base(4)
    a(f"""
    v_and_b32 v113, 63, v4
    v_lshl_add_u32 v113, v{HALF}, 10, v113
    v_lshl_add_u32 v113, v5, 7, v113
    v_bfe_u32 v6, v{LANE}, 3, 1
    v_lshl_add_u32 v113, v6, 6, v113
    v_bfe_u32 v6, v{LANE}, 1, 3
    v_xor_b32 v6, v6, v{HALF}
    v_lshlrev_b32 v5, 7, v116
    v_add_u32 v5, s42, v5
    """)
    for j in range(4):
        a(f"""
        s_add_u32 s33, s45, {j}
        s_and_b32 s33, s33, 3
        s_lshl_b32 s35, s33, 11
        s_lshl_b32 s34, s33, 1
        v_add_u32 v{VL[j]}, s35, v113
        s_lshl_b32 s35, s33, 10
        s_add_u32 s35, s35, {LDS_WQ}
        v_add_u32 v{108+j}, s35, v4
        v_xor_b32 v7, s34, v6
        v_lshl_add_u32 v{VXR[j]}, v7, 4, v5
        """)
    srd(a, 24, 10, WS_BYTES)
    srd(a, 20, 8, 256)
    a.c("pre-fill this workgroup's share of the hand-off region with the 'not yet written' sentinel")
    a(f"""
    v_mov_b32 v48, -1
    v_mov_b32 v49, -1
    v_mov_b32 v50, -1
    v_mov_b32 v51, -1
    s_mul_i32 s34, s2, {SENT_PER_WG}
    s_mul_i32 s35, s45, 3072
    s_add_u32 s34, s34, s35
    s_add_u32 s34, s34, {WS_SENT:#x}
    """)
    for i in range(3):
        a(f"buffer_store_dwordx4 v[48:51], v117, s[24:27], s34 offen offset:{i*1024} sc1")
    a.c("epilogue addresses")
    a(f"""
    s_lshl_b32 s33, s45, 9
    v_lshlrev_b32 v118, 4, v{HALF}
    v_add_u32 v118, {HI:#x}, v118
    v_add_u32 v118, s33, v118
    v_lshlrev_b32 v119, 2, v{LANE}
    v_add_u32 v119, {HI:#x}, v119
    v_add_u32 v119, s33, v119
    v_lshlrev_b32 v120, 5, v116
    v_lshl_add_u32 v120, v{HALF}, 4, v120
    s_lshl_b32 s46, s57, 18
    s_lshl_b32 s34, s56, 12
    s_add_u32 s46, s46, s34
    s_lshl_b32 s35, s45, 10
    s_add_u32 s46, s46, s35
    s_add_u32 s46, s46, {WS_K:#x}
    s_add_u32 s47, s46, 0x10000
    s_add_u32 s48, s46, 0x20000
    s_add_u32 s62, s46, 0x30000
    v_add_u32 v112, s35, v117
    s_mul_i32 s33, s45, 4608
    v_mul_u32_u24 v124, 72, v116
    v_lshl_add_u32 v124, v{HALF}, 3, v124
    v_add_u32 v124, s33, v124
    v_bfe_u32 v125, v{LANE}, 2, 2
    v_lshl_add_u32 v125, v{HALF}, 3, v125
    v_mul_u32_u24 v125, 72, v125
    v_bfe_u32 v6, v{LANE}, 4, 1
    v_lshl_add_u32 v125, v6, 5, v125
    v_and_b32 v5, 1, v{LANE}
    v_lshl_add_u32 v125, v5, 4, v125
    v_bfe_u32 v5, v{LANE}, 1, 1
    v_lshl_add_u32 v125, v5, 3, v125
    v_add_u32 v125, s33, v125
    v_and_b32 v126, 15, v{LANE}
    v_lshlrev_b32 v126, 4, v126
    v_lshl_add_u32 v126, v{HALF}, 8, v126
    v_lshl_add_u32 v126, v6, 16, v126
    v_add_u32 v121, s44, v117
    v_lshlrev_b32 v123, 4, v116
    v_add_u32 v123, {HI:#x}, v123
    v_add_u32 v127, {HI:#x}, v117
    v_mov_b32 v122, s44
    v_and_b32 v5, 3, v{LANE}
    v_cmp_eq_u32 s[50:51], 1, v5
    v_cmp_eq_u32 s[52:53], 2, v5
    v_cmp_eq_u32 s[54:55], 3, v5
    s_mov_b32 s60, 0
    s_mov_b32 s61, 0x80000000
    """)
    cur_base = [0]
    def rebase(p):
        so = (p % NSLOT) * SLOT
        want = (so // (2 * SLOT)) * 2 * SLOT
        ops = []
        if want != cur_base[0]:
            d = want - cur_base[0]
            ops = [f"v_add_u32 v{r}, {d & 0xffffffff:#x}, v{r}" for r in VL + VXR]
            cur_base[0] = want
        return so - want, ops
    def reads(t):
        p, j = t >> 2, t & 3
        off, pre = rebase(p)
        wf = WF[t % (LA + 1)]
        return pre, [f"ds_read_b128 {vr(XF[t],4)}, v{VXR[j]} offset:{off}",
                f"ds_read_b64_tr_b16 {vr(wf,2)}, v{VL[j]} offset:{off}",
                f"v_xor_b32 v7, 64, v{VL[j]}\nds_read_b64_tr_b16 {vr(wf+2,2)}, v{VL[j]} offset:{off+512}",
                f"ds_read_b64_tr_b16 {vr(wf+4,2)}, v7 offset:{off}",
                f"ds_read_b64_tr_b16 {vr(wf+6,2)}, v7 offset:{off+512}"]
    for t in range(32 + LA):
        p, j = t >> 2, t & 3
        rd = []
        if t < 32:
            if j == 0:
                if p < NX:
                    a(f"s_waitcnt vmcnt({4 * (NX - 1 - p) + 3})")
                if p == FILLP:
                    a("s_waitcnt vmcnt(0)")
                a("s_barrier")
                if p == 0: stamp(a, 1)
                if p == FILLP:
                    a.c("the compute waves drained their sentinel fills before this barrier: count this workgroup in d_debug")
                    a(f"""
                    s_cmp_lg_u32 s28, 0
                    s_cbranch_scc1 {name}_noinc
                    v_mov_b32 v4, 0
                    v_mov_b32 v5, 1
                    s_and_b32 s33, s2, {31 if DBG else 63}
                    s_lshl_b32 s33, s33, 2
                    {"s_add_u32 s33, s33, 64" if DBG else ""}
                    s_mov_b64 exec, 1
                    buffer_atomic_add v5, v4, s[20:23], s33 offen sc1
                    s_mov_b64 exec, -1
                    {name}_noinc:
                    """)
            pre, rd = reads(t)
            for o in pre: a(o)
        if t < LA:
            for o in rd: a(o)
            continue
        u = t - LA
        up, uj = u >> 2, u & 3
        a(f"s_waitcnt lgkmcnt({5 * (min(t - 1, 31) - u)})")
        wf = WF[u % (LA + 1)]; xf = XF[u]
        for i in range(2):
            c = "0" if u == 0 else vr(ACC[i], 16)
            a(f"v_mfma_f32_32x32x16_bf16 {vr(ACC[i],16)}, {vr(wf+4*i,4)}, {vr(xf,4)}, {c}")
            for o in rd[[0, 3][i]:[3, 5][i]]: a(o)
        if uj == 3:
            z = lambda cond, r: "0" if cond else vr(r, 4)
            for q in range(8):
                x2 = XF[4 * up] + 2 * q
                zz = (up == 0 and q < 2)
                a(f"v_mfma_f32_4x4x4_16b_bf16 {vr(SX[q&1],4)}, {vr(ONES,2)}, {vr(x2,2)}, {z(zz, SX[q&1])}")
                a(f"v_mfma_f32_4x4x4_16b_bf16 {vr(SXX[q&1],4)}, {vr(x2,2)}, {vr(x2,2)}, {z(zz, SXX[q&1])}")
                if q < 4:
                    i, hh = q % 2, q // 2
                    a(f"v_mfma_f32_4x4x4_16b_bf16 {vr(CS[i],4)}, {vr(ONES,2)}, {vr(wf+4*i+2*hh,2)}, {z(up == 0 and hh == 0, CS[i])}")
    stamp(a, 2)
    a.c("publish K/V colsum partials P[col][tile]; finish the row statistics (lane = token)")
    a(f"""
    v_permlane32_swap_b32 v{CS[0]}, v{CS[1]}
    s_nop 3
    v_add_f32 v{CS[0]}, v{CS[0]}, v{CS[1]}
    v_add_f32 v{SX[0]}, v{SX[0]}, v{SX[1]}
    ds_write_b32 v121, v{CS[0]} offset:{LDS_P-HI}
    v_pk_add_f32 {vr(SXX[0],2)}, {vr(SXX[0],2)}, {vr(SXX[1],2)}
    v_pk_add_f32 {vr(SXX[0]+2,2)}, {vr(SXX[0]+2,2)}, {vr(SXX[1]+2,2)}
    v_cndmask_b32 v{SXX[0]}, v{SXX[0]}, v{SXX[0]+1}, s[50:51]
    v_cndmask_b32 v{SXX[0]}, v{SXX[0]}, v{SXX[0]+2}, s[52:53]
    v_cndmask_b32 v{SXX[0]}, v{SXX[0]}, v{SXX[0]+3}, s[54:55]
    s_waitcnt lgkmcnt(0)
    s_barrier
    ds_read_b128 v[4:7], v127 offset:{LDS_P-HI}
    v_permlane32_swap_b32 v{SX[0]}, v{SXX[0]}
    v_mov_b64 v[8:9], 0
    v_add_f32 v{SX[0]}, v{SX[0]}, v{SXX[0]}
    v_mov_b32 v{SXX[0]}, v{SX[0]}
    v_mov_b64 v[10:11], 0
    v_mov_b64 v[12:13], 0
    v_permlane32_swap_b32 v{SX[0]}, v{SXX[0]}
    v_mov_b64 v[14:15], 0
    v_mul_f32 v{SX[0]}, {f32hex(1/512)}, v{SX[0]}
    v_mul_f32 v{SXX[0]}, {f32hex(1/512)}, v{SXX[0]}
    v_fma_f32 v{SXX[0]}, -v{SX[0]}, v{SX[0]}, v{SXX[0]}
    v_max_f32 v{SXX[0]}, 0, v{SXX[0]}
    v_add_f32 v{SXX[0]}, {f32hex(1e-5)}, v{SXX[0]}
    v_rsq_f32 v16, v{SXX[0]}
    s_waitcnt lgkmcnt(0)
    v_pk_add_f32 v[4:5], v[4:5], v[6:7]
    v_mul_f32 v17, v{SX[0]}, v16
    v_add_f32 v4, v4, v5
    v_sub_f32 v17, 0, v17
    ds_write_b32 v119, v4 offset:{LDS_CS-HI}
    """)
    CSB = 24; PK = 56
    for i in range(0, 16, 2):
        a(f"v_pk_mul_f32 {vr(ACC[1]+i,2)}, {vr(ACC[1]+i,2)}, v[16:17] op_sel_hi:[1,0]")
    a("s_waitcnt lgkmcnt(0)")
    for n in (1, 0):
        for g in range(4):
            a(f"ds_read_b128 {vr(CSB+16*n+4*g,4)}, v118 offset:{LDS_CS-HI+128*n+32*g}")
    for i in range(0, 16, 2):
        a(f"v_pk_mul_f32 {vr(ACC[0]+i,2)}, {vr(ACC[0]+i,2)}, v[16:17] op_sel_hi:[1,0]")
    def finish(acc, csb, ab, pk):
        for i in range(0, 16, 2):
            a(f"v_pk_fma_f32 {vr(acc+i,2)}, {vr(csb+i,2)}, {vr(ab,2)}, {vr(acc+i,2)} op_sel:[0,1,0] op_sel_hi:[1,1,1]")
        for i in range(8):
            a(f"v_cvt_pk_bf16_f32 v{pk+i}, v{acc+2*i}, v{acc+2*i+1}")
    def norm(acc, n):
        for i in range(0, 8, 2):
            a(f"v_pk_fma_f32 {vr(n,2)}, {vr(acc+i,2)}, {vr(acc+i,2)}, {vr(n,2)}")
            a(f"v_pk_fma_f32 {vr(n+2,2)}, {vr(acc+8+i,2)}, {vr(acc+8+i,2)}, {vr(n+2,2)}")
    a(f"""
    s_cmp_ge_u32 s57, 8
    s_cbranch_scc1 {name}_vt
    s_waitcnt lgkmcnt(4)
    """)
    finish(ACC[1], CSB + 16, 16, PK + 8)
    a(f"buffer_store_dwordx4 {vr(PK+8,4)}, v120, s[24:27], s48 offen sc1")
    a(f"buffer_store_dwordx4 {vr(PK+12,4)}, v120, s[24:27], s62 offen sc1")
    a("s_waitcnt lgkmcnt(0)")
    finish(ACC[0], CSB, 16, PK)
    a(f"buffer_store_dwordx4 {vr(PK,4)}, v120, s[24:27], s46 offen sc1")
    a(f"buffer_store_dwordx4 {vr(PK+4,4)}, v120, s[24:27], s47 offen sc1")
    norm(ACC[0], 8)
    a(f"s_branch {name}_q")
    a.label(f"{name}_vt")
    a.c("V tiles: transpose through LDS (wave-private scratch) into [head][tile][c][h][m][8 keys]")
    a("s_waitcnt lgkmcnt(4)")
    finish(ACC[1], CSB + 16, 16, PK + 8)
    for g in range(4):
        a(f"ds_write_b64 v124, {vr(PK+8+2*g,2)} offset:{2304+16*g}")
    a("s_waitcnt lgkmcnt(4)")
    for i in range(0, 16, 2):
        a(f"v_pk_fma_f32 {vr(ACC[0]+i,2)}, {vr(CSB+i,2)}, v[16:17], {vr(ACC[0]+i,2)} op_sel:[0,1,0] op_sel_hi:[1,1,1]")
    for c in range(2):
        a(f"ds_read_b64_tr_b16 {vr(CSB+16+4*c,2)}, v125 offset:{2304+c*16*72}")
        a(f"ds_read_b64_tr_b16 {vr(CSB+16+4*c+2,2)}, v125 offset:{2304+c*16*72+4*72}")
    for i in range(8):
        a(f"v_cvt_pk_bf16_f32 v{PK+i}, v{ACC[0]+2*i}, v{ACC[0]+2*i+1}")
    for g in range(4):
        a(f"ds_write_b64 v124, {vr(PK+2*g,2)} offset:{16*g}")
    for c in range(2):
        a(f"ds_read_b64_tr_b16 {vr(CSB+24+4*c,2)}, v125 offset:{c*16*72}")
        a(f"ds_read_b64_tr_b16 {vr(CSB+24+4*c+2,2)}, v125 offset:{c*16*72+4*72}")
    a("s_waitcnt lgkmcnt(8)")
    a(f"buffer_store_dwordx4 {vr(CSB+16,4)}, v126, s[24:27], s48 offen sc1")
    a(f"buffer_store_dwordx4 {vr(CSB+20,4)}, v126, s[24:27], s48 offen offset:512 sc1")
    norm(ACC[0], 8)
    a("s_waitcnt lgkmcnt(0)")
    a(f"buffer_store_dwordx4 {vr(CSB+24,4)}, v126, s[24:27], s46 offen sc1")
    a(f"buffer_store_dwordx4 {vr(CSB+28,4)}, v126, s[24:27], s46 offen offset:512 sc1")
    a.label(f"{name}_q")
    QF = [24, 28, 32, 36]
    AQ = ACC[0]
    def qread(t):
        p, j = t >> 2, t & 3
        a(f"ds_read_b64_tr_b16 {vr(QF[t&3],2)}, v{108+j} offset:{p*4096}")
        a(f"ds_read_b64_tr_b16 {vr(QF[t&3]+2,2)}, v{108+j} offset:{p*4096+256}")
    for t in range(3): qread(t)
    fill = []
    for i in range(0, 8, 2):
        fill.append(f"v_pk_fma_f32 v[12:13], {vr(ACC[1]+i,2)}, {vr(ACC[1]+i,2)}, v[12:13]")
        fill.append(f"v_pk_fma_f32 v[14:15], {vr(ACC[1]+8+i,2)}, {vr(ACC[1]+8+i,2)}, v[14:15]")
    fill += ["v_add_f32 v8, v8, v9", "v_add_f32 v10, v10, v11", "v_add_f32 v12, v12, v13", "v_add_f32 v14, v14, v15", "s_nop 0", "s_nop 0",
             "v_permlane32_swap_b32 v8, v10", "v_permlane32_swap_b32 v12, v14", "s_nop 0", "v_add_f32 v8, v8, v10", "v_add_f32 v12, v12, v14", "s_nop 0"]
    for dpp in DPP_MAX:
        fill += [f"v_max_u32_dpp v8, v8, v8 {dpp}", f"v_max_u32_dpp v12, v12, v12 {dpp}", "s_nop 0"]
    extra = 0
    for t in range(32):
        if t + 3 < 32: qread(t + 3)
        a(f"s_waitcnt lgkmcnt({2 * (min(t + 3, 31) - t) + extra})")
        extra = 0
        a(f"v_mfma_f32_32x32x16_bf16 {vr(AQ,16)}, {vr(QF[t&3],4)}, {vr(XF[t],4)}, {'0' if t == 0 else vr(AQ,16)}")
        for _ in range(3):
            if fill: a(fill.pop(0))
        if t == JSTEP - 2:
            assert not fill
            a(f"""
            s_mov_b64 exec, s[60:61]
            ds_write_b32 v122, v8 offset:{LDS_NR-HI}
            ds_write_b32 v122, v12 offset:{LDS_NR-HI+16}
            s_mov_b64 exec, -1
            """)
        if t == JSTEP:
            a.c("barrier J: K/V stores drained, norms in LDS -> wave 4 publishes")
            a("s_waitcnt vmcnt(0) lgkmcnt(0)")
            a("s_barrier")
            stamp(a, 3)
            a(f"ds_read_b128 v[4:7], v123 offset:{LDS_P-HI+1024}")
        if t == JSTEP + 3:
            a(f"""
            v_pk_add_f32 v[4:5], v[4:5], v[6:7]
            v_mul_f32 v16, {f32hex(QSCALE)}, v16
            v_add_f32 v4, v4, v5
            v_mul_f32 v17, {f32hex(QSCALE)}, v17
            ds_write_b32 v119, v4 offset:{LDS_CS-HI}
            v_mov_b64 v[8:9], 0
            v_mov_b64 v[10:11], 0
            """)
        if t == JSTEP + 8:
            for g in range(4):
                a(f"ds_read_b128 {vr(ACC[1]+4*g,4)}, v118 offset:{LDS_CS-HI+32*g}")
    a("s_nop 11")
    a("s_waitcnt lgkmcnt(0)")
    for i in range(0, 16, 2):
        a(f"v_pk_mul_f32 {vr(AQ+i,2)}, {vr(AQ+i,2)}, v[16:17] op_sel_hi:[1,0]")
    finish(AQ, ACC[1], 16, PK)
    a(f"ds_write_b128 v112, {vr(PK,4)} offset:{LDS_Q}")
    a(f"ds_write_b128 v112, {vr(PK+4,4)} offset:{LDS_Q+4096}")
    norm(AQ, 8)
    a(f"""
    v_add_f32 v8, v8, v9
    v_add_f32 v10, v10, v11
    s_nop 1
    v_permlane32_swap_b32 v8, v10
    s_nop 0
    v_add_f32 v8, v8, v10
    s_nop 1
    """)
    for dpp in DPP_MAX:
        a(f"v_max_u32_dpp v8, v8, v8 {dpp}")
        a("s_nop 1")
    a(f"""
    s_mov_b64 exec, s[60:61]
    ds_write_b32 v122, v8 offset:{LDS_NR-HI+32}
    s_mov_b64 exec, -1
    {name}_P2:
    """)
```

```python
from asmlib import *
from layout import *
from k1 import LDS_NR as K1_NR, LDS_Q

LDS_WO = 65536
LDS_ST = LDS_WO + 65536
LDS_FF = LDS_ST + 4096
LDS_WD = LDS_FF + 1024
LDS_GU = LDS_WD + 8192
KB_LDS = LDS_GU + 16384
LOG2E = 1.4426950408889634
SPIN = 200000
import os
EXP = os.environ.get('EXP', '')
OD = int(os.environ.get('OD', '0'))
AD = int(os.environ.get('AD', '10'))
BD = int(os.environ.get('BD', '22'))
CD = int(os.environ.get('CD', '8'))
ND = int(os.environ.get('ND', '0'))
PSC = os.environ.get('PSC', 'sc1')
BL = int(os.environ.get('BL', '2'))
OSC = os.environ.get('OSC', '')
GUS = int(os.environ.get('GUS', '1'))
GUK = eval(os.environ.get('GUK', '(4, 14)'))

def rnd_bf16(a, d, s):
    a(f"v_cvt_pk_bf16_f32 v{d}, v{s}, v{s}")
    a(f"v_and_b32 v{d}, 0xffff0000, v{d}")

def gen_kb(a, name):
    S = [16, 32, 48, 64]
    O = [80, 96, 112, 128]
    Q = [144, 148, 152, 156]
    KB = [160, 164, 168, 172]
    VB = [176, 184, 192, 200]
    IDX = 208
    MX = [209, 210, 211, 212]
    XR = 216; WR = 220; GW = 224; UW = 228; WD = 232; WRF = 240
    VWO = 213; VXO = 214; VGU = 215; VT2 = 244; VCG = 245
    VKQ = 4; VV = 5; LANE = 2; L31 = 3; HALF = 6; L16 = 7
    a(f"""
    s_load_dwordx2 s[4:5], s[0:1], 0
    s_load_dwordx2 s[6:7], s[0:1], 16
    s_load_dwordx4 s[8:11], s[0:1], 32
    s_load_dwordx4 s[12:15], s[0:1], 48
    s_load_dwordx2 s[16:17], s[0:1], 64
    s_setprio 3
    s_lshl_b32 s31, s29, 2
    s_lshr_b32 s33, s30, 3
    s_add_u32 s31, s31, s33
    s_and_b32 s32, s30, 7
    v_and_b32 v{L31}, 31, v{LANE}
    v_lshrrev_b32 v{HALF}, 5, v{LANE}
    v_lshlrev_b32 v{VKQ}, 5, v{L31}
    v_lshl_add_u32 v{VKQ}, v{HALF}, 4, v{VKQ}
    v_and_b32 v{VV}, 15, v{LANE}
    v_lshlrev_b32 v{VV}, 4, v{VV}
    v_lshl_add_u32 v{VV}, v{HALF}, 8, v{VV}
    v_lshlrev_b32 v{L16}, 4, v{LANE}
    s_and_b32 s34, s28, 1
    s_lshr_b32 s35, s28, 1
    """)
    a.c("s28=wave s56=mb s57=head pair s34=head sel (later token tile) s35=kq ; s31=row block s32=column block of the projection phase")
    a(f"""
    s_lshl_b32 s40, s57, 1
    s_add_u32 s40, s40, s34
    s_lshl_b32 s40, s40, 16
    s_lshl_b32 s33, s56, 12
    s_add_u32 s41, s40, s33
    s_lshl_b32 s33, s35, 14
    s_add_u32 s42, s40, s33
    s_add_u32 s43, s42, {WS_V:#x}
    s_add_u32 s42, s42, {WS_K:#x}
    s_lshl_b32 s45, s56, 10
    s_lshr_b32 s44, s57, 1
    s_lshl_b32 s44, s44, 11
    s_and_b32 s33, s57, 1
    s_lshl_b32 s33, s33, 4
    s_add_u32 s44, s44, s33
    s_add_u32 s44, s44, {WS_NRM:#x}
    s_mov_b32 s46, 0x0000ffff
    s_mov_b32 s47, 0x0000ffff
    s_mov_b32 s23, 0x00020000
    v_and_b32 v8, 27, v{LANE}
    v_mov_b32 v9, 0x3f803f80
    v_cmp_eq_u32 vcc, 16, v8
    v_mov_b32 v{IDX}, 0xdddddddd
    s_nop 0
    v_cndmask_b32 v8, 0, v9, vcc
    v_cndmask_b32 v9, 0, v9, vcc
    """)
    for b in range(4):
        for r in range(0, 8, 2):
            a(f"v_mov_b64 {vr(VB[b]+r,2)}, v[8:9]")
    outst = []
    def vm(tag): outst.append(tag)
    def wait_for(tag):
        idx = max(i for i, t in enumerate(outst) if t == tag)
        n = len(outst) - 1 - idx
        a(f"s_waitcnt vmcnt({n})")
        del outst[:idx + 1]
    def kv_load(b, tag=None, mid=()):
        a("s_add_u32 s48, s42, s45")
        a("s_add_u32 s49, s43, s45")
        a(f"buffer_load_dwordx4 {vr(KB[b],4)}, v{VKQ}, s[24:27], s48 offen sc1")
        if tag is not None: vm("k" + tag)
        for (ins, tg) in mid:
            a(ins); vm(tg)
        a("s_mov_b64 exec, s[46:47]")
        a(f"buffer_load_dwordx4 {vr(VB[b],4)}, v{VV}, s[24:27], s49 offen sc1")
        a(f"buffer_load_dwordx4 {vr(VB[b]+4,4)}, v{VV}, s[24:27], s49 offen offset:512 sc1")
        a("s_mov_b64 exec, -1")
        a("s_add_u32 s45, s45, 1024")
        a("s_and_b32 s45, s45, 0x3fff")
        if tag is not None:
            for _ in range(2): vm(tag)
    for qt in range(4):
        for r in range(0, 16, 2):
            a(f"v_mov_b64 {vr(O[qt]+r,2)}, 0")
    a.c("addresses for the side loads (operands of the later phases, fetched under the attention loop)")
    a(f"""
    v_lshrrev_b32 v12, 3, v{LANE}
    v_lshlrev_b32 v{VWO}, 10, v12
    v_and_b32 v12, 7, v{LANE}
    v_bfe_u32 v13, v{LANE}, 4, 1
    v_lshlrev_b32 v13, 2, v13
    v_xor_b32 v12, v12, v13
    v_lshl_add_u32 v{VWO}, v12, 4, v{VWO}
    v_and_b32 v12, 7, v{LANE}
    v_lshlrev_b32 v{VXO}, 10, v12
    v_lshrrev_b32 v12, 3, v{LANE}
    v_lshlrev_b32 v{VCG}, 4, v12
    v_add_u32 v{VXO}, v{VCG}, v{VXO}
    v_lshlrev_b32 v{VT2}, 1, v0
    v_mul_u32_u24 v{VGU}, 3584, v0
    s_mul_i32 s60, s29, 28
    s_add_u32 s60, s60, s30
    s_lshl_b32 s61, s28, 16
    s_lshl_b32 s33, s32, 7
    s_add_u32 s61, s61, s33
    s_lshl_b32 s62, s28, 13
    s_add_u32 s62, s62, {LDS_WO}
    s_lshl_b32 s63, s32, 7
    s_lshl_b32 s64, s31, 16
    s_lshl_b32 s33, s34, 15
    s_add_u32 s64, s64, s33
    s_lshl_b32 s33, s35, 13
    s_add_u32 s64, s64, s33
    s_add_u32 s64, s64, s63
    s_cmp_lt_u32 s30, 28
    s_cselect_b32 s65, {512*1792*2:#x}, 0
    """)
    a.c("s60=ffn slice j, s61=Wo global off, s62=Wo lds off, s63=col byte off of this wave's 8-col piece, s64=x/out off, s65=ffn weight bytes (0: none)")
    def side_ops():
        ops = []
        def tsrd(p, nbytes):
            return f"s_mov_b32 s20, s{p}\ns_and_b32 s21, s{p+1}, 0xffff\ns_mov_b32 s22, {nbytes}\n"
        for i in range(8):
            ops.append(tsrd(6, hex(512*512*2)) + f"s_add_u32 m0, s62, {i*1024}\ns_add_u32 s33, s61, {i*8192}\nbuffer_load_dwordx4 v{VWO}, s[20:23], s33 offen lds")
        ops.append(tsrd(4, hex(2048*512*2)) + f"buffer_load_dwordx4 {vr(XR,4)}, v{VXO}, s[20:23], s64 offen")
        ops.append(tsrd(8, 1024) + f"buffer_load_dwordx4 {vr(WR,4)}, v{VCG}, s[20:23], s63 offen")
        ops.append(tsrd(8, 1024) + f"buffer_load_dwordx4 {vr(WRF,4)}, v{L16}, s[20:23], 0 offen")
        ops.append(tsrd(14, "s65") + f"s_lshl_b32 s33, s28, 10\ns_add_u32 m0, s33, {LDS_WD}\ns_lshl_b32 s50, s60, 13\ns_add_u32 s33, s33, s50\nbuffer_load_dwordx4 v{L16}, s[20:23], s33 offen lds")
        return ops
    def gu_op(m):
        return (f"s_mov_b32 s20, s{10+2*m}\ns_and_b32 s21, s{11+2*m}, 0xffff\ns_mov_b32 s22, s65\n"
                f"s_lshl_b32 s33, s28, 10\ns_add_u32 m0, s33, {LDS_GU + m*8192}\ns_lshl_b32 s33, s60, 4\nbuffer_load_dwordx4 v{VGU}, s[20:23], s33 offen lds")
    a.c("wave 4 waits for the 16 producer records of this head pair (K/V written) and leaves max|k|^2, max|v|^2 in LDS")
    a(f"""
    s_cmp_lg_u32 s28, 4
    s_cbranch_scc1 {name}_K
    v_bfe_u32 v8, v{LANE}, 4, 1
    v_lshlrev_b32 v8, 14, v8
    v_and_b32 v9, 15, v{LANE}
    v_lshl_add_u32 v12, v9, 7, v8
    s_mov_b32 s53, 0
    {('s_sleep %d' % ND) if ND else ''}
    {name}_npoll:
    buffer_load_dwordx4 v[8:11], v12, s[24:27], s44 offen sc1
    s_add_u32 s53, s53, 1
    s_waitcnt vmcnt(0)
    v_cmp_eq_u32 vcc, -1, v8
    s_cmp_gt_u32 s53, {SPIN}
    s_cbranch_scc1 {name}_ndone
    s_cbranch_vccnz {name}_npoll
    {name}_ndone:
    v_max_u32 v8, v8, v9
    v_max3_u32 v8, v8, v10, v11
    v_lshrrev_b32 v9, 4, v{LANE}
    v_lshlrev_b32 v9, 2, v9
    """)
    for ror in (8, 4, 2, 1):
        a(f"v_max_u32_dpp v8, v8, v8 row_ror:{ror} row_mask:0xf bank_mask:0xf")
        a("s_nop 1")
    a(f"""
    v_add_u32 v9, {K1_NR+48:#x}, v9
    ds_write_b32 v9, v8
    {name}_K:
    s_lshl_b32 s33, s34, 12
    v_add_u32 v12, s33, v{L16}
    v_mov_b32 v13, {K1_NR+32:#x}
    s_waitcnt lgkmcnt(0)
    s_barrier
    """)
    for _ in range(int(os.environ.get("PRESLEEP", "0"))): a("s_sleep 32")
    stamp(a, 4)
    kv_load(0, "kv0")
    a(f"ds_read_b128 v[8:11], v13")
    a(f"ds_read_b64 v[14:15], v13 offset:16")
    for qt in range(4):
        a(f"ds_read_b128 {vr(Q[qt],4)}, v12 offset:{LDS_Q+qt*1024}")
    for b in range(1, 3):
        kv_load(b, f"kv{b}")
    a.c("softmax path: zero stand-in iff max|q|^2*max|k|^2 <= 50^2 and max|v|^2 <= 2^120, else the true-max path")
    a(f"""
    s_waitcnt lgkmcnt(0)
    v_max_u32 v8, v8, v9
    v_max3_u32 v8, v8, v10, v11
    v_mul_f32 v8, v8, v14
    v_readfirstlane_b32 s51, v15
    v_readfirstlane_b32 s50, v8
    s_nop 3
    s_cmp_gt_u32 s50, {f32hex(2500.0)}
    s_cbranch_scc1 {name}_slow
    s_cmp_gt_u32 s51, {f32hex(2.0**120)}
    s_cbranch_scc1 {name}_slow
    """)
    wait_for("kkv0")
    a(f"v_mfma_f32_32x32x16_bf16 {vr(S[0],16)}, {vr(KB[0],4)}, {vr(Q[0],4)}, 0")
    stamp(a, 5)
    a("s_setprio 2")
    a("s_nop 10")
    sides = side_ops()
    if "sidefirst" in EXP: pass
    late_all = []
    if "sidelast" in EXP:
        late_all = sides; sides = []
    for kt in range(16):
        kb = kt & 3
        if "noprio" not in EXP:
            if kt == 5: a("s_setprio 1")
            if kt == 11: a("s_setprio 0")
        for qt in range(4):
            t = kt * 4 + qt
            nq = (qt + 1) & 3; nkt = kt if qt < 3 else kt + 1
            pq = (qt - 1) & 3; pkt = kt if qt > 0 else kt - 1
            if t < 63:
                if qt == 3:
                    wait_for(f"kv{nkt}")
                if t == 1:
                    wait_for("kv0")
                a(f"v_mfma_f32_32x32x16_bf16 {vr(S[nq],16)}, {vr(KB[nkt&3],4)}, {vr(Q[nq],4)}, 0")
            for i in range(16):
                if t > 0 and i == 5:
                    a(f"v_smfmac_f32_32x32x32_bf16 {vr(O[pq],16)}, {vr(VB[pkt&3],4)}, {vr(S[pq],8)}, v{IDX}")
                if t > 0 and i == 10:
                    a(f"v_smfmac_f32_32x32x32_bf16 {vr(O[pq],16)}, {vr(VB[pkt&3]+4,4)}, {vr(S[pq]+8,8)}, v{IDX}")
                a(f"v_exp_f32 v{S[qt]+i}, v{S[qt]+i}")
            if qt == 0 and kt + 3 < 16:
                kv_load((kt + 3) & 3, f"kv{kt+3}")
            if qt in (1, 2) and kt >= 1 and sides:
                a(sides.pop(0)); vm("side")
            G0, U0 = GUK
            for m, base in ((0, G0), (1, U0)):
                slot = 2 * kt + (qt >> 1) - base
                if qt in (0, 2) and slot % GUS == 0 and 0 <= slot // GUS < 8:
                    w = slot // GUS
                    w = (w >> 1) + 4 * (w & 1)
                    a(f"s_cmp_lg_u32 s28, {w}\ns_cbranch_scc1 {name}_gu{m}_{w}")
                    a(gu_op(m))
                    a.label(f"{name}_gu{m}_{w}")
    assert not sides
    a(f"""
    s_nop 1
    v_smfmac_f32_32x32x32_bf16 {vr(O[3],16)}, {vr(VB[3],4)}, {vr(S[3],8)}, v{IDX}
    v_smfmac_f32_32x32x32_bf16 {vr(O[3],16)}, {vr(VB[3]+4,4)}, {vr(S[3]+8,8)}, v{IDX}
    """)
    a.label(f"{name}_combine")
    a.c("combine the 4 key-quarter partials through LDS; wave (qg,kq) finalises q-tile kq")
    a(f"""
    s_mul_i32 s53, s34, {4*3*2304}
    v_lshlrev_b32 v8, 2, v{LANE}
    s_nop 7
    """)
    for d in range(4):
        a(f"""
        s_cmp_eq_u32 s35, {d}
        s_cbranch_scc1 {name}_w{d}
        s_cmp_gt_u32 s35, {d}
        s_cselect_b32 s54, 1, 0
        s_sub_u32 s54, s35, s54
        s_mul_i32 s54, s54, 2304
        s_add_u32 s54, s54, s53
        v_add_u32 v9, s54, v{L16}
        v_add_u32 v10, s54, v8
        ds_write_b128 v9, {vr(O[d],4)} offset:{d*3*2304}
        ds_write_b128 v9, {vr(O[d]+4,4)} offset:{d*3*2304+1024}
        ds_write_b32 v10, v{O[d]+8} offset:{d*3*2304+2048}
        s_branch {name}_x{d}
        {name}_w{d}:
        """)
        for r in range(0, 8, 2):
            a(f"v_mov_b64 {vr(S[0]+r,2)}, {vr(O[d]+r,2)}")
        a(f"v_mov_b32 v{S[0]+8}, v{O[d]+8}")
        a.label(f"{name}_x{d}")
    a(f"""
    s_mul_i32 s54, s35, {3*2304}
    s_add_u32 s54, s54, s53
    v_add_u32 v9, s54, v{L16}
    v_add_u32 v10, s54, v8
    s_waitcnt vmcnt(0) lgkmcnt(0)
    s_barrier
    """)
    for si in range(3):
        b = 32 + 12 * si
        a(f"ds_read_b128 {vr(b,4)}, v9 offset:{si*2304}")
        a(f"ds_read_b128 {vr(b+4,4)}, v9 offset:{si*2304+1024}")
        a(f"ds_read_b32 v{b+8}, v10 offset:{si*2304+2048}")
    a(f"""
    s_lshl_b32 s33, s35, 10
    s_add_u32 s41, s41, s33
    s_add_u32 s41, s41, {WS_O:#x}
    """)
    for si in range(3):
        b = 32 + 12 * si
        a(f"s_waitcnt lgkmcnt({6-3*si})")
        for r in range(0, 8, 2):
            a(f"v_pk_add_f32 {vr(S[0]+r,2)}, {vr(S[0]+r,2)}, {vr(b+r,2)}")
        a(f"v_add_f32 v{S[0]+8}, v{S[0]+8}, v{b+8}")
    a(f"v_rcp_f32 v{S[0]+8}, v{S[0]+8}")
    a("s_nop 0")
    for r in range(0, 8, 2):
        a(f"v_pk_mul_f32 {vr(S[0]+r,2)}, {vr(S[0]+r,2)}, {vr(S[0]+8,2)} op_sel_hi:[1,0]")
    for r in range(4):
        a(f"v_cvt_pk_bf16_f32 v{12+r}, v{S[0]+2*r}, v{S[0]+2*r+1}")
    a(f"buffer_store_dwordx4 v[12:15], v{VKQ}, s[24:27], s41 offen sc1")
    stamp(a, 6)
    BF = 16
    AF = 96
    AC = [48, 64]
    a.c("==== out projection: wave (tt,kq): tokens 32tt.., heads 8kq..8kq+7, 64 columns")
    a(f"""
    s_lshl_b32 s40, s35, 19
    s_lshl_b32 s33, s31, 11
    s_add_u32 s40, s40, s33
    s_lshl_b32 s33, s34, 10
    s_add_u32 s40, s40, s33
    s_add_u32 s40, s40, {WS_O:#x}
    s_mov_b32 s52, 0xff
    s_mov_b32 s53, 0
    s_barrier
    """)
    def o_issue():
        for f in range(8):
            a(f"""
            s_bitcmp1_b32 s52, {f}
            s_cbranch_scc0 {name}_oi{f}_{o_issue.n}
            s_add_u32 s33, s40, {f*65536}
            buffer_load_dwordx4 {vr(BF+4*f,4)}, v{VKQ}, s[24:27], s33 offen sc1
            {name}_oi{f}_{o_issue.n}:
            """)
        o_issue.n += 1
    o_issue.n = 0
    def o_first():
        if OD: a(f"s_sleep {OD}")
        for f in range(8):
            a(f"s_add_u32 s33, s40, {f*65536}")
            a(f"buffer_load_dwordx4 {vr(BF+4*f,4)}, v{VKQ}, s[24:27], s33 offen sc1")
    if "oearly" in EXP: o_first()
    a.c("Wo fragments from LDS (transposing reads, 4-column chunks permuted so a lane ends with 16 consecutive columns)")
    a(f"""
    v_bfe_u32 v8, v{LANE}, 2, 2
    v_lshlrev_b32 v9, 10, v{HALF}
    v_lshl_add_u32 v9, v8, 7, v9
    v_bfe_u32 v8, v{LANE}, 3, 1
    v_lshl_add_u32 v9, v8, 6, v9
    v_and_b32 v8, 1, v{LANE}
    v_lshl_add_u32 v9, v8, 5, v9
    v_bfe_u32 v8, v{LANE}, 4, 1
    v_lshl_add_u32 v9, v8, 4, v9
    v_bfe_u32 v8, v{LANE}, 1, 1
    v_lshl_add_u32 v9, v8, 3, v9
    s_lshl_b32 s33, s35, 14
    s_add_u32 s33, s33, {LDS_WO}
    v_add_u32 v9, s33, v9
    v_xor_b32 v10, 64, v9
    """)
    for ks in range(8):
        for ct in range(2):
            r = AF + 4 * (ks * 2 + ct)
            a(f"ds_read_b64_tr_b16 {vr(r,2)}, v{9+ct} offset:{ks*2048}")
            a(f"ds_read_b64_tr_b16 {vr(r+2,2)}, v{9+ct} offset:{ks*2048+512}")
    a.c("sum of w_r, unpack x and w_down while waiting")
    a(f"""
    v_mov_b32 v14, 0x3f803f80
    s_mov_b32 s66, 0xffff0000
    v_dot2_f32_bf16 v15, v{WRF}, v14, 0
    v_dot2_f32_bf16 v15, v{WRF+1}, v14, v15
    v_dot2_f32_bf16 v15, v{WRF+2}, v14, v15
    v_dot2_f32_bf16 v15, v{WRF+3}, v14, v15
    """)
    XU = 160
    for i in range(4):
        a(f"v_lshlrev_b32 v{XU+2*i}, 16, v{XR+i}")
        a(f"v_and_b32 v{XU+2*i+1}, s66, v{XR+i}")
    a(f"v_add_u32 v8, {LDS_WD}, v{VT2}")
    a(f"""
    v_lshrrev_b32 v11, 4, v{LANE}
    v_lshlrev_b32 v11, 7, v11
    v_bfe_u32 v12, v{LANE}, 2, 2
    v_lshl_add_u32 v11, v12, 4, v11
    v_bfe_u32 v12, v{LANE}, 1, 1
    v_lshl_add_u32 v11, v12, 13, v11
    v_and_b32 v12, 1, v{LANE}
    v_lshl_add_u32 v11, v12, 3, v11
    s_lshl_b32 s33, s28, 10
    s_add_u32 s33, s33, {LDS_GU}
    v_add_u32 v11, s33, v11
    """)
    for n, ror in enumerate((8, 4, 2, 1)):
        a(f"v_add_f32_dpp v15, v15, v15 row_ror:{ror} row_mask:0xf bank_mask:0xf")
        a(f"ds_read_u16 v{WD+2*n}, v8 offset:{2*n*1024}")
        a(f"ds_read_u16 v{WD+2*n+1}, v8 offset:{(2*n+1)*1024}")
    for m in range(2):
        a(f"ds_read_b64_tr_b16 {vr(GW+4*m,2)}, v11 offset:{m*512}")
        a(f"ds_read_b64_tr_b16 {vr(GW+4*m+2,2)}, v11 offset:{m*512+64}")
    a(f"""
    v_readlane_b32 s50, v15, 0
    v_readlane_b32 s51, v15, 16
    v_readlane_b32 s54, v15, 32
    v_readlane_b32 s55, v15, 48
    v_mov_b32 v15, s50
    v_add_f32 v15, s51, v15
    v_add_f32 v15, s54, v15
    v_add_f32 v15, s55, v15
""")
    for ct in range(2):
        for r in range(0, 16, 2):
            a(f"v_mov_b64 {vr(AC[ct]+r,2)}, 0")
    a("s_waitcnt lgkmcnt(0)")
    for f in range(8):
        a(f"v_lshlrev_b32 v{WD+f}, 16, v{WD+f}")
    if "oearly" not in EXP: o_first()
    a(f"""
    {name}_opoll:
    s_waitcnt vmcnt(0)
    """)
    for f in range(8):
        a(f"""
        s_bitcmp1_b32 s52, {f}
        s_cbranch_scc0 {name}_oc{f}
        v_cmp_eq_u32 vcc, -1, v{BF+4*f}
        s_cbranch_vccnz {name}_or{f}
        {name}_om{f}:
        s_bitset0_b32 s52, {f}
        v_mfma_f32_32x32x16_bf16 {vr(AC[0],16)}, {vr(AF+8*f,4)}, {vr(BF+4*f,4)}, {vr(AC[0],16)}
        v_mfma_f32_32x32x16_bf16 {vr(AC[1],16)}, {vr(AF+8*f+4,4)}, {vr(BF+4*f,4)}, {vr(AC[1],16)}
        s_branch {name}_oc{f}
        {name}_or{f}:
        s_cmp_gt_u32 s53, {SPIN}
        s_cbranch_scc1 {name}_om{f}
        s_add_u32 s33, s40, {f*65536}
        buffer_load_dwordx4 {vr(BF+4*f,4)}, v{VKQ}, s[24:27], s33 offen sc1
        {name}_oc{f}:
        """)
    a(f"""
    s_add_u32 s53, s53, 1
    s_cmp_lg_u32 s52, 0
    s_cbranch_scc1 {name}_opoll
    """)
    stamp(a, 7)
    a.c("split-K reduction: every wave stores its 32x64 partial; wave kq then owns tokens 8kq..8kq+7, lane -> (token l&7, 8-column group l>>3)")
    a(f"""
    s_lshl_b32 s53, s28, 13
    v_add_u32 v9, s53, v{L16}
    v_and_b32 v10, 7, v{LANE}
    s_lshl_b32 s33, s35, 3
    v_add_u32 v10, s33, v10
    v_bfe_u32 v11, v{LANE}, 4, 1
    v_lshl_add_u32 v10, v11, 5, v10
    v_lshlrev_b32 v10, 4, v10
    v_bfe_u32 v11, v{LANE}, 3, 1
    v_lshl_add_u32 v10, v11, 11, v10
    v_lshl_add_u32 v10, v{HALF}, 12, v10
    s_lshl_b32 s33, s34, 13
    v_add_u32 v10, s33, v10
    """)
    for g in range(8):
        a(f"ds_write_b128 v9, {vr(AC[0]+4*g,4)} offset:{g*1024}")
    a(f"""
    s_lshl_b32 s40, s31, 13
    s_add_u32 s40, s40, {WS_PST:#x}
    s_lshl_b32 s33, s34, 9
    s_add_u32 s40, s40, s33
    s_lshl_b32 s33, s35, 7
    s_add_u32 s40, s40, s33
    s_lshl_b32 s33, s32, 10
    s_add_u32 s41, s40, s33
    s_waitcnt lgkmcnt(0)
    s_barrier
    """)
    for si in range(4):
        a(f"ds_read_b128 {vr(16+8*si,4)}, v10 offset:{si*16384}")
        a(f"ds_read_b128 {vr(20+8*si,4)}, v10 offset:{si*16384+1024}")
    R = XU
    for si in range(4):
        a(f"s_waitcnt lgkmcnt({6-2*si})")
        for r in range(0, 8, 2):
            a(f"v_pk_add_f32 {vr(R+r,2)}, {vr(R+r,2)}, {vr(16+8*si+r,2)}")
    H = 48
    for i in range(4):
        a(f"v_cvt_pk_bf16_f32 v{H+i}, v{R+2*i}, v{R+2*i+1}")
    for i in range(4):
        z = lambda r: "0" if i == 0 else f"v{r}"
        a(f"v_dot2_f32_bf16 v52, v{H+i}, v14, {z(52)}")
        a(f"v_dot2_f32_bf16 v53, v{H+i}, v{H+i}, {z(53)}")
        a(f"v_dot2_f32_bf16 v54, v{H+i}, v{WR+i}, {z(54)}")
    HU = 56
    def red3(x, y, z, fill):
        t = [80, 81, 82]
        f = lambda: a(fill.pop(0)) if fill else a("s_nop 0")
        for r in (x, y, z):
            a(f"v_add_f32_dpp v{r}, v{r}, v{r} row_ror:8 row_mask:0xf bank_mask:0xf")
        for op in ("v_permlane16_swap_b32", "v_permlane32_swap_b32"):
            for r, tt in zip((x, y, z), t):
                a(f"v_mov_b32 v{tt}, v{r}")
            for r, tt in zip((x, y, z), t):
                a(f"{op} v{r}, v{tt}")
            for r, tt in zip((x, y, z), t):
                a(f"v_add_f32 v{r}, v{r}, v{tt}")
    for i in range(2):
        a(f"v_lshlrev_b32 v{HU+2*i}, 16, v{H+i}")
        a(f"v_and_b32 v{HU+2*i+1}, s66, v{H+i}")
    a("v_mov_b32 v55, 0")
    red3(52, 53, 54, [])
    a(f"""
    s_mov_b64 exec, 0xff
    buffer_store_dwordx4 v[52:55], v{L16}, s[24:27], s41 offen sc1
    s_mov_b64 exec, -1
    """)
    stamp(a, 8)
    for i in range(2, 4):
        a(f"v_lshlrev_b32 v{HU+2*i}, 16, v{H+i}")
        a(f"v_and_b32 v{HU+2*i+1}, s66, v{H+i}")
    a.c("==== hop A: lane (token l&7, column block l>>3) gathers one partial record")
    a(f"""
    v_and_b32 v9, 7, v{LANE}
    v_lshlrev_b32 v11, 4, v9
    v_lshl_add_u32 v11, v{VCG}, 6, v11
    s_mov_b32 s53, 0
    s_mov_b32 s48, {f32hex(1/512)}
    s_mov_b32 s49, {f32hex(1e-5)}
    s_lshl_b32 s33, s31, 6
    s_lshl_b32 s54, s34, 5
    s_add_u32 s33, s33, s54
    s_lshl_b32 s54, s35, 3
    s_add_u32 s33, s33, s54
    s_sub_u32 s33, 2047, s33
    v_sub_u32 v28, s33, v9
    s_mov_b32 s56, s16
    s_and_b32 s57, s17, 0xffff
    s_mov_b32 s58, {2048*512*2:#x}
    s_mov_b32 s59, 0x00020000
    {('s_sleep %d' % AD) if AD else ''}
    {name}_apoll:
    buffer_load_dwordx4 v[24:27], v11, s[24:27], s40 offen {PSC}
    s_add_u32 s53, s53, 1
    s_waitcnt vmcnt(0)
    v_cmp_ne_u32 vcc, 0, v27
    s_cmp_gt_u32 s53, {SPIN}
    s_cbranch_scc1 {name}_adone
    s_cbranch_vccnz {name}_apoll
    {name}_adone:
    """)
    red3(24, 25, 26, [])
    a(f"""
    v_mul_f32 v24, s48, v24
    v_mul_f32 v25, s48, v25
    v_fma_f32 v25, -v24, v24, v25
    v_fma_f32 v26, -v24, v15, v26
    v_max_f32 v25, 0, v25
    v_add_f32 v25, s49, v25
    v_rsq_f32 v25, v25
    s_lshl_b32 s33, s28, 2
    s_add_u32 s33, s33, {LDS_ST}
    v_mul_f32 v26, v26, v25
    """)
    stamp(a, 9)
    a.c("v24=mean v25=rstd v26=r ; key = ordered(r) top 21 bits | (2047-row)")
    a(f"""
    v_ashrrev_i32 v27, 31, v26
    v_cmp_o_f32 vcc, v26, v26
    v_or_b32 v27, 0x80000000, v27
    v_xor_b32 v27, v27, v26
    v_and_b32 v27, 0xfffff800, v27
    v_cndmask_b32 v27, 0, v27, vcc
    v_or_b32 v27, v27, v28
    v_mov_b32 v28, v27
    v_mul_f32 v30, v24, v25
    v_add_f32 v31, 1.0, v25
    v_max_u32_dpp v28, v28, v28 row_ror:4 row_mask:0xf bank_mask:0xf
    v_mov_b32 v9, s33
    v_mov_b32 v10, {LDS_ST}
    v_max_u32_dpp v28, v28, v28 row_ror:2 row_mask:0xf bank_mask:0xf
    v_fma_f32 v64, v{HU}, v31, -v30
    v_fma_f32 v65, v{HU+1}, v31, -v30
    v_max_u32_dpp v28, v28, v28 row_ror:1 row_mask:0xf bank_mask:0xf
    v_fma_f32 v66, v{HU+2}, v31, -v30
    ds_write_b32 v9, v28
    """)
    for i in range(3, 8):
        a(f"v_fma_f32 v{64+i}, v{HU+i}, v31, -v30")
    a(f"""
    s_waitcnt lgkmcnt(0)
    s_barrier
    ds_read_b128 v[32:35], v10
    ds_read_b128 v[36:39], v10 offset:16
    """)
    for i in range(4):
        a(f"v_cvt_pk_bf16_f32 v{72+i}, v{64+2*i}, v{64+2*i+1}")
    a(f"""
    s_lshl_b32 s33, s31, 10
    s_add_u32 s33, s33, s63
    s_add_u32 s33, s33, {WS_CROW:#x}
    s_lshl_b32 s54, s31, 7
    s_add_u32 s54, s54, {WS_CKEY:#x}
    v_mov_b32 v9, 0
    v_mov_b32 v20, v27
    v_mov_b32 v21, v24
    v_mov_b32 v22, v25
    v_mov_b32 v23, v26
    s_waitcnt lgkmcnt(0)
    v_max3_u32 v32, v32, v33, v34
    v_max3_u32 v36, v36, v37, v38
    v_max3_u32 v32, v32, v35, v39
    v_max_u32 v32, v32, v36
    v_cmp_eq_u32 vcc, v32, v27
    s_mov_b64 s[36:37], vcc
    s_cbranch_vccz {name}_nokey
    """)
    a.c("the candidate row's lanes publish key record (column block 0) and h piece; the others write their output rows")
    a(f"""
    s_mov_b64 exec, s[36:37]
    s_cmp_lg_u32 s32, 0
    s_cbranch_scc1 {name}_nokey2
    buffer_store_dwordx4 v[20:23], v9, s[24:27], s54 offen sc1
    {name}_nokey2:
    buffer_store_dwordx4 {vr(H,4)}, v{VCG}, s[24:27], s33 offen sc1
    {name}_nokey:
    s_not_b64 exec, s[36:37]
    buffer_store_dwordx4 v[72:75], v{VXO}, s[56:59], s64 offen {OSC}
    s_mov_b64 exec, -1
    """)
    a.c("==== hop B: wave 0 gathers the 32 candidates and the winner's row, then broadcasts through LDS")
    a(f"""
    s_cmp_lg_u32 s28, 0
    s_cbranch_scc1 {name}_bwait
    v_lshlrev_b32 v9, 7, v{L31}
    s_mov_b32 s40, {WS_CKEY:#x}
    s_mov_b32 s53, 0
    {('s_sleep %d' % BD) if BD else ''}
    {name}_bpoll:
    buffer_load_dwordx4 v[24:27], v9, s[24:27], s40 offen {PSC}
    s_add_u32 s53, s53, 1
    s_waitcnt vmcnt(0)
    v_cmp_eq_u32 vcc, -1, v24
    s_cmp_gt_u32 s53, {SPIN}
    s_cbranch_scc1 {name}_bdone
    s_cbranch_vccz {name}_bdone
    {('s_sleep %d' % BL) if BL else ''}
    s_branch {name}_bpoll
    {name}_bdone:
    v_mov_b32 v28, v24
    s_nop 1
    """)
    for dpp in DPP_MAX[:5]:
        a(f"v_max_u32_dpp v28, v28, v28 {dpp}")
        a("s_nop 1")
    a(f"""
    v_readlane_b32 s69, v28, 31
    s_nop 3
    s_and_b32 s50, s69, 0x7ff
    s_sub_u32 s50, 2047, s50
    s_lshr_b32 s51, s50, 6
    s_lshl_b32 s40, s51, 10
    s_add_u32 s40, s40, {WS_CROW:#x}
    s_mov_b32 s53, 0
    v_cmp_eq_u32 s[38:39], s69, v24
    v_readlane_b32 s54, v25, s51
    v_readlane_b32 s55, v26, s51
    v_mov_b32 v10, {LDS_ST+64}
    v_add_u32 v11, {LDS_ST+1024}, v{L16}
    {name}_rpoll:
    buffer_load_dwordx4 v[32:35], v{L16}, s[24:27], s40 offen {PSC}
    s_add_u32 s53, s53, 1
    s_waitcnt vmcnt(0)
    v_cmp_eq_u32 vcc, -1, v32
    s_cmp_gt_u32 s53, {SPIN}
    s_cbranch_scc1 {name}_rdone
    s_cbranch_vccnz {name}_rpoll
    {name}_rdone:
    ds_write_b128 v11, v[32:35]
    """)
    for i in range(4):
        a(f"v_lshlrev_b32 v{36+2*i}, 16, v{32+i}")
        a(f"v_and_b32 v{37+2*i}, s66, v{32+i}")
    for i in range(8):
        a(f"v_subrev_f32 v{36+i}, s54, v{36+i}")
    for i in range(8):
        a(f"v_mul_f32 v{36+i}, s55, v{36+i}")
    for i in range(4):
        a(f"v_cvt_pk_bf16_f32 v{44+i}, v{36+2*i}, v{37+2*i}")
    a(f"""
    ds_write_b128 v11, v[44:47] offset:2048
    s_mov_b64 exec, s[38:39]
    ds_write_b128 v10, v[24:27]
    s_mov_b64 exec, -1
    s_waitcnt lgkmcnt(0)
    {name}_bwait:
    v_lshrrev_b32 v12, 4, v{LANE}
    v_lshlrev_b32 v12, 4, v12
    s_lshl_b32 s33, s28, 7
    s_add_u32 s33, s33, {LDS_ST+3072}
    v_add_u32 v12, s33, v12
    v_mov_b32 v10, {LDS_ST+64}
    v_add_u32 v11, {LDS_ST+1024}, v{VT2}
    s_barrier
    ds_read_b128 v[32:35], v12
    ds_read_b128 v[36:39], v12 offset:64
    ds_read_b128 v[24:27], v10
    ds_read_u16 v29, v11
    ds_read_u16 v31, v11 offset:2048
    v_lshrrev_b32 v20, 4, v{LANE}
    v_lshlrev_b32 v20, 4, v20
    s_lshl_b32 s33, s28, 6
    s_add_u32 s33, s33, {LDS_FF}
    v_add_u32 v20, s33, v20
    v_and_b32 v21, 7, v{LANE}
    v_lshlrev_b32 v21, 2, v21
    v_add_u32 v21, {LDS_FF}, v21
    s_waitcnt lgkmcnt(3)
    v_mfma_f32_16x16x32_bf16 v[96:99], {vr(GW,4)}, v[32:35], 0
    v_mfma_f32_16x16x32_bf16 v[96:99], {vr(GW+4,4)}, v[36:39], v[96:99]
    s_waitcnt lgkmcnt(0)
    v_readfirstlane_b32 s69, v24
    v_lshlrev_b32 v29, 16, v29
    v_lshlrev_b32 v31, 16, v31
    v_mov_b32 v19, v27
    s_and_b32 s50, s69, 0x7ff
    s_sub_u32 s50, 2047, s50
    s_lshr_b32 s51, s50, 6
    ds_write_b128 v20, v[96:99]
    s_cmp_eq_u32 s51, s31
    s_cbranch_scc1 {name}_winner
    s_cmp_eq_u64 s[36:37], 0
    s_cbranch_scc1 {name}_winner
    s_mov_b64 exec, s[36:37]
    buffer_store_dwordx4 v[72:75], v{VXO}, s[56:59], s64 offen {OSC}
    s_mov_b64 exec, -1
    {name}_winner:
    """)
    stamp(a, 10)
    a(f"""
    s_cmp_eq_u32 s65, 0
    s_cbranch_scc1 {name}_fin
    """)
    a.c("LDS_FF[wave][16]: gate 0..7 | up 0..7 partial sums")
    a(f"""
    s_waitcnt lgkmcnt(0)
    s_barrier
    """)
    for w in range(8):
        a(f"ds_read2_b32 {vr(32+2*w,2)}, v21 offset0:{16*w} offset1:{16*w+8}")
    a(f"""
    v_lshrrev_b32 v20, 5, v0
    v_mul_u32_u24 v20, {224*128}, v20
    v_lshl_add_u32 v20, v{L31}, 2, v20
    s_lshl_b32 s33, s60, 7
    s_add_u32 s33, s33, {WS_YP:#x}
    s_mov_b32 s12, 0x11111111
    s_mov_b32 s13, 0x11111111
    s_waitcnt lgkmcnt(4)
    v_pk_add_f32 v[32:33], v[32:33], v[34:35]
    v_pk_add_f32 v[36:37], v[36:37], v[38:39]
    s_waitcnt lgkmcnt(0)
    v_pk_add_f32 v[40:41], v[40:41], v[42:43]
    v_pk_add_f32 v[44:45], v[44:45], v[46:47]
    v_pk_add_f32 v[32:33], v[32:33], v[36:37]
    v_pk_add_f32 v[40:41], v[40:41], v[44:45]
    v_pk_add_f32 v[32:33], v[32:33], v[40:41]
    v_mov_b32 v24, v32
    v_mov_b32 v36, v33
    """)
    rnd_bf16(a, 24, 24)
    rnd_bf16(a, 36, 36)
    a(f"""
    v_mul_f32 v25, {f32hex(-LOG2E)}, v24
    v_exp_f32 v25, v25
    s_nop 0
    v_add_f32 v25, 1.0, v25
    v_rcp_f32 v25, v25
    s_nop 0
    v_mul_f32 v24, v24, v25
    """)
    rnd_bf16(a, 24, 24)
    a("v_mul_f32 v24, v24, v36")
    rnd_bf16(a, 24, 24)
    a("s_nop 0")
    for f in range(8):
        a(f"v_readlane_b32 s{4+f}, v24, {f}")
    a(f"v_mul_f32 v24, s4, v{WD}")
    for f in range(1, 8):
        a(f"v_fmac_f32 v24, s{4+f}, v{WD+f}")
    a.c("the partial must never equal the sentinel; gather 4 columns per lane for full-line stores")
    a(f"""
    v_cmp_ne_u32 vcc, -1, v24
    v_mov_b32 v27, 0x7fc00000
    s_nop 0
    v_cndmask_b32 v24, v27, v24, vcc
    s_nop 1
    v_mov_b32_dpp v25, v24 quad_perm:[1,1,1,1] row_mask:0xf bank_mask:0xf
    v_mov_b32_dpp v26, v24 quad_perm:[2,2,2,2] row_mask:0xf bank_mask:0xf
    v_mov_b32_dpp v27, v24 quad_perm:[3,3,3,3] row_mask:0xf bank_mask:0xf
    s_mov_b64 exec, s[12:13]
    buffer_store_dwordx4 v[24:27], v20, s[24:27], s33 offen sc1
    s_mov_b64 exec, -1
    """)
    stamp(a, 11)
    a.c("==== hop C: workgroups 0..15 reduce 32 output columns each")
    a(f"""
    s_cmp_ge_u32 s2, 16
    s_cbranch_scc1 {name}_fin
    v_lshlrev_b32 v9, 4, v0
    v_mov_b32 v10, 0x7fffffff
    v_cmp_gt_u32 vcc, 256, v0
    s_mul_i32 s40, s2, {224*128}
    s_add_u32 s40, s40, {WS_YP:#x}
    v_cndmask_b32 v10, v10, v9, vcc
    s_add_u32 s41, s40, 8192
    s_add_u32 s42, s40, 16384
    s_add_u32 s43, s40, 24576
    s_mov_b32 s53, 0
    """)
    rnd_bf16(a, 19, 19)
    a(f"""
    v_mul_f32 v19, {f32hex(-LOG2E)}, v19
    v_exp_f32 v19, v19
    s_nop 0
    v_add_f32 v19, 1.0, v19
    v_rcp_f32 v19, v19
    s_nop 0
    """)
    rnd_bf16(a, 19, 19)
    a(f"""
    {('s_sleep %d' % CD) if CD else ''}
    {name}_cpoll:
    buffer_load_dwordx4 v[32:35], v9, s[24:27], s40 offen {PSC}
    buffer_load_dwordx4 v[36:39], v9, s[24:27], s41 offen {PSC}
    buffer_load_dwordx4 v[40:43], v9, s[24:27], s42 offen {PSC}
    buffer_load_dwordx4 v[44:47], v10, s[24:27], s43 offen {PSC}
    s_add_u32 s53, s53, 1
    s_waitcnt vmcnt(0)
    v_max3_u32 v24, v32, v36, v40
    v_max_u32 v24, v24, v44
    v_cmp_eq_u32 vcc, -1, v24
    s_cmp_gt_u32 s53, {SPIN}
    s_cbranch_scc1 {name}_cdone
    s_cbranch_vccnz {name}_cpoll
    {name}_cdone:
    v_pk_add_f32 v[32:33], v[32:33], v[36:37]
    v_pk_add_f32 v[34:35], v[34:35], v[38:39]
    v_pk_add_f32 v[40:41], v[40:41], v[44:45]
    v_pk_add_f32 v[42:43], v[42:43], v[46:47]
    v_pk_add_f32 v[24:25], v[32:33], v[40:41]
    v_pk_add_f32 v[26:27], v[34:35], v[42:43]
    s_lshl_b32 s33, s28, 2
    s_add_u32 s33, s33, {LDS_ST+2048}
    v_permlane32_swap_b32 v24, v26
    v_permlane32_swap_b32 v25, v27
    v_lshrrev_b32 v20, 4, v{LANE}
    v_pk_add_f32 v[24:25], v[24:25], v[26:27]
    v_and_b32 v21, 7, v{LANE}
    v_lshlrev_b32 v20, 5, v20
    v_permlane16_swap_b32 v24, v25
    v_lshl_add_u32 v20, v21, 7, v20
    v_add_u32 v20, s33, v20
    v_add_f32 v24, v24, v25
    v_lshlrev_b32 v22, 5, v{L31}
    v_add_u32 v22, {LDS_ST+2048}, v22
    v_add_f32_dpp v24, v24, v24 row_ror:8 row_mask:0xf bank_mask:0xf
    s_lshr_b32 s33, s2, 1
    s_nop 0
    ds_write_b32 v20, v24
    s_waitcnt lgkmcnt(0)
    s_barrier
    s_cmp_lg_u32 s28, s33
    s_cbranch_scc1 {name}_fin
    ds_read_b128 v[24:27], v22
    ds_read_b128 v[32:35], v22 offset:16
    s_and_b32 s33, s2, 1
    s_lshl_b32 s33, s33, 5
    s_waitcnt lgkmcnt(0)
    v_pk_add_f32 v[24:25], v[24:25], v[26:27]
    v_pk_add_f32 v[32:33], v[32:33], v[34:35]
    v_pk_add_f32 v[24:25], v[24:25], v[32:33]
    v_add_f32 v24, v24, v25
    """)
    rnd_bf16(a, 24, 24)
    a("v_mul_f32 v24, v24, v19")
    rnd_bf16(a, 24, 24)
    a("v_add_f32 v24, v24, v31")
    rnd_bf16(a, 24, 24)
    a(f"""
    v_add_f32 v24, v24, v29
    v_cvt_pk_bf16_f32 v24, v24, v24
    s_lshl_b32 s40, s50, 10
    s_mov_b32 s4, -1
    s_mov_b32 s5, 0
    s_lshl_b64 exec, s[4:5], s33
    buffer_store_short v24, v{VT2}, s[56:59], s40 offen {OSC}
    {name}_fin:
    """)
    stamp_flush(a, 0, 12)
    a(f"""
    {name}_end:
    s_endpgm
    """)
    a.label(f"{name}_slow")
    a.c("true-max path: side loads first, then pass 1: row maxima over this wave's keys")
    for op in side_ops() + [gu_op(0), gu_op(1)]:
        a(op)
    a(f"""
    s_waitcnt vmcnt(0)
    s_mov_b32 s55, s42
    s_mov_b32 s52, 16
    """)
    for qt in range(4):
        a(f"v_mov_b32 v{MX[qt]}, 0xff800000")
    a.label(f"{name}_s1")
    a(f"buffer_load_dwordx4 {vr(KB[0],4)}, v{VKQ}, s[24:27], s55 offen sc1")
    a("s_add_u32 s55, s55, 1024")
    a("s_waitcnt vmcnt(0)")
    for qt in range(4):
        a(f"v_mfma_f32_32x32x16_bf16 {vr(S[qt],16)}, {vr(KB[0],4)}, {vr(Q[qt],4)}, 0")
    a("s_nop 15")
    for qt in range(4):
        for i in range(0, 16, 2):
            a(f"v_max3_f32 v{MX[qt]}, v{S[qt]+i}, v{S[qt]+i+1}, v{MX[qt]}")
    a(f"""
    s_sub_u32 s52, s52, 1
    s_cmp_lg_u32 s52, 0
    s_cbranch_scc1 {name}_s1
    s_lshl_b32 s53, s28, 10
    v_lshlrev_b32 v8, 2, v{LANE}
    v_add_u32 v9, s53, v8
    """)
    for qt in range(4):
        a(f"ds_write_b32 v9, v{MX[qt]} offset:{qt*256}")
    a(f"""
    s_lshl_b32 s53, s34, 10
    v_lshlrev_b32 v8, 2, v{L31}
    v_add_u32 v9, s53, v8
    s_waitcnt lgkmcnt(0)
    s_barrier
    """)
    for qt in range(4):
        for kq in range(4):
            a(f"ds_read_b32 v{S[0]+2*kq}, v9 offset:{kq*2048+qt*256}\nds_read_b32 v{S[0]+2*kq+1}, v9 offset:{kq*2048+qt*256+128}")
        a("s_waitcnt lgkmcnt(0)")
        a(f"v_max3_f32 v{MX[qt]}, v{S[0]}, v{S[0]+1}, v{S[0]+2}")
        a(f"v_max3_f32 v{MX[qt]}, v{S[0]+3}, v{S[0]+4}, v{MX[qt]}")
        a(f"v_max3_f32 v{MX[qt]}, v{S[0]+5}, v{S[0]+6}, v{MX[qt]}")
        a(f"v_max_f32 v{MX[qt]}, v{S[0]+7}, v{MX[qt]}")
    a(f"""
    s_barrier
    s_mov_b32 s52, 16
    """)
    a.label(f"{name}_s2")
    kv_load(0)
    a("s_waitcnt vmcnt(0)")
    for qt in range(4):
        a(f"v_mfma_f32_32x32x16_bf16 {vr(S[qt],16)}, {vr(KB[0],4)}, {vr(Q[qt],4)}, 0")
    a("s_nop 15")
    for qt in range(4):
        for i in range(16):
            a(f"v_sub_f32 v{S[qt]+i}, v{S[qt]+i}, v{MX[qt]}")
        for i in range(16):
            a(f"v_exp_f32 v{S[qt]+i}, v{S[qt]+i}")
        a("s_nop 1")
        a(f"v_smfmac_f32_32x32x32_bf16 {vr(O[qt],16)}, {vr(VB[0],4)}, {vr(S[qt],8)}, v{IDX}")
        a(f"v_smfmac_f32_32x32x32_bf16 {vr(O[qt],16)}, {vr(VB[0]+4,4)}, {vr(S[qt]+8,8)}, v{IDX}")
    a(f"""
    s_nop 7
    s_sub_u32 s52, s52, 1
    s_cmp_lg_u32 s52, 0
    s_cbranch_scc1 {name}_s2
    s_branch {name}_combine
    """)
    return descriptor(name, 256)
```

```python
import sys
sys.path.insert(0, "gen")
from asmlib import *
from layout import *
from k1 import *
from kb import *
ref = open("sequential_preLN__mha_block__moe_arch_mod__prompt.s.ref").read()
hdr = "".join(l + "\n" for l in ref.split("\n") if l.startswith(";") and "@launch" not in l and "Override" not in l and "grid=ceil" not in l)

DOC = """;
"""
a = Asm()
name = "sequential_preLN__mha_block__moe_arch_mod__prompt_kernel"
hdr += f"; @launch grid=(256,1,1) block=(512,1,1) lds={max(K1_LDS, KB_LDS)}\n"
hdr += DOC
gen_k1(a, name)
desc = gen_kb(a, name)
txt = hdr + '.amdgcn_target "amdgcn-amd-amdhsa--gfx950"\n.text\n' + a.text() + "code_end:\n    s_endpgm\n" + '.section .rodata,"a"\n' + desc
txt = txt.replace(name + "_", "L_")
out = sys.argv[1] if len(sys.argv) > 1 else "sequential_preLN__mha_block__moe_arch_mod__prompt.s"
open(out, "w").write(txt)
print("wrote", out, len(txt))
```
